```python
import torch

def _softmax(x, axis=-1):
    return torch.softmax(x, dim=axis)
def _gelu(x):
    return torch.nn.functional.gelu(x, approximate="tanh")
def _silu(x):
    return torch.nn.functional.silu(x)
def _sigmoid(x):
    return torch.sigmoid(x)
def _layernorm(x, axis=-1, eps=1e-5):
    m = x.mean(dim=axis, keepdim=True)
    v = x.var(dim=axis, keepdim=True, unbiased=False)
    return (x - m) / torch.sqrt(v + eps)
def _scatter_add(tgt, idx, src, axis=0):
    return tgt.clone().index_add_(axis, idx, src)
def _segment_sum(src, seg, n):
    out = torch.zeros((n,) + src.shape[1:], dtype=src.dtype)
    return out.index_add_(0, seg, src)
def _pad(x, pw):
    flat = tuple(v for pair in reversed(pw) for v in pair)
    return torch.nn.functional.pad(x, flat)

kernel_name = 'concat_heads__gqa_block_cached__mha_block_cached__near_ridge'

def setup_inputs():

    _w = (lambda a: (lambda t: t.to(torch.bfloat16) if t.is_floating_point() else t)(torch.as_tensor(a)))
    def _A_setup():
        B, Sq, D = 32, 32, 512
        Hq, Hkv, Sk, Dh = 32, 32, 32, 128
        assert Hq % Hkv == 0, (Hq, Hkv)
        return {
            "x": _w((lambda *s: torch.randn(*s, dtype=torch.bfloat16) * 0.8)(B, Sq, D)),
            "k_cache": _w((lambda *s: torch.randn(*s, dtype=torch.bfloat16) * 0.8)(B, Hkv, Sk, Dh)),
            "v_cache": _w((lambda *s: torch.randn(*s, dtype=torch.bfloat16) * 0.05)(B, Hkv, Sk, Dh)),
            "wq": _w((lambda *s: torch.randn(*s, dtype=torch.bfloat16) * 0.8)(D, Hq * Dh) * (D ** -0.5)),
            "wo": _w((lambda *s: torch.randn(*s, dtype=torch.bfloat16) * 0.05)(Hq * Dh, D) * ((Hq * Dh) ** -0.5)),
        }
    _A_in = _A_setup()

    def _B_setup():
        B, Sq, D = 32, 32, 512
        H, Sk, Dh = 32, 32, 128
        return {
            "x": _w((lambda *s: torch.randn(*s, dtype=torch.bfloat16) * 0.8)(B, Sq, D)),
            "k_cache": _w((lambda *s: torch.randn(*s, dtype=torch.bfloat16) * 0.8)(B, H, Sk, Dh)),
            "v_cache": _w((lambda *s: torch.randn(*s, dtype=torch.bfloat16) * 0.05)(B, H, Sk, Dh)),
            "wq": _w((lambda *s: torch.randn(*s, dtype=torch.bfloat16) * 0.8)(D, H * Dh) * (D ** -0.5)),
            "wo": _w((lambda *s: torch.randn(*s, dtype=torch.bfloat16) * 0.05)(H * Dh, D) * ((H * Dh) ** -0.5)),
        }
    _B_in = _B_setup()

    return {
        "A_x": _A_in["x"],
        "A_k_cache": _A_in["k_cache"],
        "A_v_cache": _A_in["v_cache"],
        "A_wq": _A_in["wq"],
        "A_wo": _A_in["wo"],
        "B_x": _B_in["x"],
        "B_k_cache": _B_in["k_cache"],
        "B_v_cache": _B_in["v_cache"],
        "B_wq": _B_in["wq"],
        "B_wo": _B_in["wo"],
    }

def reference(A_x, A_k_cache, A_v_cache, A_wq, A_wo, B_x, B_k_cache, B_v_cache, B_wq, B_wo):
    def _A_ref(x, k_cache, v_cache, wq, wo):
        B, Sq, D = x.shape
        Hq, Dh = 32, 128
        Hkv = k_cache.shape[1]
        rep = Hq // Hkv
        q = (lambda x, *d: x.permute(*d))((x @ wq).reshape(B, Sq, Hq, Dh), 0, 2, 1, 3)
        k = (lambda x, n, axis: torch.repeat_interleave(x, n, dim=axis))(k_cache, rep, axis=1)
        v = (lambda x, n, axis: torch.repeat_interleave(x, n, dim=axis))(v_cache, rep, axis=1)
        scores = torch.einsum("bhqd,bhkd->bhqk", q, k) * (Dh ** -0.5)
        p = _softmax(scores, axis=-1)
        o = torch.einsum("bhqk,bhkd->bhqd", p, v)
        return (lambda x, *d: x.permute(*d))(o, 0, 2, 1, 3).reshape(B, Sq, Hq * Dh) @ wo

    def _B_ref(x, k_cache, v_cache, wq, wo):
        B, Sq, D = x.shape
        H, Dh = 32, 128
        q = (lambda x, *d: x.permute(*d))((x @ wq).reshape(B, Sq, H, Dh), 0, 2, 1, 3)
        scores = torch.einsum("bhqd,bhkd->bhqk", q, k_cache) * (Dh ** -0.5)
        p = _softmax(scores, axis=-1)
        o = torch.einsum("bhqk,bhkd->bhqd", p, v_cache)
        return (lambda x, *d: x.permute(*d))(o, 0, 2, 1, 3).reshape(B, Sq, H * Dh) @ wo

    a = _A_ref(A_x, A_k_cache, A_v_cache, A_wq, A_wo)
    b = _B_ref(B_x, B_k_cache, B_v_cache, B_wq, B_wo)
    return torch.concatenate([a, b], axis=-1)
```

```python
import sys

NAME = "concat_heads__gqa_block_cached__mha_block_cached__near_ridge"
OUT = "cdna_kernels/%s.s" % NAME

HEADER = """; Kernarg layout for this problem (104 bytes, ptrs only, base s[0:1]):
"""


class Asm:
    def __init__(self):
        self.lines = []

    def __call__(self, s):
        self.lines.append("    " + s)

    def label(self, s):
        self.lines.append(s + ":")

    def raw(self, s):
        self.lines.append(s)

    def comment(self, s):
        self.lines.append("    ; " + s)

    def text(self):
        return "\n".join(self.lines) + "\n"


def vr(base, n):
    return "v[%d:%d]" % (base, base + n - 1)


def sr(base, n):
    return "s[%d:%d]" % (base, base + n - 1)


def buf_off(o):
    assert 0 <= o < 4096, o
    return "offset:%d" % o


def ds_off(o):
    assert 0 <= o < 65536, o
    return "offset:%d" % o


def kernel_begin(a, name):
    a.raw(".globl %s" % name)
    a.raw(".p2align 8")
    a.raw(".type %s,@function" % name)
    a.label(name)


def kernel_desc(name, vgpr, sgpr, accum=None):
    if accum is None:
        accum = (vgpr + 3) // 4 * 4
    return """.amdhsa_kernel %s
  .amdhsa_next_free_vgpr %d
  .amdhsa_next_free_sgpr %d
  .amdhsa_accum_offset %d
  .amdhsa_group_segment_fixed_size 0
  .amdhsa_kernarg_size 104
  .amdhsa_user_sgpr_count 2
  .amdhsa_user_sgpr_kernarg_segment_ptr 1
  .amdhsa_system_sgpr_workgroup_id_x 1
.end_amdhsa_kernel
""" % (name, vgpr, sgpr, accum)


def make_srd(a, d, base_lo, size):
    a("s_mov_b32 s%d, s%d" % (d, base_lo))
    a("s_and_b32 s%d, s%d, 0xffff" % (d + 1, base_lo + 1))
    a("s_mov_b32 s%d, 0x%x" % (d + 2, size))
    a("s_mov_b32 s%d, 0x00020000" % (d + 3))


O_WS_OFF = 0
P_WS_OFF = 16 << 20

K1_LDS = 147456


def gen_k1(a):
    name = "k1_kernel"
    kernel_begin(a, name)
    S_X, S_W, S_K, S_V, S_O = 40, 44, 48, 52, 56
    sWAVE, sBL, sHL, sBG, sH0, sB, sH = 60, 61, 62, 63, 64, 65, 66
    sKB, sKB2, sOB = 67, 68, 69
    sT0, sT1, sT2, sT3 = 70, 71, 72, 73
    sM0X, sM0W = 74, 75
    sXS, sWS = 76, 77
    sSCALE, sLOG2E = 78, 79
    vACC = 0
    vKR = 64
    vVR = 96
    vA = [128, 144]
    vB = [160, 164]
    vXR = 168
    vWR = 172
    vWR2 = 176
    vXOFF = 180
    vWOFF = 182
    vKOFF = 183
    vVOFF = 184
    vT = 185
    vLANE = 200
    NV = 208

    a("s_cmp_ge_u32 s2, 256")
    a("s_cbranch_scc1 K1_DONE")
    a("s_load_dwordx16 s[16:31], s[0:1], 0")
    a("s_load_dwordx4 s[32:35], s[0:1], 64")
    a("s_load_dwordx2 s[36:37], s[0:1], 96")
    a("v_lshrrev_b32 v%d, 6, v0" % vT)
    a("v_and_b32 v%d, 63, v0" % vLANE)
    a("s_nop 0")
    a("v_readfirstlane_b32 s%d, v%d" % (sWAVE, vT))
    a("s_and_b32 s%d, s2, 7" % sT0)
    a("s_lshr_b32 s%d, s2, 3" % sT1)
    a("s_lshr_b32 s%d, s%d, 2" % (sBG, sT1))
    a("s_and_b32 s%d, s%d, 3" % (sT1, sT1))
    a("s_and_b32 s%d, s%d, 3" % (sT2, sT0))
    a("s_lshl_b32 s%d, s%d, 3" % (sH0, sT2))
    a("s_lshl_b32 s%d, s%d, 1" % (sT1, sT1))
    a("s_add_u32 s%d, s%d, s%d" % (sH0, sH0, sT1))
    a("s_lshr_b32 s%d, s%d, 1" % (sBL, sWAVE))
    a("s_and_b32 s%d, s%d, 1" % (sHL, sWAVE))
    a("s_lshl_b32 s%d, s%d, 2" % (sB, sBG))
    a("s_add_u32 s%d, s%d, s%d" % (sB, sB, sBL))
    a("s_add_u32 s%d, s%d, s%d" % (sH, sH0, sHL))
    a("s_lshr_b32 s%d, s%d, 2" % (sT3, sT0))
    a("s_waitcnt lgkmcnt(0)")
    a("s_cmp_eq_u32 s%d, 0" % sT3)
    for i in range(4):
        a("s_cselect_b32 s%d, s%d, s%d" % (16 + 2 * i, 16 + 2 * i, 26 + 2 * i))
        a("s_cselect_b32 s%d, s%d, s%d" % (17 + 2 * i, 17 + 2 * i, 27 + 2 * i))
    make_srd(a, S_X, 16, 1 << 20)
    make_srd(a, S_K, 18, 8 << 20)
    make_srd(a, S_V, 20, 8 << 20)
    make_srd(a, S_W, 22, 4 << 20)
    a("s_lshl_b32 s%d, s%d, 23" % (sT0, sT3))
    a("s_add_u32 s36, s36, s%d" % sT0)
    a("s_addc_u32 s37, s37, 0")
    make_srd(a, S_O, 36, 8 << 20)
    a("s_mov_b32 s%d, 0x3db504f3" % sSCALE)
    a("s_mov_b32 s%d, 0x3fb8aa3b" % sLOG2E)

    L = vLANE
    t0, t1, t2, t3, t4 = vT, vT + 1, vT + 2, vT + 3, vT + 4
    a("v_lshrrev_b32 v%d, 3, v%d" % (t0, L))
    a("v_and_b32 v%d, 7, v%d" % (t1, L))
    a("v_lshrrev_b32 v%d, 1, v%d" % (t2, t0))
    a("s_lshl_b32 s%d, s%d, 7" % (sT0, sBG))
    a("s_lshl_b32 s%d, s%d, 4" % (sT1, sWAVE))
    a("s_add_u32 s%d, s%d, s%d" % (sT0, sT0, sT1))
    for i in range(2):
        a("v_add_u32 v%d, %d, v%d" % (t3, 4 * i, t2))
        a("v_xor_b32 v%d, v%d, v%d" % (t3, t3, t1))
        a("v_add_u32 v%d, s%d, v%d" % (t4, sT0, t0))
        a("v_add_u32 v%d, %d, v%d" % (t4, 8 * i, t4))
        a("v_lshlrev_b32 v%d, 10, v%d" % (t4, t4))
        a("v_lshl_add_u32 v%d, v%d, 4, v%d" % (vXOFF + i, t3, t4))
    a("v_lshrrev_b32 v%d, 4, v%d" % (t0, L))
    a("v_and_b32 v%d, 15, v%d" % (t1, L))
    a("v_lshlrev_b32 v%d, 2, v%d" % (t2, t0))
    a("v_xor_b32 v%d, v%d, v%d" % (t1, t1, t2))
    a("s_lshr_b32 s%d, s%d, 1" % (sT0, sWAVE))
    a("s_lshl_b32 s%d, s%d, 4" % (sT0, sT0))
    a("v_add_u32 v%d, s%d, v%d" % (t0, sT0, t0))
    a("v_lshlrev_b32 v%d, 13, v%d" % (t0, t0))
    a("v_lshl_add_u32 v%d, v%d, 4, v%d" % (t0, t1, t0))
    a("s_and_b32 s%d, s%d, 1" % (sT1, sWAVE))
    a("s_add_u32 s%d, s%d, s%d" % (sT2, sH0, sT1))
    a("s_lshl_b32 s%d, s%d, 8" % (sT2, sT2))
    a("v_add_u32 v%d, s%d, v%d" % (vWOFF, sT2, t0))
    a("s_lshl_b32 s%d, s%d, 11" % (sM0X, sWAVE))
    a("s_lshl_b32 s%d, s%d, 14" % (sM0W, sT1))
    a("s_lshl_b32 s%d, s%d, 8" % (sT0, sT0))
    a("s_add_u32 s%d, s%d, s%d" % (sM0W, sM0W, sT0))
    a("s_add_u32 s%d, s%d, 49152" % (sM0W, sM0W))
    a("v_and_b32 v%d, 31, v%d" % (t0, L))
    a("v_lshrrev_b32 v%d, 5, v%d" % (t1, L))
    a("v_lshlrev_b32 v%d, 8, v%d" % (vKOFF, t0))
    a("v_lshl_add_u32 v%d, v%d, 4, v%d" % (vKOFF, t1, vKOFF))
    a("v_lshlrev_b32 v%d, 4, v%d" % (vVOFF, L))
    a("s_lshl_b32 s%d, s%d, 5" % (sKB, sB))
    a("s_add_u32 s%d, s%d, s%d" % (sKB, sKB, sH))
    a("s_lshl_b32 s%d, s%d, 13" % (sKB, sKB))
    a("s_add_u32 s%d, s%d, 4096" % (sKB2, sKB))
    a("v_lshrrev_b32 v%d, 1, v%d" % (t2, t0))
    a("v_and_b32 v%d, 7, v%d" % (t2, t2))
    a("s_lshl_b32 s%d, s%d, 5" % (sT0, sBL))
    a("v_add_u32 v%d, s%d, v%d" % (t3, sT0, t0))
    a("v_lshlrev_b32 v%d, 7, v%d" % (t3, t3))
    for c in range(4):
        a("v_add_u32 v%d, %d, v%d" % (t4, 2 * c, t1))
        a("v_xor_b32 v%d, v%d, v%d" % (t4, t4, t2))
        a("v_lshl_add_u32 v%d, v%d, 4, v%d" % (vXR + c, t4, t3))
    a("v_lshrrev_b32 v%d, 4, v%d" % (t0, L))
    a("v_and_b32 v%d, 1, v%d" % (t1, t0))
    a("v_lshrrev_b32 v%d, 1, v%d" % (t0, t0))
    a("v_bfe_u32 v%d, v%d, 2, 2" % (t2, L))
    a("v_and_b32 v%d, 1, v%d" % (t3, L))
    a("v_bfe_u32 v%d, v%d, 1, 1" % (t4, L))
    a("v_lshl_add_u32 v%d, v%d, 1, v%d" % (t3, t3, t4))
    a("v_lshlrev_b32 v%d, 3, v%d" % (t3, t3))
    a("v_lshl_add_u32 v%d, v%d, 5, v%d" % (t3, t1, t3))
    a("v_lshl_add_u32 v%d, v%d, 3, v%d" % (t4, t0, t2))
    a("v_lshl_add_u32 v%d, v%d, 8, v%d" % (t4, t4, t3))
    a("s_lshl_b32 s%d, s%d, 14" % (sT0, sHL))
    a("s_add_u32 s%d, s%d, 49152" % (sT0, sT0))
    a("v_add_u32 v%d, s%d, v%d" % (t4, sT0, t4))
    for T in range(4):
        a("v_xor_b32 v%d, %d, v%d" % (t1, T, t2))
        a("v_lshl_add_u32 v%d, v%d, 6, v%d" % (vWR + T, t1, t4))
        a("v_add_u32 v%d, 0x10000, v%d" % (vWR2 + T, vWR + T))
    for i in range(64):
        a("v_mov_b32 v%d, 0" % (vACC + i))

    def dma(stage):
        buf = stage % 3
        a("s_mov_b32 s%d, %d" % (sXS, stage * 128))
        for i in range(2):
            a("s_add_u32 m0, s%d, %d" % (sM0X, buf * 16384 + i * 1024))
            a("s_nop 0")
            a("buffer_load_dwordx4 v%d, %s, s%d offen lds" % (vXOFF + i, sr(S_X, 4), sXS))
        for j in range(4):
            a("s_mov_b32 s%d, %d" % (sWS, stage * 524288 + j * 32768))
            a("s_add_u32 m0, s%d, %d" % (sM0W, buf * 32768 + j * 1024))
            a("s_nop 0")
            a("buffer_load_dwordx4 v%d, %s, s%d offen lds" % (vWOFF, sr(S_W, 4), sWS))

    def kv_load(idx):
        if idx < 8:
            a("buffer_load_dwordx4 %s, v%d, %s, s%d offen %s" % (vr(vKR + 4 * idx, 4), vKOFF, sr(S_K, 4), sKB, buf_off(32 * idx)))
        else:
            j = idx - 8
            a("buffer_load_dwordx4 %s, v%d, %s, s%d offen %s" % (vr(vVR + 4 * j, 4), vVOFF, sr(S_V, 4), sKB if j < 4 else sKB2, buf_off(1024 * (j & 3))))

    def reads(stage, c, st):
        buf = stage % 3
        a("ds_read_b128 %s, v%d %s" % (vr(vB[st], 4), vXR + c, ds_off(buf * 16384)))
        for T in range(4):
            base = vWR2 if buf == 2 else vWR
            bo = 0 if buf == 2 else buf * 32768
            for p in range(2):
                a("ds_read_b64_tr_b16 %s, v%d %s" % (vr(vA[st] + 4 * T + 2 * p, 2), base + T, ds_off(bo + (16 * c + 4 * p) * 256)))

    def mfmas(st, waits):
        for T in range(4):
            if waits[T] is not None:
                a("s_waitcnt lgkmcnt(%d)" % waits[T])
            a("v_mfma_f32_32x32x16_bf16 %s, %s, %s, %s" % (vr(vACC + 16 * T, 16), vr(vA[st] + 4 * T, 4), vr(vB[st], 4), vr(vACC + 16 * T, 16)))

    def mfma1(st, T, w):
        a("s_waitcnt lgkmcnt(%d)" % w)
        a("v_mfma_f32_32x32x16_bf16 %s, %s, %s, %s" % (vr(vACC + 16 * T, 16), vr(vA[st] + 4 * T, 4), vr(vB[st], 4), vr(vACC + 16 * T, 16)))

    dma(0)
    dma(1)
    NST = 8
    for s in range(NST):
        if s == 0:
            n = 6
        else:
            n = 0
            if s >= 2:
                n += 2
            if s + 1 < NST:
                n += 6
            n += 2
        a("s_waitcnt vmcnt(%d)" % n)
        a("s_barrier")
        reads(s, 0, 0)
        if s + 2 < NST:
            dma(s + 2)
        kv_load(2 * s)
        kv_load(2 * s + 1)
        for c in range(4):
            st = c & 1
            mfma1(st, 0, 6)
            mfma1(st, 1, 4)
            if c < 3:
                reads(s, c + 1, st ^ 1)
                mfma1(st, 2, 11)
                mfma1(st, 3, 9)
            else:
                mfma1(st, 2, 2)
                mfma1(st, 3, 0)
    a("s_barrier")
    a("s_waitcnt vmcnt(0)")
    a("v_lshrrev_b32 v%d, 4, v%d" % (t0, L))
    a("v_and_b32 v%d, 15, v%d" % (t1, L))
    a("v_lshlrev_b32 v%d, 2, v%d" % (t2, t0))
    a("v_xor_b32 v%d, v%d, v%d" % (t1, t1, t2))
    a("v_lshlrev_b32 v%d, 8, v%d" % (t0, t0))
    a("v_lshl_add_u32 v%d, v%d, 4, v%d" % (t0, t1, t0))
    a("s_lshl_b32 s%d, s%d, 13" % (sT0, sWAVE))
    a("v_add_u32 v%d, s%d, v%d" % (t0, sT0, t0))
    for j in range(8):
        a("ds_write_b128 v%d, %s %s" % (t0, vr(vVR + 4 * j, 4), ds_off(1024 * j)))
    a("v_lshrrev_b32 v%d, 4, v%d" % (t0, L))
    a("v_and_b32 v%d, 1, v%d" % (t1, t0))
    a("v_lshrrev_b32 v%d, 1, v%d" % (t0, t0))
    a("v_bfe_u32 v%d, v%d, 2, 2" % (t2, L))
    a("v_and_b32 v%d, 1, v%d" % (t3, L))
    a("v_bfe_u32 v%d, v%d, 1, 1" % (t4, L))
    a("v_lshl_add_u32 v%d, v%d, 1, v%d" % (t3, t3, t4))
    a("v_lshlrev_b32 v%d, 3, v%d" % (t3, t3))
    a("v_lshl_add_u32 v%d, v%d, 5, v%d" % (t3, t1, t3))
    a("v_lshl_add_u32 v%d, v%d, 2, v%d" % (t4, t0, t2))
    a("v_lshl_add_u32 v%d, v%d, 8, v%d" % (t4, t4, t3))
    a("v_add_u32 v%d, s%d, v%d" % (t4, sT0, t4))
    for T in range(4):
        a("v_xor_b32 v%d, %d, v%d" % (t1, T, t2))
        a("v_lshl_add_u32 v%d, v%d, 6, v%d" % (vWR + T, t1, t4))
    vQ = 128
    a("s_nop 7")
    for i in range(32):
        a("v_cvt_pk_bf16_f32 v%d, v%d, v%d" % (vQ + i, vACC + 2 * i, vACC + 2 * i + 1))
    vS = 0
    a("s_nop 1")
    for j in range(8):
        a("v_mfma_f32_32x32x16_bf16 %s, %s, %s, %s" % (vr(vS, 16), vr(vKR + 4 * j, 4), vr(vQ + 4 * j, 4), "0" if j == 0 else vr(vS, 16)))
    a("s_waitcnt lgkmcnt(0)")
    vVF = 64
    vVF = 96
    for T in range(4):
        for c2 in range(2):
            for p in range(2):
                a("ds_read_b64_tr_b16 %s, v%d %s" % (vr(vVF + 8 * T + 4 * c2 + 2 * p, 2), vWR + T, ds_off((16 * c2 + 8 * p) * 256)))
    a("s_nop 7")
    a("s_nop 3")
    vP = 16
    vE = 32
    for i in range(8):
        a("v_cvt_pk_bf16_f32 v%d, v%d, v%d" % (vP + i, vS + 2 * i, vS + 2 * i + 1))
    for i in range(8):
        a("v_lshlrev_b32 v%d, 16, v%d" % (vE + 2 * i, vP + i))
        a("v_and_b32 v%d, 0xffff0000, v%d" % (vE + 2 * i + 1, vP + i))
    for i in range(16):
        a("v_mul_f32 v%d, s%d, v%d" % (vE + i, sSCALE, vE + i))
    for i in range(8):
        a("v_cvt_pk_bf16_f32 v%d, v%d, v%d" % (vP + i, vE + 2 * i, vE + 2 * i + 1))
    for i in range(8):
        a("v_lshlrev_b32 v%d, 16, v%d" % (vE + 2 * i, vP + i))
        a("v_and_b32 v%d, 0xffff0000, v%d" % (vE + 2 * i + 1, vP + i))
    m0_, m1_ = t0, t1
    a("v_max3_f32 v%d, v%d, v%d, v%d" % (m0_, vE, vE + 1, vE + 2))
    for i in range(3, 15, 2):
        a("v_max3_f32 v%d, v%d, v%d, v%d" % (m0_, m0_, vE + i, vE + i + 1))
    a("v_max_f32 v%d, v%d, v%d" % (m0_, m0_, vE + 15))
    a("v_mov_b32 v%d, v%d" % (m1_, m0_))
    a("s_nop 1")
    a("v_permlane32_swap_b32 v%d, v%d" % (m0_, m1_))
    a("s_nop 1")
    a("v_max_f32 v%d, v%d, v%d" % (m0_, m0_, m1_))
    a("v_mul_f32 v%d, s%d, v%d" % (m0_, sLOG2E, m0_))
    for i in range(16):
        a("v_fma_f32 v%d, v%d, s%d, -v%d" % (vE + i, vE + i, sLOG2E, m0_))
    for i in range(16):
        a("v_exp_f32 v%d, v%d" % (vE + i, vE + i))
    a("s_nop 0")
    s0_, s1_ = t2, t3
    a("v_add_f32 v%d, v%d, v%d" % (s0_, vE, vE + 1))
    a("v_add_f32 v%d, v%d, v%d" % (s1_, vE + 2, vE + 3))
    for i in range(4, 16, 2):
        a("v_add_f32 v%d, v%d, v%d" % (s0_, s0_, vE + i))
        a("v_add_f32 v%d, v%d, v%d" % (s1_, s1_, vE + i + 1))
    a("v_add_f32 v%d, v%d, v%d" % (s0_, s0_, s1_))
    a("v_mov_b32 v%d, v%d" % (s1_, s0_))
    a("s_nop 1")
    a("v_permlane32_swap_b32 v%d, v%d" % (s0_, s1_))
    a("s_nop 1")
    a("v_add_f32 v%d, v%d, v%d" % (s0_, s0_, s1_))
    a("v_rcp_f32 v%d, v%d" % (s0_, s0_))
    a("s_nop 0")
    for i in range(16):
        a("v_mul_f32 v%d, v%d, v%d" % (vE + i, vE + i, s0_))
    for i in range(8):
        a("v_cvt_pk_bf16_f32 v%d, v%d, v%d" % (vP + i, vE + 2 * i, vE + 2 * i + 1))
    vO = 32
    a("s_waitcnt lgkmcnt(0)")
    a("s_nop 1")
    for T in range(4):
        for c2 in range(2):
            a("v_mfma_f32_32x32x16_bf16 %s, %s, %s, %s" % (vr(vO + 16 * T, 16), vr(vVF + 8 * T + 4 * c2, 4), vr(vP + 4 * c2, 4), "0" if c2 == 0 else vr(vO + 16 * T, 16)))
    a("v_and_b32 v%d, 31, v%d" % (t0, L))
    a("v_lshrrev_b32 v%d, 5, v%d" % (t1, L))
    a("v_lshlrev_b32 v%d, 13, v%d" % (t0, t0))
    a("v_lshl_add_u32 v%d, v%d, 4, v%d" % (t0, t1, t0))
    a("s_lshl_b32 s%d, s%d, 18" % (sOB, sB))
    a("s_lshl_b32 s%d, s%d, 8" % (sT0, sH))
    a("s_add_u32 s%d, s%d, s%d" % (sOB, sOB, sT0))
    a("s_nop 7")
    a("s_nop 3")
    vOP = 128
    for T in range(4):
        for jj in range(2):
            for i in range(4):
                a("v_cvt_pk_bf16_f32 v%d, v%d, v%d" % (vOP + 8 * T + 4 * jj + i, vO + 16 * T + 8 * jj + 2 * i, vO + 16 * T + 8 * jj + 2 * i + 1))
            a("buffer_store_dwordx4 %s, v%d, %s, s%d offen %s" % (vr(vOP + 8 * T + 4 * jj, 4), t0, sr(S_O, 4), sOB, buf_off(64 * T + 32 * jj)))
    a.label("K1_DONE")
    a("s_endpgm")
    return kernel_desc(name, NV, 96)


K2_LDS = 131072


def gen_k2(a):
    name = "k2_kernel"
    kernel_begin(a, name)
    S_A, S_B, S_P = 40, 44, 48
    sWAVE, sG, sWM, sWN, sTM, sTN, sKS, sBLK = 60, 61, 62, 63, 64, 65, 66, 67
    sT0, sT1, sT2, sT3 = 70, 71, 72, 73
    sM0A, sM0B = 74, 75
    sAS, sBS = 76, 77
    sABASE, sBBASE = 78, 79
    sPB = 80
    vACC = 0
    vA = [64, 72]
    vB = [80, 88]
    vAR = 96
    vBR = 100
    vAR2 = 102
    vBR2 = 106
    vAOFF = 108
    vBOFF = 110
    vT = 112
    vLANE = 124
    NV = 128
    L = vLANE
    t0, t1, t2, t3, t4, t5 = [vT + i for i in range(6)]
    a("s_cmp_ge_u32 s2, 256")
    a("s_cbranch_scc1 K2_DONE")
    a("s_load_dwordx2 s[16:17], s[0:1], 32")
    a("s_load_dwordx2 s[18:19], s[0:1], 72")
    a("s_load_dwordx2 s[36:37], s[0:1], 96")
    a("v_lshrrev_b32 v%d, 6, v0" % t0)
    a("v_and_b32 v%d, 63, v0" % L)
    a("s_nop 0")
    a("v_readfirstlane_b32 s%d, v%d" % (sWAVE, t0))
    a("s_and_b32 s%d, s2, 7" % sT0)
    a("s_lshr_b32 s%d, s%d, 2" % (sBLK, sT0))
    a("s_and_b32 s%d, s%d, 3" % (sKS, sT0))
    a("s_lshr_b32 s%d, s2, 3" % sT1)
    a("s_lshr_b32 s%d, s%d, 2" % (sTM, sT1))
    a("s_and_b32 s%d, s%d, 3" % (sTN, sT1))
    a("s_lshr_b32 s%d, s%d, 2" % (sG, sWAVE))
    a("s_bfe_u32 s%d, s%d, 0x10001" % (sWM, sWAVE))
    a("s_and_b32 s%d, s%d, 1" % (sWN, sWAVE))
    a("s_waitcnt lgkmcnt(0)")
    a("s_cmp_eq_u32 s%d, 0" % sBLK)
    a("s_cselect_b32 s16, s16, s18")
    a("s_cselect_b32 s17, s17, s19")
    make_srd(a, S_B, 16, 4 << 20)
    a("s_lshl_b32 s%d, s%d, 23" % (sT0, sBLK))
    a("s_add_u32 s20, s36, s%d" % sT0)
    a("s_addc_u32 s21, s37, 0")
    make_srd(a, S_A, 20, 8 << 20)
    a("s_lshl_b32 s%d, s%d, 2" % (sT0, sBLK))
    a("s_add_u32 s%d, s%d, s%d" % (sT0, sT0, sKS))
    a("s_lshl_b32 s%d, s%d, 21" % (sT0, sT0))
    a("s_add_u32 s%d, s%d, 0x%x" % (sT0, sT0, P_WS_OFF))
    a("s_add_u32 s22, s36, s%d" % sT0)
    a("s_addc_u32 s23, s37, 0")
    make_srd(a, S_P, 22, 2 << 20)
    a("s_lshl_b32 s%d, s%d, 11" % (sABASE, sKS))
    a("s_lshl_b32 s%d, s%d, 20" % (sBBASE, sKS))
    a("v_lshrrev_b32 v%d, 3, v%d" % (t0, L))
    a("v_and_b32 v%d, 7, v%d" % (t1, L))
    a("v_lshrrev_b32 v%d, 1, v%d" % (t2, t0))
    a("s_lshl_b32 s%d, s%d, 7" % (sT0, sTM))
    a("s_lshl_b32 s%d, s%d, 4" % (sT1, sWAVE))
    a("s_add_u32 s%d, s%d, s%d" % (sT0, sT0, sT1))
    for i in range(2):
        a("v_add_u32 v%d, %d, v%d" % (t3, 4 * i, t2))
        a("v_xor_b32 v%d, v%d, v%d" % (t3, t3, t1))
        a("v_add_u32 v%d, s%d, v%d" % (t4, sT0, t0))
        a("v_add_u32 v%d, %d, v%d" % (t4, 8 * i, t4))
        a("v_lshlrev_b32 v%d, 13, v%d" % (t4, t4))
        a("v_lshl_add_u32 v%d, v%d, 4, v%d" % (vAOFF + i, t3, t4))
    a("v_lshrrev_b32 v%d, 4, v%d" % (t0, L))
    a("v_and_b32 v%d, 15, v%d" % (t1, L))
    a("v_lshlrev_b32 v%d, 2, v%d" % (t2, t0))
    a("v_xor_b32 v%d, v%d, v%d" % (t1, t1, t2))
    a("s_lshl_b32 s%d, s%d, 3" % (sT0, sWAVE))
    a("v_add_u32 v%d, s%d, v%d" % (t0, sT0, t0))
    a("v_lshlrev_b32 v%d, 10, v%d" % (t0, t0))
    a("v_lshl_add_u32 v%d, v%d, 4, v%d" % (t0, t1, t0))
    a("s_lshl_b32 s%d, s%d, 8" % (sT1, sTN))
    a("v_add_u32 v%d, s%d, v%d" % (vBOFF, sT1, t0))
    a("s_lshl_b32 s%d, s%d, 11" % (sM0A, sWAVE))
    a("s_lshl_b32 s%d, s%d, 11" % (sM0B, sWAVE))
    a("s_add_u32 s%d, s%d, 16384" % (sM0B, sM0B))
    a("v_and_b32 v%d, 31, v%d" % (t0, L))
    a("v_lshrrev_b32 v%d, 5, v%d" % (t1, L))
    a("v_lshrrev_b32 v%d, 1, v%d" % (t2, t0))
    a("v_and_b32 v%d, 7, v%d" % (t2, t2))
    a("s_lshl_b32 s%d, s%d, 6" % (sT0, sWM))
    a("v_add_u32 v%d, s%d, v%d" % (t3, sT0, t0))
    a("v_lshlrev_b32 v%d, 7, v%d" % (t3, t3))
    a("s_lshl_b32 s%d, s%d, 2" % (sT1, sG))
    for cc in range(2):
        a("v_add_u32 v%d, s%d, v%d" % (t4, sT1, t1))
        a("v_add_u32 v%d, %d, v%d" % (t4, 2 * cc, t4))
        a("v_xor_b32 v%d, v%d, v%d" % (t4, t4, t2))
        a("v_lshl_add_u32 v%d, v%d, 4, v%d" % (vAR + 2 * cc, t4, t3))
        a("v_add_u32 v%d, 4096, v%d" % (vAR + 2 * cc + 1, vAR + 2 * cc))
    a("v_lshrrev_b32 v%d, 4, v%d" % (t0, L))
    a("v_and_b32 v%d, 1, v%d" % (t1, t0))
    a("v_lshrrev_b32 v%d, 1, v%d" % (t0, t0))
    a("v_bfe_u32 v%d, v%d, 2, 2" % (t2, L))
    a("v_and_b32 v%d, 3, v%d" % (t3, L))
    a("v_lshlrev_b32 v%d, 3, v%d" % (t3, t3))
    a("v_lshl_add_u32 v%d, v%d, 5, v%d" % (t3, t1, t3))
    a("v_lshl_add_u32 v%d, v%d, 3, v%d" % (t4, t0, t2))
    a("s_lshl_b32 s%d, s%d, 5" % (sT0, sG))
    a("v_add_u32 v%d, s%d, v%d" % (t4, sT0, t4))
    a("v_lshl_add_u32 v%d, v%d, 8, v%d" % (t4, t4, t3))
    a("v_add_u32 v%d, 16384, v%d" % (t4, t4))
    a("s_lshl_b32 s%d, s%d, 1" % (sT1, sWN))
    for nt in range(2):
        a("v_add_u32 v%d, s%d, v%d" % (t5, sT1, t2)) if False else None
        a("s_add_u32 s%d, s%d, %d" % (sT2, sT1, nt))
        a("v_xor_b32 v%d, s%d, v%d" % (t1, sT2, t2))
        a("v_lshl_add_u32 v%d, v%d, 6, v%d" % (vBR + nt, t1, t4))
    for i in range(4):
        a("v_add_u32 v%d, 0x10000, v%d" % (vAR2 + i, vAR + i))
    for i in range(2):
        a("v_add_u32 v%d, 0x10000, v%d" % (vBR2 + i, vBR + i))
    for i in range(64):
        a("v_mov_b32 v%d, 0" % (vACC + i))

    NST = 16
    NB = 4

    def dma(stage):
        buf = stage % NB
        a("s_add_u32 s%d, s%d, %d" % (sAS, sABASE, stage * 128))
        for i in range(2):
            a("s_add_u32 m0, s%d, %d" % (sM0A, buf * 32768 + i * 1024))
            a("s_nop 0")
            a("buffer_load_dwordx4 v%d, %s, s%d offen lds" % (vAOFF + i, sr(S_A, 4), sAS))
        for j in range(2):
            a("s_add_u32 s%d, s%d, %d" % (sBS, sBBASE, stage * 65536 + j * 4096))
            a("s_add_u32 m0, s%d, %d" % (sM0B, buf * 32768 + j * 1024))
            a("s_nop 0")
            a("buffer_load_dwordx4 v%d, %s, s%d offen lds" % (vBOFF, sr(S_B, 4), sBS))

    def reads(stage, cc, st):
        buf = stage % NB
        ar = vAR2 if buf >= 2 else vAR
        br = vBR2 if buf >= 2 else vBR
        bo = (buf & 1) * 32768
        for mt in range(2):
            a("ds_read_b128 %s, v%d %s" % (vr(vA[st] + 4 * mt, 4), ar + 2 * cc + mt, ds_off(bo)))
        for nt in range(2):
            for p in range(2):
                a("ds_read_b64_tr_b16 %s, v%d %s" % (vr(vB[st] + 4 * nt + 2 * p, 2), br + nt, ds_off(bo + (16 * cc + 4 * p) * 256)))

    def mf(st, mt, nt, w):
        if w is not None:
            a("s_waitcnt lgkmcnt(%d)" % w)
        acc = vACC + 32 * mt + 16 * nt
        a("v_mfma_f32_32x32x16_bf16 %s, %s, %s, %s" % (vr(acc, 16), vr(vA[st] + 4 * mt, 4), vr(vB[st] + 4 * nt, 4), vr(acc, 16)))

    for s in range(NB - 1):
        dma(s)
    for s in range(NST):
        n = 4 * min(NB - 2, NST - 1 - s)
        a("s_waitcnt vmcnt(%d)" % n)
        a("s_barrier")
        reads(s, 0, 0)
        reads(s, 1, 1)
        if s + NB - 1 < NST:
            dma(s + NB - 1)
        mf(0, 0, 0, 8)
        mf(0, 1, 0, None)
        mf(0, 0, 1, 6)
        mf(0, 1, 1, None)
        mf(1, 0, 0, 2)
        mf(1, 1, 0, None)
        mf(1, 0, 1, 0)
        mf(1, 1, 1, None)
    a("s_barrier")
    a("v_lshlrev_b32 v%d, 4, v%d" % (t0, L))
    a("s_lshl_b32 s%d, s%d, 13" % (sT0, sWAVE))
    a("v_add_u32 v%d, s%d, v%d" % (t1, sT0, t0))
    a("s_xor_b32 s%d, s%d, 4" % (sT1, sWAVE))
    a("s_lshl_b32 s%d, s%d, 13" % (sT1, sT1))
    a("v_add_u32 v%d, s%d, v%d" % (t2, sT1, t0))
    a("s_nop 7")
    a("s_cmp_eq_u32 s%d, 0" % sG)
    a("s_cbranch_scc1 K2_G0W")
    for i in range(8):
        a("ds_write_b128 v%d, %s %s" % (t1, vr(vACC + 4 * i, 4), ds_off(1024 * i)))
    a("s_waitcnt lgkmcnt(0)")
    for i in range(32):
        a("v_mov_b32 v%d, v%d" % (vACC + i, vACC + 32 + i))
    a("s_branch K2_WD")
    a.label("K2_G0W")
    for i in range(8):
        a("ds_write_b128 v%d, %s %s" % (t1, vr(vACC + 32 + 4 * i, 4), ds_off(1024 * i)))
    a.label("K2_WD")
    a("s_waitcnt lgkmcnt(0)")
    a("s_barrier")
    for i in range(8):
        a("ds_read_b128 %s, v%d %s" % (vr(vACC + 32 + 4 * i, 4), t2, ds_off(1024 * i)))
    a("v_and_b32 v%d, 31, v%d" % (t3, L))
    a("v_lshrrev_b32 v%d, 5, v%d" % (t4, L))
    a("v_lshlrev_b32 v%d, 13, v%d" % (t4, t4))
    a("v_lshl_add_u32 v%d, v%d, 2, v%d" % (t3, t3, t4))
    a("s_lshl_b32 s%d, s%d, 7" % (sPB, sTM))
    a("s_lshl_b32 s%d, s%d, 6" % (sT0, sWM))
    a("s_add_u32 s%d, s%d, s%d" % (sPB, sPB, sT0))
    a("s_lshl_b32 s%d, s%d, 5" % (sT0, sG))
    a("s_add_u32 s%d, s%d, s%d" % (sPB, sPB, sT0))
    a("s_lshl_b32 s%d, s%d, 11" % (sPB, sPB))
    a("s_lshl_b32 s%d, s%d, 9" % (sT0, sTN))
    a("s_add_u32 s%d, s%d, s%d" % (sPB, sPB, sT0))
    a("s_lshl_b32 s%d, s%d, 8" % (sT0, sWN))
    a("s_add_u32 s%d, s%d, s%d" % (sPB, sPB, sT0))
    for i in range(8):
        a("s_waitcnt lgkmcnt(%d)" % (7 - i))
        for q in range(4):
            a("v_add_f32 v%d, v%d, v%d" % (vACC + 4 * i + q, vACC + 4 * i + q, vACC + 32 + 4 * i + q))
    for rq in range(4):
        a("s_add_u32 s%d, s%d, %d" % (sT0, sPB, rq * 8 * 2048))
        a("s_add_u32 s%d, s%d, %d" % (sT1, sPB, rq * 8 * 2048 + 4096))
        for nt in range(2):
            for rr in range(4):
                so = sT0 if rr < 2 else sT1
                a("buffer_store_dword v%d, v%d, %s, s%d offen %s" % (vACC + 16 * nt + 4 * rq + rr, t3, sr(S_P, 4), so, buf_off((rr & 1) * 2048 + nt * 128)))
    a.label("K2_DONE")
    a("s_endpgm")
    return kernel_desc(name, NV, 96)


def gen_k3(a):
    name = "k3_kernel"
    kernel_begin(a, name)
    a("s_cmp_ge_u32 s2, 256")
    a("s_cbranch_scc1 K3_DONE")
    a("s_load_dwordx2 s[4:5], s[0:1], 80")
    a("s_load_dwordx2 s[6:7], s[0:1], 96")
    a("s_lshl_b32 s3, s2, 8")
    a("v_add_u32 v1, s3, v0")
    a("s_waitcnt lgkmcnt(0)")
    a("s_add_u32 s6, s6, 0x%x" % P_WS_OFF)
    a("s_addc_u32 s7, s7, 0")
    make_srd(a, 8, 6, 16 << 20)
    make_srd(a, 12, 4, 2 << 20)
    a("v_lshlrev_b32 v2, 4, v1")
    for i in range(4):
        blk = i >> 1
        for ks in range(4):
            a("s_mov_b32 s%d, 0x%x" % (16 + 4 * i + ks, blk * (8 << 20) + ks * (2 << 20) + (i & 1) * (1 << 20)))
    for i in range(4):
        for ks in range(4):
            a("buffer_load_dwordx4 %s, v2, s[8:11], s%d offen" % (vr(8 + 16 * i + 4 * ks, 4), 16 + 4 * i + ks))
    a("v_lshrrev_b32 v3, 7, v1")
    a("v_lshlrev_b32 v3, 11, v3")
    a("v_and_b32 v4, 127, v1")
    a("v_lshl_add_u32 v3, v4, 3, v3")
    for i in range(4):
        a("s_waitcnt vmcnt(%d)" % (12 - 4 * i))
        b = 8 + 16 * i
        for q in range(4):
            a("v_add_f32 v%d, v%d, v%d" % (b + q, b + q, b + 4 + q))
            a("v_add_f32 v%d, v%d, v%d" % (b + 8 + q, b + 8 + q, b + 12 + q))
        for q in range(4):
            a("v_add_f32 v%d, v%d, v%d" % (b + q, b + q, b + 8 + q))
        a("v_cvt_pk_bf16_f32 v%d, v%d, v%d" % (b, b, b + 1))
        a("v_cvt_pk_bf16_f32 v%d, v%d, v%d" % (b + 1, b + 2, b + 3))
        a("s_mov_b32 s16, 0x%x" % ((i >> 1) * 1024 + (i & 1) * 512 * 2048))
        a("buffer_store_dwordx2 %s, v3, s[12:15], s16 offen" % vr(b, 2))
    a.label("K3_DONE")
    a("s_endpgm")
    return kernel_desc(name, 80, 40)


def main():
    a = Asm()
    launches = [("k1_kernel", 256, 512, K1_LDS), ("k2_kernel", 256, 512, K2_LDS), ("k3_kernel", 256, 256, 0)]
    hdr = HEADER
    for k, g, b, l in launches:
        hdr += "; @launch kernel=%s grid=(%d,1,1) block=(%d,1,1) lds=%d\n" % (k, g, b, l)
    a.raw('.amdgcn_target "amdgcn-amd-amdhsa--gfx950"')
    a.raw(".text")
    descs = []
    descs.append(gen_k1(a))
    descs.append(gen_k2(a))
    descs.append(gen_k3(a))
    a.raw('.section .rodata,"a"')
    for d in descs:
        a.raw(".p2align 6")
        a.raw(d)
    open(OUT, "w").write(hdr + a.text())


if __name__ == "__main__":
    main()
```

```python
import sys, os
EXP = os.environ.get("EXP", "")

NAME = "concat_heads__gqa_block_cached__mha_block_cached__near_ridge"
OUT = os.environ.get("OUT", "cdna_kernels/%s.s" % NAME)

HEADER = """; Kernarg layout for this problem (104 bytes, ptrs only, base s[0:1]):
"""


class Asm:
    def __init__(self):
        self.lines = []

    def __call__(self, s):
        self.lines.append("    " + s)

    def label(self, s):
        self.lines.append(s + ":")

    def raw(self, s):
        self.lines.append(s)

    def text(self):
        return "\n".join(self.lines) + "\n"


def vr(base, n):
    return "v[%d:%d]" % (base, base + n - 1)


def sr(base, n):
    return "s[%d:%d]" % (base, base + n - 1)


def buf_off(o):
    assert 0 <= o < 4096, o
    return "offset:%d" % o


def ds_off(o):
    assert 0 <= o < 65536, o
    return "offset:%d" % o


def kernel_begin(a, name):
    a.raw(".globl %s" % name)
    a.raw(".p2align 8")
    a.raw(".type %s,@function" % name)
    a.label(name)


def kernel_desc(name, vgpr, sgpr, accum=None):
    if accum is None:
        accum = (vgpr + 3) // 4 * 4
    return """.amdhsa_kernel %s
  .amdhsa_next_free_vgpr %d
  .amdhsa_next_free_sgpr %d
  .amdhsa_accum_offset %d
  .amdhsa_group_segment_fixed_size 0
  .amdhsa_kernarg_size 104
  .amdhsa_user_sgpr_count 2
  .amdhsa_user_sgpr_kernarg_segment_ptr 1
  .amdhsa_system_sgpr_workgroup_id_x 1
.end_amdhsa_kernel
""" % (name, vgpr, sgpr, accum)


def make_srd(a, d, base_lo, size):
    a("s_mov_b32 s%d, s%d" % (d, base_lo))
    a("s_and_b32 s%d, s%d, 0xffff" % (d + 1, base_lo + 1))
    a("s_mov_b32 s%d, 0x%x" % (d + 2, size))
    a("s_mov_b32 s%d, 0x00020000" % (d + 3))


STAMP = "stamp" in EXP
KVMOD = "" if "kvplain" in EXP else " sc0 sc1 nt"
WMOD = " nt" if "wnt" in EXP else ""
DMOD = "" if "dplain" in EXP else " nt"
NSTAMP = 16


def stamp(a, idx):
    if STAMP:
        assert idx < NSTAMP
        a("s_memtime s[98:99]")
        a("s_waitcnt lgkmcnt(0)")
        a("s_mov_b32 s%d, s98" % (82 + idx))


def stamp_init(a, vtid):
    if STAMP:
        a("v_mov_b32 v%d, v0" % vtid)
        for i in range(NSTAMP):
            a("s_mov_b32 s%d, 0" % (82 + i))


def stamp_dump(a, kidx, vtmp, vtid):
    if not STAMP:
        return
    a("s_load_dwordx2 s[4:5], s[0:1], 96")
    a("s_waitcnt lgkmcnt(0)")
    a("s_add_u32 s4, s4, 0x%x" % ((64 << 20) + kidx * 262144))
    a("s_addc_u32 s5, s5, 0")
    a("s_and_b32 s5, s5, 0xffff")
    a("s_mov_b32 s6, 262144")
    a("s_mov_b32 s7, 0x00020000")
    a("s_lshl_b32 s3, s2, 10")
    a("v_lshrrev_b32 v%d, 6, v%d" % (vtmp, vtid))
    a("v_lshlrev_b32 v%d, 6, v%d" % (vtmp, vtmp))
    a("v_add_u32 v%d, s3, v%d" % (vtmp, vtmp))
    a("v_and_b32 v%d, 63, v%d" % (vtid, vtid))
    a("v_cmp_eq_u32 vcc, 0, v%d" % vtid)
    a("s_and_saveexec_b64 s[8:9], vcc")
    for i in range(NSTAMP):
        a("v_mov_b32 v%d, s%d" % (vtmp + 1, 82 + i))
        a("buffer_store_dword v%d, v%d, s[4:7], 0 offen offset:%d" % (vtmp + 1, vtmp, 4 * i))
        a("s_nop 1")
    a("s_mov_b64 exec, s[8:9]")


O_WS_OFF = 0
P_WS_OFF = 16 << 20

K1_BUF = 24576
K1_NB = 6
K2_BUF = 32768
K2_NB = 5
F_LDS = 163840
SPIN_MAX = 200000
F_WS_OFF = 48 << 20
WOPF = [5, 7, 9, 11]


def gen_fused(a):
    name = "k12_kernel"
    kernel_begin(a, name)
    S_X, S_W, S_K, S_V, S_O = 40, 44, 48, 52, 56
    sWAVE, sBL, sHL, sBG, sH0, sB, sH = 60, 61, 62, 63, 64, 65, 66
    sKB, sKB2, sOB = 67, 68, 69
    sT0, sT1, sT2, sT3 = 70, 71, 72, 73
    sM0X, sM0W = 74, 75
    sXS, sWS = 76, 77
    sSCALE, sLOG2E = 78, 79
    sBLK, sHG, sHP = 80, 81, 39
    vACC = 0
    vKR = 64
    vVR = 96
    vA = [128, 144]
    vB = [160, 164]
    vXR = 168
    vWR = 174
    vVOFF = 187
    vXOFF = 188
    vWOFF = 189
    vT = 190
    vLANE = 200
    vTID = 201
    vJ = 204
    NV = 216
    L = vLANE
    t0, t1, t2, t3, t4 = vT, vT + 1, vT + 2, vT + 3, vT + 4
    NST = 16

    a("s_cmp_ge_u32 s2, 256")
    a("s_cbranch_scc1 F_DONE")
    stamp_init(a, vTID)
    stamp(a, 0)
    a("s_load_dwordx16 s[16:31], s[0:1], 0")
    a("s_load_dwordx8 s[32:39], s[0:1], 64")
    a("s_load_dwordx2 s[14:15], s[0:1], 96")
    a("v_lshrrev_b32 v%d, 6, v0" % vT)
    a("v_and_b32 v%d, 63, v0" % vLANE)
    a("s_nop 0")
    a("v_readfirstlane_b32 s%d, v%d" % (sWAVE, vT))
    a("s_and_b32 s%d, s2, 7" % sT0)
    a("s_lshr_b32 s%d, s2, 3" % sT1)
    a("s_lshr_b32 s%d, s%d, 2" % (sBG, sT1))
    a("s_and_b32 s%d, s%d, 3" % (sT1, sT1))
    a("s_and_b32 s%d, s%d, 3" % (sHG, sT0))
    a("s_lshl_b32 s%d, s%d, 3" % (sH0, sHG))
    a("s_lshl_b32 s%d, s%d, 1" % (sT2, sT1))
    a("s_add_u32 s%d, s%d, s%d" % (sH0, sH0, sT2))
    a("s_lshr_b32 s%d, s%d, 2" % (sBLK, sT0))
    a("s_mov_b32 s13, s%d" % sT1)
    a("v_lshrrev_b32 v%d, 2, v%d" % (t0, L))
    a("v_and_b32 v%d, 3, v%d" % (t1, L))
    a("v_lshrrev_b32 v%d, 4, v%d" % (t2, L))
    a("v_xor_b32 v%d, v%d, v%d" % (t1, t1, t2))
    a("s_lshl_b32 s%d, s%d, 7" % (sT0, sBG))
    a("s_lshl_b32 s%d, s%d, 4" % (sT1, sWAVE))
    a("s_add_u32 s%d, s%d, s%d" % (sT0, sT0, sT1))
    a("v_add_u32 v%d, s%d, v%d" % (t0, sT0, t0))
    a("v_lshlrev_b32 v%d, 10, v%d" % (t0, t0))
    a("v_lshl_add_u32 v%d, v%d, 4, v%d" % (vXOFF, t1, t0))
    a("s_lshl_b32 s%d, s%d, 10" % (sM0X, sWAVE))
    a("v_lshrrev_b32 v%d, 4, v%d" % (t0, L))
    a("v_and_b32 v%d, 15, v%d" % (t1, L))
    a("v_lshlrev_b32 v%d, 2, v%d" % (t2, t0))
    a("v_xor_b32 v%d, v%d, v%d" % (t1, t1, t2))
    a("s_lshr_b32 s%d, s%d, 1" % (sT0, sWAVE))
    a("s_lshl_b32 s%d, s%d, 3" % (sT0, sT0))
    a("v_add_u32 v%d, s%d, v%d" % (t0, sT0, t0))
    a("v_lshlrev_b32 v%d, 13, v%d" % (t0, t0))
    a("v_lshl_add_u32 v%d, v%d, 4, v%d" % (t0, t1, t0))
    a("s_and_b32 s%d, s%d, 1" % (sT1, sWAVE))
    a("s_add_u32 s%d, s%d, s%d" % (sT2, sH0, sT1))
    a("s_lshl_b32 s%d, s%d, 8" % (sT2, sT2))
    a("v_add_u32 v%d, s%d, v%d" % (vWOFF, sT2, t0))
    a("s_lshl_b32 s%d, s%d, 13" % (sM0W, sT1))
    a("s_lshl_b32 s%d, s%d, 8" % (sT0, sT0))
    a("s_add_u32 s%d, s%d, s%d" % (sM0W, sM0W, sT0))
    a("s_add_u32 s%d, s%d, 8192" % (sM0W, sM0W))
    a("s_waitcnt lgkmcnt(0)")
    a("s_cmp_eq_u32 s%d, 0" % sBLK)
    for i in range(5):
        a("s_cselect_b32 s%d, s%d, s%d" % (16 + 2 * i, 16 + 2 * i, 26 + 2 * i))
        a("s_cselect_b32 s%d, s%d, s%d" % (17 + 2 * i, 17 + 2 * i, 27 + 2 * i))
    a("s_mov_b32 s26, s36")
    a("s_mov_b32 s27, s37")
    a("s_mov_b32 s28, s38")
    a("s_mov_b32 s29, s39")
    a("s_mov_b32 s30, s14")
    a("s_mov_b32 s31, s15")
    a("s_mov_b32 s%d, s13" % sHP)
    make_srd(a, S_X, 16, 1 << 20)
    make_srd(a, S_W, 22, 4 << 20)
    vNON = 212
    sNT = 8

    def dma_x(stage):
        buf = stage % K1_NB
        a("s_mov_b32 s%d, %d" % (sXS, stage * 64))
        a("s_add_u32 m0, s%d, %d" % (sM0X, buf * K1_BUF))
        a("s_nop 0")
        a("buffer_load_dwordx4 v%d, %s, s%d offen%s lds" % (vXOFF, sr(S_X, 4), sXS, DMOD))

    def dma_w(stage, j):
        buf = stage % K1_NB
        a("s_mov_b32 s%d, %d" % (sWS, stage * 262144 + j * 32768))
        a("s_add_u32 m0, s%d, %d" % (sM0W, buf * K1_BUF + j * 1024))
        a("s_nop 0")
        a("buffer_load_dwordx4 v%d, %s, s%d offen%s lds" % (vWOFF, sr(S_W, 4), sWS, DMOD))

    NINIT = 2
    for s in range(NINIT):
        dma_x(s)
        dma_w(s, 0)
        dma_w(s, 1)
    make_srd(a, S_K, 18, 8 << 20)
    make_srd(a, S_V, 20, 8 << 20)
    a("s_lshl_b32 s%d, s%d, 23" % (sT0, sBLK))
    a("s_add_u32 s36, s30, s%d" % sT0)
    a("s_addc_u32 s37, s31, 0")
    make_srd(a, S_O, 36, 8 << 20)
    a("s_lshr_b32 s%d, s%d, 1" % (sBL, sWAVE))
    a("s_and_b32 s%d, s%d, 1" % (sHL, sWAVE))
    a("s_lshl_b32 s%d, s%d, 2" % (sB, sBG))
    a("s_add_u32 s%d, s%d, s%d" % (sB, sB, sBL))
    a("s_add_u32 s%d, s%d, s%d" % (sH, sH0, sHL))
    a("s_mov_b32 s%d, 0x3db504f3" % sSCALE)
    a("s_mov_b32 s%d, 0x3fb8aa3b" % sLOG2E)
    a("v_and_b32 v%d, 31, v%d" % (t0, L))
    a("v_lshrrev_b32 v%d, 5, v%d" % (t1, L))
    a("v_lshlrev_b32 v%d, 4, v%d" % (vVOFF, L))
    a("s_lshl_b32 s%d, s%d, 5" % (sKB, sB))
    a("s_add_u32 s%d, s%d, s%d" % (sKB, sKB, sH))
    a("s_lshl_b32 s%d, s%d, 13" % (sKB, sKB))
    a("s_add_u32 s%d, s%d, 4096" % (sKB2, sKB))

    def kv_load(idx):
        if idx < 8:
            a("buffer_load_dwordx4 %s, v%d, %s, s%d offen %s" % (vr(vKR + 4 * idx, 4), vVOFF, sr(S_K, 4), sKB if idx < 4 else sKB2, buf_off(1024 * (idx & 3))) + KVMOD)
        else:
            j = idx - 8
            a("buffer_load_dwordx4 %s, v%d, %s, s%d offen %s" % (vr(vVR + 4 * j, 4), vVOFF, sr(S_V, 4), sKB if j < 4 else sKB2, buf_off(1024 * (j & 3))) + KVMOD)

    a("v_bfe_u32 v%d, v%d, 2, 2" % (t2, t0))
    a("s_lshl_b32 s%d, s%d, 5" % (sT0, sBL))
    a("v_add_u32 v%d, s%d, v%d" % (t3, sT0, t0))
    a("v_lshlrev_b32 v%d, 6, v%d" % (t3, t3))
    for c in range(2):
        a("v_add_u32 v%d, %d, v%d" % (t4, 2 * c, t1))
        a("v_xor_b32 v%d, v%d, v%d" % (t4, t4, t2))
        a("v_lshl_add_u32 v%d, v%d, 4, v%d" % (vXR + c, t4, t3))
        for k in (1, 2):
            a("v_add_u32 v%d, %d, v%d" % (vXR + 2 * k + c, 2 * k * K1_BUF, vXR + c))
    a("v_lshrrev_b32 v%d, 4, v%d" % (t0, L))
    a("v_and_b32 v%d, 1, v%d" % (t1, t0))
    a("v_lshrrev_b32 v%d, 1, v%d" % (t0, t0))
    a("v_bfe_u32 v%d, v%d, 2, 2" % (t2, L))
    a("v_and_b32 v%d, 1, v%d" % (t3, L))
    a("v_bfe_u32 v%d, v%d, 1, 1" % (t4, L))
    a("v_lshl_add_u32 v%d, v%d, 1, v%d" % (t3, t3, t4))
    a("v_lshlrev_b32 v%d, 3, v%d" % (t3, t3))
    a("v_lshl_add_u32 v%d, v%d, 5, v%d" % (t3, t1, t3))
    a("v_lshl_add_u32 v%d, v%d, 3, v%d" % (t4, t0, t2))
    a("v_lshl_add_u32 v%d, v%d, 8, v%d" % (t4, t4, t3))
    a("s_lshl_b32 s%d, s%d, 13" % (sT0, sHL))
    a("s_add_u32 s%d, s%d, 8192" % (sT0, sT0))
    a("v_add_u32 v%d, s%d, v%d" % (t4, sT0, t4))
    for T in range(4):
        a("v_xor_b32 v%d, %d, v%d" % (t1, T, t2))
        a("v_lshl_add_u32 v%d, v%d, 6, v%d" % (vWR + T, t1, t4))
        for k in (1, 2):
            a("v_add_u32 v%d, %d, v%d" % (vWR + 4 * k + T, 2 * k * K1_BUF, vWR + T))
    for i in range(64):
        a("v_mov_b32 v%d, 0" % (vACC + i))

    def reads(stage, c, st):
        buf = stage % K1_NB
        third, bo = buf >> 1, (buf & 1) * K1_BUF
        a("ds_read_b128 %s, v%d %s" % (vr(vB[st], 4), vXR + 2 * third + c, ds_off(bo)))
        for T in range(4):
            for p in range(2):
                a("ds_read_b64_tr_b16 %s, v%d %s" % (vr(vA[st] + 4 * T + 2 * p, 2), vWR + 4 * third + T, ds_off(bo + (16 * c + 4 * p) * 256)))

    def mfma1(st, T, w):
        if w is not None:
            a("s_waitcnt lgkmcnt(%d)" % w)
        a("v_mfma_f32_32x32x16_bf16 %s, %s, %s, %s" % (vr(vACC + 16 * T, 16), vr(vA[st] + 4 * T, 4), vr(vB[st], 4), vr(vACC + 16 * T, 16)))

    make_srd(a, 4, 24, 4 << 20)
    a("s_lshr_b32 s%d, s2, 3" % sT0)
    a("s_lshl_b32 s%d, s%d, 5" % (sT0, sT0))
    a("s_lshl_b32 s%d, s%d, 2" % (sT1, sWAVE))
    a("s_add_u32 s%d, s%d, s%d" % (sT0, sT0, sT1))
    a("s_lshl_b32 s%d, s%d, 10" % (sT1, sHG))
    a("s_add_u32 s%d, s%d, s%d" % (sT0, sT0, sT1))
    a("s_lshl_b32 s9, s%d, 10" % sT0)
    stamp(a, 1)
    log = []
    for s in range(NINIT):
        log += [("d", s)] * 3
    D = K1_NB - 1
    nxt = NINIT
    for s in range(NST):
        idx = max([i for i, t in enumerate(log) if t == ("d", s)], default=-1)
        n = len(log) - 1 - idx
        a("s_waitcnt vmcnt(%d)" % min(n, 63))
        a("s_barrier")
        if s in (0, 8):
            stamp(a, {0: 2, 8: 3}[s])
        reads(s, 0, 0)
        todo = []
        while nxt < NST and nxt <= s + D and len(todo) < 2:
            todo.append(nxt)
            nxt += 1
        ops = []
        for t in todo:
            ops += [(dma_x, (t,)), (dma_w, (t, 0)), (dma_w, (t, 1))]
            log += [("d", t)] * 3
        if s > 0:
            for T in range(4):
                mfma1(1, T, None)
                k = (len(ops) + 3 - T) // (4 - T) if T < 3 else len(ops)
                for f, args in ops[:k]:
                    f(*args)
                ops = ops[k:]
        else:
            for f, args in ops:
                f(*args)
        a("s_waitcnt lgkmcnt(6)")
        reads(s, 1, 1)
        mfma1(0, 0, 15)
        kv_load(s)
        log.append(("kv", s))
        if s == 10:
            a("s_cmp_lg_u32 s%d, 0" % sWAVE)
            a("s_cbranch_scc1 F_NON_SKIP")
            make_srd(a, 12, 28, 256)
            a("s_memrealtime s[10:11]")
            a("s_waitcnt lgkmcnt(0)")
            a("s_or_b32 s%d, s10, 1" % sNT)
            a("v_mov_b32 v%d, s%d" % (vNON, sNT))
            a("v_mov_b32 v%d, 0" % (vNON + 1))
            a("v_mov_b32 v%d, 0" % (vNON + 2))
            a("v_cmp_eq_u32 vcc, 0, v%d" % L)
            a("s_and_saveexec_b64 s[10:11], vcc")
            a("buffer_atomic_cmpswap v[%d:%d], v%d, s[12:15], 0 offen sc0 sc1" % (vNON, vNON + 1, vNON + 2))
            a("s_mov_b64 exec, s[10:11]")
            a.label("F_NON_SKIP")


        mfma1(0, 1, 13)
        if "nowopf" not in EXP and s in WOPF:
            i = WOPF.index(s)
            a("buffer_load_dwordx4 %s, v%d, s[4:7], s9 offen %s" % (vr(vJ + 4 * (i & 1), 4), vVOFF, buf_off(i * 1024)))
            log.append(("wo", s))
        mfma1(0, 2, 11)
        mfma1(0, 3, 9)
        a("s_waitcnt lgkmcnt(0)")
    for T in range(4):
        mfma1(1, T, None)
    stamp(a, 4)
    a("s_barrier")
    a("s_waitcnt vmcnt(0)")
    stamp(a, 5)
    S_WO = 44
    make_srd(a, S_WO, 24, 4 << 20)
    u0, u1, u2, u3, u4 = vT + 5, vT + 6, vT + 7, vT + 8, vT + 9
    a("v_lshrrev_b32 v%d, 4, v%d" % (u0, L))
    a("v_and_b32 v%d, 15, v%d" % (u1, L))
    a("v_lshlrev_b32 v%d, 2, v%d" % (u2, u0))
    a("v_xor_b32 v%d, v%d, v%d" % (u1, u1, u2))
    a("v_lshlrev_b32 v%d, 8, v%d" % (u0, u0))
    a("v_lshl_add_u32 v%d, v%d, 4, v%d" % (u0, u1, u0))
    a("s_lshl_b32 s%d, s%d, 13" % (sT0, sWAVE))
    a("v_add_u32 v%d, s%d, v%d" % (u0, sT0, u0))
    a("v_lshrrev_b32 v%d, 4, v%d" % (u3, L))
    a("v_and_b32 v%d, 15, v%d" % (u4, L))
    a("v_xor_b32 v%d, v%d, v%d" % (u4, u4, u3))
    a("v_lshlrev_b32 v%d, 8, v%d" % (u3, u3))
    a("v_lshl_add_u32 v%d, v%d, 4, v%d" % (u3, u4, u3))
    a("v_add_u32 v%d, s%d, v%d" % (u3, sT0, u3))
    a("v_add_u32 v%d, 0x10000, v%d" % (u3, u3))
    for j in range(8):
        a("v_xor_b32 v%d, %d, v%d" % (u4, 64 * (j & 3), u3))
        a("ds_write_b128 v%d, %s %s" % (u4, vr(vKR + 4 * j, 4), ds_off(1024 * j)))
    for j in range(8):
        a("ds_write_b128 v%d, %s %s" % (u0, vr(vVR + 4 * j, 4), ds_off(1024 * j)))
    a("v_and_b32 v%d, 31, v%d" % (u1, L))
    a("v_lshrrev_b32 v%d, 5, v%d" % (u2, L))
    a("v_and_b32 v%d, 15, v%d" % (u4, u1))
    a("v_xor_b32 v%d, v%d, v%d" % (u4, u4, u2))
    a("v_lshlrev_b32 v%d, 8, v%d" % (u1, u1))
    a("v_lshl_add_u32 v%d, v%d, 4, v%d" % (u1, u4, u1))
    a("v_add_u32 v%d, s%d, v%d" % (u1, sT0, u1))
    a("v_add_u32 v%d, 0x10000, v%d" % (u1, u1))
    a("s_waitcnt lgkmcnt(7)")
    for jj in range(8):
        a("v_xor_b32 v%d, %d, v%d" % (u4, 32 * jj, u1))
        a("ds_read_b128 %s, v%d" % (vr(vKR + 4 * jj, 4), u4))
    a("v_lshl_add_u32 v%d, v%d, 2, v%d" % (t4, t0, t2))
    a("v_lshl_add_u32 v%d, v%d, 8, v%d" % (t4, t4, t3))
    a("v_add_u32 v%d, s%d, v%d" % (t4, sT0, t4))
    for T in range(4):
        a("v_xor_b32 v%d, %d, v%d" % (t1, T, t2))
        a("v_lshl_add_u32 v%d, v%d, 6, v%d" % (vWR + T, t1, t4))
    vQ = 128
    for i in range(32):
        a("v_cvt_pk_bf16_f32 v%d, v%d, v%d" % (vQ + i, vACC + 2 * i, vACC + 2 * i + 1))
    vS = 0
    for j in range(8):
        a("s_waitcnt lgkmcnt(%d)" % (7 - j))
        a("v_mfma_f32_32x32x16_bf16 %s, %s, %s, %s" % (vr(vS, 16), vr(vKR + 4 * j, 4), vr(vQ + 4 * j, 4), "0" if j == 0 else vr(vS, 16)))
    vVF = 32
    for T in range(4):
        for c2 in range(2):
            for p in range(2):
                a("ds_read_b64_tr_b16 %s, v%d %s" % (vr(vVF + 8 * T + 4 * c2 + 2 * p, 2), vWR + T, ds_off((16 * c2 + 8 * p) * 256)))
    vP = 16
    vE = 96
    for i in range(8):
        a("v_cvt_pk_bf16_f32 v%d, v%d, v%d" % (vP + i, vS + 2 * i, vS + 2 * i + 1))
    for i in range(8):
        a("v_lshlrev_b32 v%d, 16, v%d" % (vE + 2 * i, vP + i))
        a("v_and_b32 v%d, 0xffff0000, v%d" % (vE + 2 * i + 1, vP + i))
    for i in range(16):
        a("v_mul_f32 v%d, s%d, v%d" % (vE + i, sSCALE, vE + i))
    for i in range(8):
        a("v_cvt_pk_bf16_f32 v%d, v%d, v%d" % (vP + i, vE + 2 * i, vE + 2 * i + 1))
    for i in range(8):
        a("v_lshlrev_b32 v%d, 16, v%d" % (vE + 2 * i, vP + i))
        a("v_and_b32 v%d, 0xffff0000, v%d" % (vE + 2 * i + 1, vP + i))
    m0_, m1_ = t0, t1
    a("v_max3_f32 v%d, v%d, v%d, v%d" % (m0_, vE, vE + 1, vE + 2))
    for i in range(3, 15, 2):
        a("v_max3_f32 v%d, v%d, v%d, v%d" % (m0_, m0_, vE + i, vE + i + 1))
    a("v_max_f32 v%d, v%d, v%d" % (m0_, m0_, vE + 15))
    a("v_mov_b32 v%d, v%d" % (m1_, m0_))
    a("s_nop 1")
    a("v_permlane32_swap_b32 v%d, v%d" % (m0_, m1_))
    a("s_nop 1")
    a("v_max_f32 v%d, v%d, v%d" % (m0_, m0_, m1_))
    a("v_mul_f32 v%d, s%d, v%d" % (m0_, sLOG2E, m0_))
    for i in range(16):
        a("v_fma_f32 v%d, v%d, s%d, -v%d" % (vE + i, vE + i, sLOG2E, m0_))
    for i in range(16):
        a("v_exp_f32 v%d, v%d" % (vE + i, vE + i))
    a("s_nop 0")
    s0_, s1_ = t2, t3
    a("v_add_f32 v%d, v%d, v%d" % (s0_, vE, vE + 1))
    a("v_add_f32 v%d, v%d, v%d" % (s1_, vE + 2, vE + 3))
    for i in range(4, 16, 2):
        a("v_add_f32 v%d, v%d, v%d" % (s0_, s0_, vE + i))
        a("v_add_f32 v%d, v%d, v%d" % (s1_, s1_, vE + i + 1))
    a("v_add_f32 v%d, v%d, v%d" % (s0_, s0_, s1_))
    a("v_mov_b32 v%d, v%d" % (s1_, s0_))
    a("s_nop 1")
    a("v_permlane32_swap_b32 v%d, v%d" % (s0_, s1_))
    a("s_nop 1")
    a("v_add_f32 v%d, v%d, v%d" % (s0_, s0_, s1_))
    a("v_rcp_f32 v%d, v%d" % (s0_, s0_))
    a("s_nop 0")
    for i in range(16):
        a("v_mul_f32 v%d, v%d, v%d" % (vE + i, vE + i, s0_))
    for i in range(8):
        a("v_cvt_pk_bf16_f32 v%d, v%d, v%d" % (vP + i, vE + 2 * i, vE + 2 * i + 1))
    vO = 64
    a("s_waitcnt lgkmcnt(0)")
    a("s_nop 1")
    for T in range(4):
        for c2 in range(2):
            a("v_mfma_f32_32x32x16_bf16 %s, %s, %s, %s" % (vr(vO + 16 * T, 16), vr(vVF + 8 * T + 4 * c2, 4), vr(vP + 4 * c2, 4), "0" if c2 == 0 else vr(vO + 16 * T, 16)))
    a("v_lshrrev_b32 v%d, 4, v%d" % (t0, L))
    a("v_and_b32 v%d, 15, v%d" % (t1, L))
    a("v_lshlrev_b32 v%d, 13, v%d" % (t0, t0))
    a("v_lshl_add_u32 v%d, v%d, 4, v%d" % (t0, t1, t0))
    a("s_lshl_b32 s%d, s%d, 18" % (sOB, sB))
    a("s_lshl_b32 s%d, s%d, 8" % (sT0, sH))
    a("s_add_u32 s%d, s%d, s%d" % (sOB, sOB, sT0))
    a("s_nop 7")
    a("s_nop 3")
    vOP = 128
    for T in range(4):
        for jj in range(2):
            for i in range(4):
                a("v_cvt_pk_bf16_f32 v%d, v%d, v%d" % (vOP + 8 * T + 4 * jj + i, vO + 16 * T + 8 * jj + 2 * i, vO + 16 * T + 8 * jj + 2 * i + 1))
            a("v_xor_b32 v%d, %d, v%d" % (u4, 32 * (2 * T + jj), u1))
            a("ds_write_b128 v%d, %s" % (u4, vr(vOP + 8 * T + 4 * jj, 4)))
    a("s_waitcnt lgkmcnt(0)")
    for j in range(8):
        a("v_xor_b32 v%d, %d, v%d" % (u4, 64 * (j & 3), u3))
        a("ds_read_b128 %s, v%d %s" % (vr(vO + 4 * j, 4), u4, ds_off(1024 * j)))
    for j in range(8):
        a("s_add_u32 s%d, s%d, %d" % (sT0, sOB, j * 32768))
        a("s_waitcnt lgkmcnt(%d)" % (7 - j))
        a("buffer_store_dwordx4 %s, v%d, %s, s%d offen" % (vr(vO + 4 * j, 4), t0, sr(S_O, 4), sT0))
    stamp(a, 6)
    a("s_waitcnt vmcnt(0)")
    a("s_barrier")
    stamp(a, 7)

    S_A, S_B, S_P = S_O, S_WO, 52
    sG, sWM, sWN = 61, 62, 65
    sM0A, sM0B = 74, 75
    sAS, sBS = 76, 77
    sABASE, sBBASE = 78, 79
    sPB, sROT = 66, 64
    wA = [64, 72]
    wB = [80, 88]
    wAR = 96
    wBR = 108
    wAOFF = 114
    wBOFF = 116
    a("s_lshl_b32 s%d, s%d, 23" % (sT0, sBLK))
    a("s_add_u32 s%d, s%d, 0x%x" % (sT0, sT0, P_WS_OFF))
    a("s_add_u32 s36, s30, s%d" % sT0)
    a("s_addc_u32 s37, s31, 0")
    make_srd(a, S_P, 36, 8 << 20)
    a("s_lshr_b32 s%d, s%d, 2" % (sG, sWAVE))
    a("s_bfe_u32 s%d, s%d, 0x10001" % (sWM, sWAVE))
    a("s_and_b32 s%d, s%d, 1" % (sWN, sWAVE))
    a("s_lshr_b32 s%d, s2, 3" % sROT)
    a("s_lshl_b32 s%d, s%d, 11" % (sABASE, sHG))
    a("s_lshl_b32 s%d, s%d, 20" % (sBBASE, sHG))
    a("v_lshrrev_b32 v%d, 3, v%d" % (t0, L))
    a("v_and_b32 v%d, 7, v%d" % (t1, L))
    a("v_lshrrev_b32 v%d, 1, v%d" % (t2, t0))
    a("s_lshl_b32 s%d, s%d, 7" % (sT0, sBG))
    a("s_lshl_b32 s%d, s%d, 4" % (sT1, sWAVE))
    a("s_add_u32 s%d, s%d, s%d" % (sT0, sT0, sT1))
    for i in range(2):
        a("v_add_u32 v%d, %d, v%d" % (t3, 4 * i, t2))
        a("v_xor_b32 v%d, v%d, v%d" % (t3, t3, t1))
        a("v_add_u32 v%d, s%d, v%d" % (t4, sT0, t0))
        a("v_add_u32 v%d, %d, v%d" % (t4, 8 * i, t4))
        a("v_lshlrev_b32 v%d, 13, v%d" % (t4, t4))
        a("v_lshl_add_u32 v%d, v%d, 4, v%d" % (wAOFF + i, t3, t4))
    a("v_lshrrev_b32 v%d, 4, v%d" % (t0, L))
    a("v_and_b32 v%d, 15, v%d" % (t1, L))
    a("v_lshlrev_b32 v%d, 2, v%d" % (t2, t0))
    a("v_xor_b32 v%d, v%d, v%d" % (t1, t1, t2))
    a("s_lshl_b32 s%d, s%d, 3" % (sT0, sWAVE))
    a("v_add_u32 v%d, s%d, v%d" % (t0, sT0, t0))
    a("v_lshlrev_b32 v%d, 10, v%d" % (t0, t0))
    a("v_lshl_add_u32 v%d, v%d, 4, v%d" % (t0, t1, t0))
    a("s_lshl_b32 s%d, s%d, 8" % (sT1, sHP))
    a("v_add_u32 v%d, s%d, v%d" % (wBOFF, sT1, t0))
    a("s_lshl_b32 s%d, s%d, 11" % (sM0A, sWAVE))
    a("s_add_u32 s%d, s%d, 16384" % (sM0B, sM0A))

    def dma2_setup(stage):
        a("s_add_u32 s%d, s%d, %d" % (sT3, sROT, stage))
        a("s_and_b32 s%d, s%d, 15" % (sT3, sT3))
        a("s_lshl_b32 s%d, s%d, 7" % (sAS, sT3))
        a("s_add_u32 s%d, s%d, s%d" % (sAS, sAS, sABASE))
        a("s_lshl_b32 s%d, s%d, 16" % (sT3, sT3))
        a("s_add_u32 s%d, s%d, s%d" % (sT3, sT3, sBBASE))

    def dma2_a(stage, i):
        buf = stage % K2_NB
        a("s_add_u32 m0, s%d, %d" % (sM0A, buf * K2_BUF + i * 1024))
        a("s_nop 0")
        a("buffer_load_dwordx4 v%d, %s, s%d offen lds" % (wAOFF + i, sr(S_A, 4), sAS))

    def dma2_b(stage, j):
        buf = stage % K2_NB
        a("s_add_u32 s%d, s%d, %d" % (sBS, sT3, j * 4096))
        a("s_add_u32 m0, s%d, %d" % (sM0B, buf * K2_BUF + j * 1024))
        a("s_nop 0")
        a("buffer_load_dwordx4 v%d, %s, s%d offen lds" % (wBOFF, sr(S_B, 4), sBS))

    def dma2(stage):
        dma2_setup(stage)
        dma2_a(stage, 0)
        dma2_a(stage, 1)
        dma2_b(stage, 0)
        dma2_b(stage, 1)

    D2 = K2_NB - 1
    log2 = []
    for s in range(D2):
        dma2_setup(s)
        dma2_b(s, 0)
        dma2_b(s, 1)
        log2 += [("b", s)] * 2
    S_D = 48
    a("s_add_u32 s36, s30, 0x%x" % F_WS_OFF)
    a("s_addc_u32 s37, s31, 0")
    make_srd(a, S_D, 36, 8192)
    sG1, sCNT, sNON = 67, 69, 68
    sXCC = 12
    a("s_cmp_lg_u32 s%d, 0" % sWAVE)
    a("s_cbranch_scc1 F_S1_SKIP")
    a("v_readfirstlane_b32 s%d, v%d" % (sNON, vNON))
    a("s_and_b32 s%d, s2, 7" % sT0)
    a("s_lshl_b32 s%d, s%d, 3" % (sG1, sT0))
    a("s_add_u32 s%d, s%d, s%d" % (sG1, sG1, sBG))
    a("s_lshl_b32 s%d, s%d, 7" % (sG1, sG1))
    a("s_cmp_eq_u32 s%d, 0" % sNON)
    a("s_cselect_b32 s%d, s%d, s%d" % (sNON, sNT, sNON))
    a("s_getreg_b32 s%d, hwreg(HW_REG_XCC_ID)" % sXCC)
    a("s_and_b32 s%d, s%d, 7" % (sXCC, sXCC))

    def publish(base):
        a("s_lshl_b32 s%d, s%d, 3" % (sT0, sHP))
        a("s_add_u32 s%d, s%d, s%d" % (sT0, sT0, sG1))
        a("v_mov_b32 v%d, s%d" % (t0, sT0))
        a("v_mov_b32 v%d, s%d" % (t2, sNON))
        a("v_mov_b32 v%d, s%d" % (t3, sXCC))
        a("v_cmp_eq_u32 vcc, 0, v%d" % L)
        a("s_and_saveexec_b64 s[10:11], vcc")
        a("buffer_store_dwordx2 v[%d:%d], v%d, %s, 0 offen offset:%d sc0 sc1" % (t2, t3, t0, sr(S_D, 4), base))
        a("s_mov_b64 exec, s[10:11]")

    def waitall(tag, base):
        a("v_and_b32 v%d, 3, v%d" % (t0, L))
        a("v_lshlrev_b32 v%d, 3, v%d" % (t0, t0))
        a("v_add_u32 v%d, s%d, v%d" % (t0, sG1, t0))
        a("s_mov_b32 s%d, 0" % sCNT)
        a.label("%s_POLL" % tag)
        a("buffer_load_dwordx2 v[%d:%d], v%d, %s, 0 offen offset:%d sc0 sc1" % (t2, t3, t0, sr(S_D, 4), base))
        a("s_waitcnt vmcnt(0)")
        a("v_cmp_ne_u32 vcc, s%d, v%d" % (sNON, t2))
        a("s_nop 3")
        a("s_cmp_eq_u64 vcc, 0")
        a("s_cbranch_scc1 %s_OK" % tag)
        a("s_sleep 2")
        a("s_add_u32 s%d, s%d, 1" % (sCNT, sCNT))
        a("s_cmp_lt_u32 s%d, %d" % (sCNT, SPIN_MAX))
        a("s_cbranch_scc1 %s_POLL" % tag)
        a.label("%s_OK" % tag)

    publish(0)
    waitall("F_S1A", 0)
    a("v_cmp_ne_u32 vcc, s%d, v%d" % (sXCC, t3))
    a("s_nop 3")
    if "forceslow" not in EXP:
        a("s_cmp_eq_u64 vcc, 0")
        a("s_cbranch_scc1 F_S1_SKIP")
    a("buffer_wbl2 sc1")
    a("s_waitcnt vmcnt(0)")
    publish(64)
    waitall("F_S1B", 64)
    a("buffer_inv sc1")
    a("s_waitcnt vmcnt(0)")
    a.label("F_S1_SKIP")
    a("s_barrier")
    stamp(a, 8)

    for s in range(D2):
        dma2_setup(s)
        dma2_a(s, 0)
        dma2_a(s, 1)
        log2 += [("a", s)] * 2
    a("v_and_b32 v%d, 31, v%d" % (t0, L))
    a("v_lshrrev_b32 v%d, 5, v%d" % (t1, L))
    a("v_bfe_u32 v%d, v%d, 1, 3" % (t2, t0))
    a("s_lshl_b32 s%d, s%d, 6" % (sT0, sWM))
    a("v_add_u32 v%d, s%d, v%d" % (t3, sT0, t0))
    a("v_lshlrev_b32 v%d, 7, v%d" % (t3, t3))
    a("s_lshl_b32 s%d, s%d, 2" % (sT1, sG))
    for cc in range(2):
        a("v_add_u32 v%d, s%d, v%d" % (t4, sT1, t1))
        a("v_add_u32 v%d, %d, v%d" % (t4, 2 * cc, t4))
        a("v_xor_b32 v%d, v%d, v%d" % (t4, t4, t2))
        a("v_lshl_add_u32 v%d, v%d, 4, v%d" % (wAR + 2 * cc, t4, t3))
        a("v_add_u32 v%d, 4096, v%d" % (wAR + 2 * cc + 1, wAR + 2 * cc))
    a("v_lshrrev_b32 v%d, 4, v%d" % (t0, L))
    a("v_and_b32 v%d, 1, v%d" % (t1, t0))
    a("v_lshrrev_b32 v%d, 1, v%d" % (t0, t0))
    a("v_bfe_u32 v%d, v%d, 2, 2" % (t2, L))
    a("v_and_b32 v%d, 1, v%d" % (t3, L))
    a("v_bfe_u32 v%d, v%d, 1, 1" % (t4, L))
    a("v_lshl_add_u32 v%d, v%d, 1, v%d" % (t3, t3, t4))
    a("v_lshlrev_b32 v%d, 3, v%d" % (t3, t3))
    a("v_lshl_add_u32 v%d, v%d, 5, v%d" % (t3, t1, t3))
    a("v_lshl_add_u32 v%d, v%d, 3, v%d" % (t4, t0, t2))
    a("s_lshl_b32 s%d, s%d, 5" % (sT0, sG))
    a("v_add_u32 v%d, s%d, v%d" % (t4, sT0, t4))
    a("v_lshl_add_u32 v%d, v%d, 8, v%d" % (t4, t4, t3))
    a("v_add_u32 v%d, 16384, v%d" % (t4, t4))
    a("s_lshl_b32 s%d, s%d, 1" % (sT1, sWN))
    for nt in range(2):
        a("s_add_u32 s%d, s%d, %d" % (sT2, sT1, nt))
        a("v_xor_b32 v%d, s%d, v%d" % (t1, sT2, t2))
        a("v_lshl_add_u32 v%d, v%d, 6, v%d" % (wBR + nt, t1, t4))
    for k in (1, 2):
        for i in range(4):
            a("v_add_u32 v%d, 0x%x, v%d" % (wAR + 4 * k + i, k * 65536, wAR + i))
        for i in range(2):
            a("v_add_u32 v%d, 0x%x, v%d" % (wBR + 2 * k + i, k * 65536, wBR + i))
    for i in range(64):
        a("v_mov_b32 v%d, 0" % (vACC + i))

    def reads2(stage, cc, st):
        buf = stage % K2_NB
        k, bo = buf >> 1, (buf & 1) * K2_BUF
        for mt in range(2):
            a("ds_read_b128 %s, v%d %s" % (vr(wA[st] + 4 * mt, 4), wAR + 4 * k + 2 * cc + mt, ds_off(bo)))
        for nt in range(2):
            for p in range(2):
                a("ds_read_b64_tr_b16 %s, v%d %s" % (vr(wB[st] + 4 * nt + 2 * p, 2), wBR + 2 * k + nt, ds_off(bo + (16 * cc + 4 * p) * 256)))

    def mf(st, mt, nt, w):
        if w is not None:
            a("s_waitcnt lgkmcnt(%d)" % w)
        acc = vACC + 32 * mt + 16 * nt
        a("v_mfma_f32_32x32x16_bf16 %s, %s, %s, %s" % (vr(acc, 16), vr(wB[st] + 4 * nt, 4), vr(wA[st] + 4 * mt, 4), vr(acc, 16)))

    for s in range(NST):
        idx = max(i for i, t in enumerate(log2) if t in (("a", s), ("b", s)))
        a("s_waitcnt vmcnt(%d)" % (len(log2) - 1 - idx))
        a("s_barrier")
        if s == 0:
            stamp(a, 9)
        if s + D2 < NST:
            log2 += [("a", s + D2)] * 2 + [("b", s + D2)] * 2
        reads2(s, 0, 0)
        nx = s + D2
        if s > 0:
            mf(1, 0, 0, None)
            if nx < NST:
                dma2_setup(nx)
                dma2_a(nx, 0)
            mf(1, 1, 0, None)
            if nx < NST:
                dma2_a(nx, 1)
            mf(1, 0, 1, None)
            if nx < NST:
                dma2_b(nx, 0)
            mf(1, 1, 1, None)
            if nx < NST:
                dma2_b(nx, 1)
        elif nx < NST:
            dma2(nx)
        reads2(s, 1, 1)
        mf(0, 0, 0, 8)
        mf(0, 1, 0, None)
        mf(0, 0, 1, 6)
        mf(0, 1, 1, None)
        a("s_waitcnt lgkmcnt(0)")
    for mt, nt in ((0, 0), (1, 0), (0, 1), (1, 1)):
        mf(1, mt, nt, None)
    stamp(a, 10)
    a("s_barrier")
    RS = 528
    GS = 128 * RS
    a("v_and_b32 v%d, 31, v%d" % (t0, L))
    a("v_lshrrev_b32 v%d, 5, v%d" % (t1, L))
    a("s_lshl_b32 s%d, s%d, 6" % (sT0, sWM))
    a("v_add_u32 v%d, s%d, v%d" % (t0, sT0, t0))
    a("s_movk_i32 s%d, %d" % (sT1, RS))
    a("v_mul_lo_u32 v%d, v%d, s%d" % (t0, t0, sT1))
    a("v_lshl_add_u32 v%d, v%d, 5, v%d" % (t0, t1, t0))
    a("s_mul_i32 s%d, s%d, %d" % (sT0, sG, GS))
    a("s_lshl_b32 s%d, s%d, 8" % (sT1, sWN))
    a("s_add_u32 s%d, s%d, s%d" % (sT0, sT0, sT1))
    a("v_add_u32 v%d, s%d, v%d" % (t0, sT0, t0))
    a("s_nop 3")
    for mt in range(2):
        for nt in range(2):
            for jj in range(2):
                for qq in range(2):
                    a("ds_write_b128 v%d, %s %s" % (t0, vr(vACC + 32 * mt + 16 * nt + 8 * jj + 4 * qq, 4), ds_off(mt * 32 * RS + (nt * 32 + 16 * jj + 4 * qq) * 4)))
        a("s_waitcnt lgkmcnt(4)")
    a("s_waitcnt lgkmcnt(0)")
    a("s_barrier")
    a("v_lshrrev_b32 v%d, 5, v%d" % (t1, L))
    a("v_and_b32 v%d, 31, v%d" % (t2, L))
    a("s_lshl_b32 s%d, s%d, 4" % (sT0, sWAVE))
    a("v_add_u32 v%d, s%d, v%d" % (t3, sT0, t1))
    a("s_movk_i32 s%d, %d" % (sT1, RS))
    a("v_mul_lo_u32 v%d, v%d, s%d" % (t3, t3, sT1))
    a("v_lshl_add_u32 v%d, v%d, 4, v%d" % (t3, t2, t3))
    a("v_add_u32 v%d, 0x%x, v%d" % (t4, GS, t3))

    def rd(i):
        a("ds_read_b128 %s, v%d %s" % (vr(vACC + 4 * i, 4), t3, ds_off(2 * RS * i)))
        a("ds_read_b128 %s, v%d %s" % (vr(vACC + 32 + 4 * i, 4), t4, ds_off(2 * RS * i)))
    for i in range(6):
        rd(i)
    a("v_lshlrev_b32 v%d, 11, v%d" % (t1, t1))
    a("v_lshl_add_u32 v%d, v%d, 4, v%d" % (t1, t2, t1))
    a("s_lshl_b32 s%d, s%d, 7" % (sPB, sBG))
    a("s_add_u32 s%d, s%d, s%d" % (sPB, sPB, sT0))
    a("s_lshl_b32 s%d, s%d, 11" % (sPB, sPB))
    a("s_lshl_b32 s%d, s%d, 9" % (sT0, sHP))
    a("s_add_u32 s%d, s%d, s%d" % (sPB, sPB, sT0))
    a("s_lshl_b32 s%d, s%d, 21" % (sT0, sHG))
    a("s_add_u32 s%d, s%d, s%d" % (sPB, sPB, sT0))
    for i in range(8):
        a("s_waitcnt lgkmcnt(%d)" % (10 if i < 2 else 2 * (7 - i)))
        if i < 2:
            rd(6 + i)
        for q in range(4):
            a("v_add_f32 v%d, v%d, v%d" % (vACC + 4 * i + q, vACC + 4 * i + q, vACC + 32 + 4 * i + q))
        a("s_add_u32 s%d, s%d, %d" % (sT0, sPB, i * 4096))
        a("buffer_store_dwordx4 %s, v%d, %s, s%d offen" % (vr(vACC + 4 * i, 4), t1, sr(S_P, 4), sT0))
    if STAMP:
        stamp(a, 11)
        a("s_waitcnt vmcnt(0)")
        stamp(a, 12)
        stamp_dump(a, 0, 40, vTID)
    a.label("F_DONE")
    a("s_endpgm")
    return kernel_desc(name, NV, 100)


def gen_k3(a):
    name = "k3_kernel"
    kernel_begin(a, name)
    a("s_cmp_ge_u32 s2, %d" % (0 if "k3empty" in EXP else 256))
    a("s_cbranch_scc1 K3_DONE")
    a("s_load_dwordx2 s[4:5], s[0:1], 80")
    a("s_load_dwordx2 s[6:7], s[0:1], 96")
    a("s_lshl_b32 s3, s2, 8")
    a("v_add_u32 v1, s3, v0")
    a("s_waitcnt lgkmcnt(0)")
    a("s_add_u32 s6, s6, 0x%x" % P_WS_OFF)
    a("s_addc_u32 s7, s7, 0")
    make_srd(a, 8, 6, 16 << 20)
    make_srd(a, 12, 4, 2 << 20)
    a("v_lshlrev_b32 v2, 4, v1")
    for i in range(4):
        blk = i >> 1
        for ks in range(4):
            a("s_mov_b32 s%d, 0x%x" % (16 + 4 * i + ks, blk * (8 << 20) + ks * (2 << 20) + (i & 1) * (1 << 20)))
    for i in range(4):
        for ks in range(4):
            a("buffer_load_dwordx4 %s, v2, s[8:11], s%d offen" % (vr(8 + 16 * i + 4 * ks, 4), 16 + 4 * i + ks))
    a("v_lshrrev_b32 v3, 7, v1")
    a("v_lshlrev_b32 v3, 11, v3")
    a("v_and_b32 v4, 127, v1")
    a("v_lshl_add_u32 v3, v4, 3, v3")
    for i in range(4):
        a("s_waitcnt vmcnt(%d)" % (12 - 4 * i))
        b = 8 + 16 * i
        for q in range(4):
            a("v_add_f32 v%d, v%d, v%d" % (b + q, b + q, b + 4 + q))
            a("v_add_f32 v%d, v%d, v%d" % (b + 8 + q, b + 8 + q, b + 12 + q))
        for q in range(4):
            a("v_add_f32 v%d, v%d, v%d" % (b + q, b + q, b + 8 + q))
        a("v_cvt_pk_bf16_f32 v%d, v%d, v%d" % (b, b, b + 1))
        a("v_cvt_pk_bf16_f32 v%d, v%d, v%d" % (b + 1, b + 2, b + 3))
        a("s_mov_b32 s16, 0x%x" % ((i >> 1) * 1024 + (i & 1) * 512 * 2048))
        a("buffer_store_dwordx2 %s, v3, s[12:15], s16 offen" % vr(b, 2))
    a.label("K3_DONE")
    a("s_endpgm")
    return kernel_desc(name, 80, 40)


def main():
    a = Asm()
    launches = [("k12_kernel", 256, 512, F_LDS), ("k3_kernel", 256, 256, 0)]
    hdr = HEADER
    for k, g, b, l in launches:
        hdr += "; @launch kernel=%s grid=(%d,1,1) block=(%d,1,1) lds=%d\n" % (k, g, b, l)
    a.raw('.amdgcn_target "amdgcn-amd-amdhsa--gfx950"')
    a.raw(".text")
    descs = [gen_fused(a), gen_k3(a)]
    a.raw('.section .rodata,"a"')
    for d in descs:
        a.raw(".p2align 6")
        a.raw(d)
    open(OUT, "w").write(hdr + a.text())


if __name__ == "__main__":
    main()
```

```python
import sys, os
EXP = os.environ.get("EXP", "")

NAME = "concat_heads__gqa_block_cached__mha_block_cached__near_ridge"
OUT = os.environ.get("OUT", "cdna_kernels/%s.s" % NAME)

HEADER = """; Kernarg layout for this problem (104 bytes, ptrs only, base s[0:1]):
"""


class Asm:
    def __init__(self):
        self.lines = []

    def __call__(self, s):
        self.lines.append("    " + s)

    def label(self, s):
        self.lines.append(s + ":")

    def raw(self, s):
        self.lines.append(s)

    def text(self):
        return "\n".join(self.lines) + "\n"


def vr(base, n):
    return "v[%d:%d]" % (base, base + n - 1)


def sr(base, n):
    return "s[%d:%d]" % (base, base + n - 1)


def buf_off(o):
    assert 0 <= o < 4096, o
    return "offset:%d" % o


def ds_off(o):
    assert 0 <= o < 65536, o
    return "offset:%d" % o


def kernel_begin(a, name):
    a.raw(".globl %s" % name)
    a.raw(".p2align 8")
    a.raw(".type %s,@function" % name)
    a.label(name)


def kernel_desc(name, vgpr, sgpr, accum=None):
    if accum is None:
        accum = (vgpr + 3) // 4 * 4
    return """.amdhsa_kernel %s
  .amdhsa_next_free_vgpr %d
  .amdhsa_next_free_sgpr %d
  .amdhsa_accum_offset %d
  .amdhsa_group_segment_fixed_size 0
  .amdhsa_kernarg_size 104
  .amdhsa_user_sgpr_count 2
  .amdhsa_user_sgpr_kernarg_segment_ptr 1
  .amdhsa_system_sgpr_workgroup_id_x 1
.end_amdhsa_kernel
""" % (name, vgpr, sgpr, accum)


def make_srd(a, d, base_lo, size):
    a("s_mov_b32 s%d, s%d" % (d, base_lo))
    a("s_and_b32 s%d, s%d, 0xffff" % (d + 1, base_lo + 1))
    a("s_mov_b32 s%d, 0x%x" % (d + 2, size))
    a("s_mov_b32 s%d, 0x00020000" % (d + 3))


STAMP = "stamp" in EXP
KVMOD = "" if "kvplain" in EXP else " sc0 sc1 nt"
WMOD = " nt" if "wnt" in EXP else ""
DMOD = "" if "dplain" in EXP else " nt"
NSTAMP = 16


def stamp(a, idx):
    if STAMP:
        assert idx < NSTAMP
        a("s_memtime s[98:99]")
        a("s_waitcnt lgkmcnt(0)")
        a("s_mov_b32 s%d, s98" % (82 + idx))


def stamp_init(a, vtid):
    if STAMP:
        a("v_mov_b32 v%d, v0" % vtid)
        for i in range(NSTAMP):
            a("s_mov_b32 s%d, 0" % (82 + i))


def stamp_dump(a, kidx, vtmp, vtid):
    if not STAMP:
        return
    a("s_load_dwordx2 s[4:5], s[0:1], 96")
    a("s_waitcnt lgkmcnt(0)")
    a("s_add_u32 s4, s4, 0x%x" % ((64 << 20) + kidx * 262144))
    a("s_addc_u32 s5, s5, 0")
    a("s_and_b32 s5, s5, 0xffff")
    a("s_mov_b32 s6, 262144")
    a("s_mov_b32 s7, 0x00020000")
    a("s_lshl_b32 s3, s2, 10")
    a("v_lshrrev_b32 v%d, 6, v%d" % (vtmp, vtid))
    a("v_lshlrev_b32 v%d, 6, v%d" % (vtmp, vtmp))
    a("v_add_u32 v%d, s3, v%d" % (vtmp, vtmp))
    a("v_and_b32 v%d, 63, v%d" % (vtid, vtid))
    a("v_cmp_eq_u32 vcc, 0, v%d" % vtid)
    a("s_and_saveexec_b64 s[8:9], vcc")
    for i in range(NSTAMP):
        a("v_mov_b32 v%d, s%d" % (vtmp + 1, 82 + i))
        a("buffer_store_dword v%d, v%d, s[4:7], 0 offen offset:%d" % (vtmp + 1, vtmp, 4 * i))
        a("s_nop 1")
    a("s_mov_b64 exec, s[8:9]")


O_WS_OFF = 0
P_WS_OFF = 16 << 20

K1_BUF = 24576
K1_NB = 6
K2_BUF = 32768
K2_NB = 5
F_LDS = 163840
SPIN_MAX = 200000
F_WS_OFF = 48 << 20
WOPF = [5, 7, 9, 11]


def gen_fused(a):
    name = "k12_kernel"
    kernel_begin(a, name)
    S_X, S_W, S_K, S_V, S_O = 40, 44, 48, 52, 56
    sWAVE, sBL, sHL, sBG, sH0, sB, sH = 60, 61, 62, 63, 64, 65, 66
    sKB, sKB2, sOB = 67, 68, 69
    sT0, sT1, sT2, sT3 = 70, 71, 72, 73
    sM0X, sM0W = 74, 75
    sXS, sWS = 76, 77
    sSCALE, sLOG2E = 78, 79
    sBLK, sHG, sHP = 80, 81, 39
    vACC = 0
    vKR = 64
    vVR = 96
    vA = [128, 144]
    vB = [160, 164]
    vXR = 168
    vWR = 174
    vVOFF = 187
    vXOFF = 188
    vWOFF = 189
    vT = 190
    vLANE = 200
    vTID = 201
    vJ = 204
    NV = 216
    L = vLANE
    t0, t1, t2, t3, t4 = vT, vT + 1, vT + 2, vT + 3, vT + 4
    NST = 16

    a("s_cmp_ge_u32 s2, 256")
    a("s_cbranch_scc1 F_DONE")
    stamp_init(a, vTID)
    stamp(a, 0)
    a("s_load_dwordx16 s[16:31], s[0:1], 0")
    a("s_load_dwordx8 s[32:39], s[0:1], 64")
    a("s_load_dwordx2 s[14:15], s[0:1], 96")
    a("v_lshrrev_b32 v%d, 6, v0" % vT)
    a("v_and_b32 v%d, 63, v0" % vLANE)
    a("s_nop 0")
    a("v_readfirstlane_b32 s%d, v%d" % (sWAVE, vT))
    if "staticid" not in EXP:
        a("s_load_dwordx2 s[10:11], s[0:1], 88")
        a("s_getreg_b32 s12, hwreg(HW_REG_XCC_ID)")
        a("s_and_b32 s12, s12, 7")
        a("s_cmp_lg_u32 s%d, 0" % sWAVE)
        a("s_cbranch_scc1 F_TK_WAIT")
        a("s_waitcnt lgkmcnt(0)")
        make_srd(a, 4, 10, 256)
        a("s_lshl_b32 s13, s12, 2")
        a("v_mov_b32 v%d, s13" % (vT + 1))
        a("v_mov_b32 v%d, 1" % (vT + 2))
        a("v_mov_b32 v%d, 0" % (vT + 3))
        a("v_cmp_eq_u32 vcc, 0, v%d" % vLANE)
        a("s_and_saveexec_b64 s[8:9], vcc")
        a("buffer_atomic_add v%d, v%d, s[4:7], 0 offen sc0" % (vT + 2, vT + 1))
        a("s_waitcnt vmcnt(0)")
        a("ds_write_b32 v%d, v%d" % (vT + 3, vT + 2))
        a("s_mov_b64 exec, s[8:9]")
        a("s_waitcnt lgkmcnt(0)")
        a.label("F_TK_WAIT")
        a("s_barrier")
        a("v_mov_b32 v%d, 0" % (vT + 3))
        a("ds_read_b32 v%d, v%d" % (vT + 2, vT + 3))
        a("s_waitcnt lgkmcnt(0)")
        a("v_readfirstlane_b32 s13, v%d" % (vT + 2))
        a("s_nop 3")
        a("s_barrier")
        a("s_cmp_ge_u32 s13, 32")
        a("s_cbranch_scc1 F_DONE")
        a("s_lshl_b32 s13, s13, 3")
        a("s_add_u32 s2, s13, s12")
    a("s_and_b32 s%d, s2, 7" % sT0)
    a("s_lshr_b32 s%d, s2, 3" % sT1)
    a("s_lshr_b32 s%d, s%d, 2" % (sBG, sT1))
    a("s_and_b32 s%d, s%d, 3" % (sT1, sT1))
    a("s_and_b32 s%d, s%d, 3" % (sHG, sT0))
    a("s_lshl_b32 s%d, s%d, 3" % (sH0, sHG))
    a("s_lshl_b32 s%d, s%d, 1" % (sT2, sT1))
    a("s_add_u32 s%d, s%d, s%d" % (sH0, sH0, sT2))
    a("s_lshr_b32 s%d, s%d, 2" % (sBLK, sT0))
    a("s_mov_b32 s13, s%d" % sT1)
    a("v_lshrrev_b32 v%d, 2, v%d" % (t0, L))
    a("v_and_b32 v%d, 3, v%d" % (t1, L))
    a("v_lshrrev_b32 v%d, 4, v%d" % (t2, L))
    a("v_xor_b32 v%d, v%d, v%d" % (t1, t1, t2))
    a("s_lshl_b32 s%d, s%d, 7" % (sT0, sBG))
    a("s_lshl_b32 s%d, s%d, 4" % (sT1, sWAVE))
    a("s_add_u32 s%d, s%d, s%d" % (sT0, sT0, sT1))
    a("v_add_u32 v%d, s%d, v%d" % (t0, sT0, t0))
    a("v_lshlrev_b32 v%d, 10, v%d" % (t0, t0))
    a("v_lshl_add_u32 v%d, v%d, 4, v%d" % (vXOFF, t1, t0))
    a("s_lshl_b32 s%d, s%d, 10" % (sM0X, sWAVE))
    a("v_lshrrev_b32 v%d, 4, v%d" % (t0, L))
    a("v_and_b32 v%d, 15, v%d" % (t1, L))
    a("v_lshlrev_b32 v%d, 2, v%d" % (t2, t0))
    a("v_xor_b32 v%d, v%d, v%d" % (t1, t1, t2))
    a("s_lshr_b32 s%d, s%d, 1" % (sT0, sWAVE))
    a("s_lshl_b32 s%d, s%d, 3" % (sT0, sT0))
    a("v_add_u32 v%d, s%d, v%d" % (t0, sT0, t0))
    a("v_lshlrev_b32 v%d, 13, v%d" % (t0, t0))
    a("v_lshl_add_u32 v%d, v%d, 4, v%d" % (t0, t1, t0))
    a("s_and_b32 s%d, s%d, 1" % (sT1, sWAVE))
    a("s_add_u32 s%d, s%d, s%d" % (sT2, sH0, sT1))
    a("s_lshl_b32 s%d, s%d, 8" % (sT2, sT2))
    a("v_add_u32 v%d, s%d, v%d" % (vWOFF, sT2, t0))
    a("s_lshl_b32 s%d, s%d, 13" % (sM0W, sT1))
    a("s_lshl_b32 s%d, s%d, 8" % (sT0, sT0))
    a("s_add_u32 s%d, s%d, s%d" % (sM0W, sM0W, sT0))
    a("s_add_u32 s%d, s%d, 8192" % (sM0W, sM0W))
    a("s_waitcnt lgkmcnt(0)")
    a("s_cmp_eq_u32 s%d, 0" % sBLK)
    for i in range(5):
        a("s_cselect_b32 s%d, s%d, s%d" % (16 + 2 * i, 16 + 2 * i, 26 + 2 * i))
        a("s_cselect_b32 s%d, s%d, s%d" % (17 + 2 * i, 17 + 2 * i, 27 + 2 * i))
    a("s_mov_b32 s26, s36")
    a("s_mov_b32 s27, s37")
    a("s_mov_b32 s28, s38")
    a("s_mov_b32 s29, s39")
    a("s_mov_b32 s30, s14")
    a("s_mov_b32 s31, s15")
    a("s_mov_b32 s%d, s13" % sHP)
    make_srd(a, S_X, 16, 1 << 20)
    make_srd(a, S_W, 22, 4 << 20)
    vNON = 212
    sNT = 8

    def dma_x(stage):
        buf = stage % K1_NB
        a("s_mov_b32 s%d, %d" % (sXS, stage * 64))
        a("s_add_u32 m0, s%d, %d" % (sM0X, buf * K1_BUF))
        a("s_nop 0")
        a("buffer_load_dwordx4 v%d, %s, s%d offen%s lds" % (vXOFF, sr(S_X, 4), sXS, DMOD))

    def dma_w(stage, j):
        buf = stage % K1_NB
        a("s_mov_b32 s%d, %d" % (sWS, stage * 262144 + j * 32768))
        a("s_add_u32 m0, s%d, %d" % (sM0W, buf * K1_BUF + j * 1024))
        a("s_nop 0")
        a("buffer_load_dwordx4 v%d, %s, s%d offen%s lds" % (vWOFF, sr(S_W, 4), sWS, DMOD))

    NINIT = 2
    for s in range(NINIT):
        dma_x(s)
        dma_w(s, 0)
        dma_w(s, 1)
    make_srd(a, S_K, 18, 8 << 20)
    make_srd(a, S_V, 20, 8 << 20)
    a("s_lshl_b32 s%d, s%d, 23" % (sT0, sBLK))
    a("s_add_u32 s36, s30, s%d" % sT0)
    a("s_addc_u32 s37, s31, 0")
    make_srd(a, S_O, 36, 8 << 20)
    a("s_lshr_b32 s%d, s%d, 1" % (sBL, sWAVE))
    a("s_and_b32 s%d, s%d, 1" % (sHL, sWAVE))
    a("s_lshl_b32 s%d, s%d, 2" % (sB, sBG))
    a("s_add_u32 s%d, s%d, s%d" % (sB, sB, sBL))
    a("s_add_u32 s%d, s%d, s%d" % (sH, sH0, sHL))
    a("s_mov_b32 s%d, 0x3db504f3" % sSCALE)
    a("s_mov_b32 s%d, 0x3fb8aa3b" % sLOG2E)
    a("v_and_b32 v%d, 31, v%d" % (t0, L))
    a("v_lshrrev_b32 v%d, 5, v%d" % (t1, L))
    a("v_lshlrev_b32 v%d, 4, v%d" % (vVOFF, L))
    a("s_lshl_b32 s%d, s%d, 5" % (sKB, sB))
    a("s_add_u32 s%d, s%d, s%d" % (sKB, sKB, sH))
    a("s_lshl_b32 s%d, s%d, 13" % (sKB, sKB))
    a("s_add_u32 s%d, s%d, 4096" % (sKB2, sKB))

    def kv_load(idx):
        if idx < 8:
            a("buffer_load_dwordx4 %s, v%d, %s, s%d offen %s" % (vr(vKR + 4 * idx, 4), vVOFF, sr(S_K, 4), sKB if idx < 4 else sKB2, buf_off(1024 * (idx & 3))) + KVMOD)
        else:
            j = idx - 8
            a("buffer_load_dwordx4 %s, v%d, %s, s%d offen %s" % (vr(vVR + 4 * j, 4), vVOFF, sr(S_V, 4), sKB if j < 4 else sKB2, buf_off(1024 * (j & 3))) + KVMOD)

    a("v_bfe_u32 v%d, v%d, 2, 2" % (t2, t0))
    a("s_lshl_b32 s%d, s%d, 5" % (sT0, sBL))
    a("v_add_u32 v%d, s%d, v%d" % (t3, sT0, t0))
    a("v_lshlrev_b32 v%d, 6, v%d" % (t3, t3))
    for c in range(2):
        a("v_add_u32 v%d, %d, v%d" % (t4, 2 * c, t1))
        a("v_xor_b32 v%d, v%d, v%d" % (t4, t4, t2))
        a("v_lshl_add_u32 v%d, v%d, 4, v%d" % (vXR + c, t4, t3))
        for k in (1, 2):
            a("v_add_u32 v%d, %d, v%d" % (vXR + 2 * k + c, 2 * k * K1_BUF, vXR + c))
    a("v_lshrrev_b32 v%d, 4, v%d" % (t0, L))
    a("v_and_b32 v%d, 1, v%d" % (t1, t0))
    a("v_lshrrev_b32 v%d, 1, v%d" % (t0, t0))
    a("v_bfe_u32 v%d, v%d, 2, 2" % (t2, L))
    a("v_and_b32 v%d, 1, v%d" % (t3, L))
    a("v_bfe_u32 v%d, v%d, 1, 1" % (t4, L))
    a("v_lshl_add_u32 v%d, v%d, 1, v%d" % (t3, t3, t4))
    a("v_lshlrev_b32 v%d, 3, v%d" % (t3, t3))
    a("v_lshl_add_u32 v%d, v%d, 5, v%d" % (t3, t1, t3))
    a("v_lshl_add_u32 v%d, v%d, 3, v%d" % (t4, t0, t2))
    a("v_lshl_add_u32 v%d, v%d, 8, v%d" % (t4, t4, t3))
    a("s_lshl_b32 s%d, s%d, 13" % (sT0, sHL))
    a("s_add_u32 s%d, s%d, 8192" % (sT0, sT0))
    a("v_add_u32 v%d, s%d, v%d" % (t4, sT0, t4))
    for T in range(4):
        a("v_xor_b32 v%d, %d, v%d" % (t1, T, t2))
        a("v_lshl_add_u32 v%d, v%d, 6, v%d" % (vWR + T, t1, t4))
        for k in (1, 2):
            a("v_add_u32 v%d, %d, v%d" % (vWR + 4 * k + T, 2 * k * K1_BUF, vWR + T))
    for i in range(64):
        a("v_mov_b32 v%d, 0" % (vACC + i))

    def reads(stage, c, st):
        buf = stage % K1_NB
        third, bo = buf >> 1, (buf & 1) * K1_BUF
        a("ds_read_b128 %s, v%d %s" % (vr(vB[st], 4), vXR + 2 * third + c, ds_off(bo)))
        for T in range(4):
            for p in range(2):
                a("ds_read_b64_tr_b16 %s, v%d %s" % (vr(vA[st] + 4 * T + 2 * p, 2), vWR + 4 * third + T, ds_off(bo + (16 * c + 4 * p) * 256)))

    def mfma1(st, T, w):
        if w is not None:
            a("s_waitcnt lgkmcnt(%d)" % w)
        a("v_mfma_f32_32x32x16_bf16 %s, %s, %s, %s" % (vr(vACC + 16 * T, 16), vr(vA[st] + 4 * T, 4), vr(vB[st], 4), vr(vACC + 16 * T, 16)))

    make_srd(a, 4, 24, 4 << 20)
    a("s_lshr_b32 s%d, s2, 3" % sT0)
    a("s_lshl_b32 s%d, s%d, 5" % (sT0, sT0))
    a("s_lshl_b32 s%d, s%d, 2" % (sT1, sWAVE))
    a("s_add_u32 s%d, s%d, s%d" % (sT0, sT0, sT1))
    a("s_lshl_b32 s%d, s%d, 10" % (sT1, sHG))
    a("s_add_u32 s%d, s%d, s%d" % (sT0, sT0, sT1))
    a("s_lshl_b32 s9, s%d, 10" % sT0)
    stamp(a, 1)
    log = []
    for s in range(NINIT):
        log += [("d", s)] * 3
    D = K1_NB - 1
    nxt = NINIT
    for s in range(NST):
        idx = max([i for i, t in enumerate(log) if t == ("d", s)], default=-1)
        n = len(log) - 1 - idx
        a("s_waitcnt vmcnt(%d)" % min(n, 63))
        a("s_barrier")
        if s in (0, 8):
            stamp(a, {0: 2, 8: 3}[s])
        reads(s, 0, 0)
        todo = []
        while nxt < NST and nxt <= s + D and len(todo) < 2:
            todo.append(nxt)
            nxt += 1
        ops = []
        for t in todo:
            ops += [(dma_x, (t,)), (dma_w, (t, 0)), (dma_w, (t, 1))]
            log += [("d", t)] * 3
        if s > 0:
            for T in range(4):
                mfma1(1, T, None)
                k = (len(ops) + 3 - T) // (4 - T) if T < 3 else len(ops)
                for f, args in ops[:k]:
                    f(*args)
                ops = ops[k:]
        else:
            for f, args in ops:
                f(*args)
        a("s_waitcnt lgkmcnt(6)")
        reads(s, 1, 1)
        mfma1(0, 0, 15)
        kv_load(s)
        log.append(("kv", s))
        if s == 10:
            a("s_cmp_lg_u32 s%d, 0" % sWAVE)
            a("s_cbranch_scc1 F_NON_SKIP")
            make_srd(a, 12, 28, 256)
            a("s_memrealtime s[10:11]")
            a("s_waitcnt lgkmcnt(0)")
            a("s_or_b32 s%d, s10, 1" % sNT)
            a("v_mov_b32 v%d, s%d" % (vNON, sNT))
            a("v_mov_b32 v%d, 0" % (vNON + 1))
            a("v_mov_b32 v%d, 128" % (vNON + 2))
            a("v_cmp_eq_u32 vcc, 0, v%d" % L)
            a("s_and_saveexec_b64 s[10:11], vcc")
            a("buffer_atomic_cmpswap v[%d:%d], v%d, s[12:15], 0 offen sc0 sc1" % (vNON, vNON + 1, vNON + 2))
            a("s_mov_b64 exec, s[10:11]")
            a.label("F_NON_SKIP")


        mfma1(0, 1, 13)
        if "nowopf" not in EXP and s in WOPF:
            i = WOPF.index(s)
            a("buffer_load_dwordx4 %s, v%d, s[4:7], s9 offen %s" % (vr(vJ + 4 * (i & 1), 4), vVOFF, buf_off(i * 1024)))
            log.append(("wo", s))
        mfma1(0, 2, 11)
        mfma1(0, 3, 9)
        a("s_waitcnt lgkmcnt(0)")
    for T in range(4):
        mfma1(1, T, None)
    stamp(a, 4)
    a("s_barrier")
    a("s_waitcnt vmcnt(0)")
    stamp(a, 5)
    S_WO = 44
    make_srd(a, S_WO, 24, 4 << 20)
    u0, u1, u2, u3, u4 = vT + 5, vT + 6, vT + 7, vT + 8, vT + 9
    a("v_lshrrev_b32 v%d, 4, v%d" % (u0, L))
    a("v_and_b32 v%d, 15, v%d" % (u1, L))
    a("v_lshlrev_b32 v%d, 2, v%d" % (u2, u0))
    a("v_xor_b32 v%d, v%d, v%d" % (u1, u1, u2))
    a("v_lshlrev_b32 v%d, 8, v%d" % (u0, u0))
    a("v_lshl_add_u32 v%d, v%d, 4, v%d" % (u0, u1, u0))
    a("s_lshl_b32 s%d, s%d, 13" % (sT0, sWAVE))
    a("v_add_u32 v%d, s%d, v%d" % (u0, sT0, u0))
    a("v_lshrrev_b32 v%d, 4, v%d" % (u3, L))
    a("v_and_b32 v%d, 15, v%d" % (u4, L))
    a("v_xor_b32 v%d, v%d, v%d" % (u4, u4, u3))
    a("v_lshlrev_b32 v%d, 8, v%d" % (u3, u3))
    a("v_lshl_add_u32 v%d, v%d, 4, v%d" % (u3, u4, u3))
    a("v_add_u32 v%d, s%d, v%d" % (u3, sT0, u3))
    a("v_add_u32 v%d, 0x10000, v%d" % (u3, u3))
    for j in range(8):
        a("v_xor_b32 v%d, %d, v%d" % (u4, 64 * (j & 3), u3))
        a("ds_write_b128 v%d, %s %s" % (u4, vr(vKR + 4 * j, 4), ds_off(1024 * j)))
    for j in range(8):
        a("ds_write_b128 v%d, %s %s" % (u0, vr(vVR + 4 * j, 4), ds_off(1024 * j)))
    a("v_and_b32 v%d, 31, v%d" % (u1, L))
    a("v_lshrrev_b32 v%d, 5, v%d" % (u2, L))
    a("v_and_b32 v%d, 15, v%d" % (u4, u1))
    a("v_xor_b32 v%d, v%d, v%d" % (u4, u4, u2))
    a("v_lshlrev_b32 v%d, 8, v%d" % (u1, u1))
    a("v_lshl_add_u32 v%d, v%d, 4, v%d" % (u1, u4, u1))
    a("v_add_u32 v%d, s%d, v%d" % (u1, sT0, u1))
    a("v_add_u32 v%d, 0x10000, v%d" % (u1, u1))
    a("s_waitcnt lgkmcnt(7)")
    for jj in range(8):
        a("v_xor_b32 v%d, %d, v%d" % (u4, 32 * jj, u1))
        a("ds_read_b128 %s, v%d" % (vr(vKR + 4 * jj, 4), u4))
    a("v_lshl_add_u32 v%d, v%d, 2, v%d" % (t4, t0, t2))
    a("v_lshl_add_u32 v%d, v%d, 8, v%d" % (t4, t4, t3))
    a("v_add_u32 v%d, s%d, v%d" % (t4, sT0, t4))
    for T in range(4):
        a("v_xor_b32 v%d, %d, v%d" % (t1, T, t2))
        a("v_lshl_add_u32 v%d, v%d, 6, v%d" % (vWR + T, t1, t4))
    vQ = 128
    for i in range(32):
        a("v_cvt_pk_bf16_f32 v%d, v%d, v%d" % (vQ + i, vACC + 2 * i, vACC + 2 * i + 1))
    vS = 0
    for j in range(8):
        a("s_waitcnt lgkmcnt(%d)" % (7 - j))
        a("v_mfma_f32_32x32x16_bf16 %s, %s, %s, %s" % (vr(vS, 16), vr(vKR + 4 * j, 4), vr(vQ + 4 * j, 4), "0" if j == 0 else vr(vS, 16)))
    vVF = 32
    for T in range(4):
        for c2 in range(2):
            for p in range(2):
                a("ds_read_b64_tr_b16 %s, v%d %s" % (vr(vVF + 8 * T + 4 * c2 + 2 * p, 2), vWR + T, ds_off((16 * c2 + 8 * p) * 256)))
    vP = 16
    vE = 96
    for i in range(8):
        a("v_cvt_pk_bf16_f32 v%d, v%d, v%d" % (vP + i, vS + 2 * i, vS + 2 * i + 1))
    for i in range(8):
        a("v_lshlrev_b32 v%d, 16, v%d" % (vE + 2 * i, vP + i))
        a("v_and_b32 v%d, 0xffff0000, v%d" % (vE + 2 * i + 1, vP + i))
    for i in range(16):
        a("v_mul_f32 v%d, s%d, v%d" % (vE + i, sSCALE, vE + i))
    for i in range(8):
        a("v_cvt_pk_bf16_f32 v%d, v%d, v%d" % (vP + i, vE + 2 * i, vE + 2 * i + 1))
    for i in range(8):
        a("v_lshlrev_b32 v%d, 16, v%d" % (vE + 2 * i, vP + i))
        a("v_and_b32 v%d, 0xffff0000, v%d" % (vE + 2 * i + 1, vP + i))
    m0_, m1_ = t0, t1
    a("v_max3_f32 v%d, v%d, v%d, v%d" % (m0_, vE, vE + 1, vE + 2))
    for i in range(3, 15, 2):
        a("v_max3_f32 v%d, v%d, v%d, v%d" % (m0_, m0_, vE + i, vE + i + 1))
    a("v_max_f32 v%d, v%d, v%d" % (m0_, m0_, vE + 15))
    a("v_mov_b32 v%d, v%d" % (m1_, m0_))
    a("s_nop 1")
    a("v_permlane32_swap_b32 v%d, v%d" % (m0_, m1_))
    a("s_nop 1")
    a("v_max_f32 v%d, v%d, v%d" % (m0_, m0_, m1_))
    a("v_mul_f32 v%d, s%d, v%d" % (m0_, sLOG2E, m0_))
    for i in range(16):
        a("v_fma_f32 v%d, v%d, s%d, -v%d" % (vE + i, vE + i, sLOG2E, m0_))
    for i in range(16):
        a("v_exp_f32 v%d, v%d" % (vE + i, vE + i))
    a("s_nop 0")
    s0_, s1_ = t2, t3
    a("v_add_f32 v%d, v%d, v%d" % (s0_, vE, vE + 1))
    a("v_add_f32 v%d, v%d, v%d" % (s1_, vE + 2, vE + 3))
    for i in range(4, 16, 2):
        a("v_add_f32 v%d, v%d, v%d" % (s0_, s0_, vE + i))
        a("v_add_f32 v%d, v%d, v%d" % (s1_, s1_, vE + i + 1))
    a("v_add_f32 v%d, v%d, v%d" % (s0_, s0_, s1_))
    a("v_mov_b32 v%d, v%d" % (s1_, s0_))
    a("s_nop 1")
    a("v_permlane32_swap_b32 v%d, v%d" % (s0_, s1_))
    a("s_nop 1")
    a("v_add_f32 v%d, v%d, v%d" % (s0_, s0_, s1_))
    a("v_rcp_f32 v%d, v%d" % (s0_, s0_))
    a("s_nop 0")
    for i in range(16):
        a("v_mul_f32 v%d, v%d, v%d" % (vE + i, vE + i, s0_))
    for i in range(8):
        a("v_cvt_pk_bf16_f32 v%d, v%d, v%d" % (vP + i, vE + 2 * i, vE + 2 * i + 1))
    vO = 64
    a("s_waitcnt lgkmcnt(0)")
    a("s_nop 1")
    for T in range(4):
        for c2 in range(2):
            a("v_mfma_f32_32x32x16_bf16 %s, %s, %s, %s" % (vr(vO + 16 * T, 16), vr(vVF + 8 * T + 4 * c2, 4), vr(vP + 4 * c2, 4), "0" if c2 == 0 else vr(vO + 16 * T, 16)))
    a("v_lshrrev_b32 v%d, 4, v%d" % (t0, L))
    a("v_and_b32 v%d, 15, v%d" % (t1, L))
    a("v_lshlrev_b32 v%d, 13, v%d" % (t0, t0))
    a("v_lshl_add_u32 v%d, v%d, 4, v%d" % (t0, t1, t0))
    a("s_lshl_b32 s%d, s%d, 18" % (sOB, sB))
    a("s_lshl_b32 s%d, s%d, 8" % (sT0, sH))
    a("s_add_u32 s%d, s%d, s%d" % (sOB, sOB, sT0))
    a("s_nop 7")
    a("s_nop 3")
    vOP = 128
    for T in range(4):
        for jj in range(2):
            for i in range(4):
                a("v_cvt_pk_bf16_f32 v%d, v%d, v%d" % (vOP + 8 * T + 4 * jj + i, vO + 16 * T + 8 * jj + 2 * i, vO + 16 * T + 8 * jj + 2 * i + 1))
            a("v_xor_b32 v%d, %d, v%d" % (u4, 32 * (2 * T + jj), u1))
            a("ds_write_b128 v%d, %s" % (u4, vr(vOP + 8 * T + 4 * jj, 4)))
    a("s_waitcnt lgkmcnt(0)")
    for j in range(8):
        a("v_xor_b32 v%d, %d, v%d" % (u4, 64 * (j & 3), u3))
        a("ds_read_b128 %s, v%d %s" % (vr(vO + 4 * j, 4), u4, ds_off(1024 * j)))
    for j in range(8):
        a("s_add_u32 s%d, s%d, %d" % (sT0, sOB, j * 32768))
        a("s_waitcnt lgkmcnt(%d)" % (7 - j))
        a("buffer_store_dwordx4 %s, v%d, %s, s%d offen" % (vr(vO + 4 * j, 4), t0, sr(S_O, 4), sT0))
    stamp(a, 6)
    a("s_waitcnt vmcnt(0)")
    a("s_barrier")
    stamp(a, 7)

    S_A, S_B, S_P = S_O, S_WO, 52
    sG, sWM, sWN = 61, 62, 65
    sM0A, sM0B = 74, 75
    sAS, sBS = 76, 77
    sABASE, sBBASE = 78, 79
    sPB, sROT = 66, 64
    wA = [64, 72]
    wB = [80, 88]
    wAR = 96
    wBR = 108
    wAOFF = 114
    wBOFF = 116
    a("s_lshl_b32 s%d, s%d, 23" % (sT0, sBLK))
    a("s_add_u32 s%d, s%d, 0x%x" % (sT0, sT0, P_WS_OFF))
    a("s_add_u32 s36, s30, s%d" % sT0)
    a("s_addc_u32 s37, s31, 0")
    make_srd(a, S_P, 36, 8 << 20)
    a("s_lshr_b32 s%d, s%d, 2" % (sG, sWAVE))
    a("s_bfe_u32 s%d, s%d, 0x10001" % (sWM, sWAVE))
    a("s_and_b32 s%d, s%d, 1" % (sWN, sWAVE))
    a("s_lshr_b32 s%d, s2, 3" % sROT)
    a("s_lshl_b32 s%d, s%d, 11" % (sABASE, sHG))
    a("s_lshl_b32 s%d, s%d, 20" % (sBBASE, sHG))
    a("v_lshrrev_b32 v%d, 3, v%d" % (t0, L))
    a("v_and_b32 v%d, 7, v%d" % (t1, L))
    a("v_lshrrev_b32 v%d, 1, v%d" % (t2, t0))
    a("s_lshl_b32 s%d, s%d, 7" % (sT0, sBG))
    a("s_lshl_b32 s%d, s%d, 4" % (sT1, sWAVE))
    a("s_add_u32 s%d, s%d, s%d" % (sT0, sT0, sT1))
    for i in range(2):
        a("v_add_u32 v%d, %d, v%d" % (t3, 4 * i, t2))
        a("v_xor_b32 v%d, v%d, v%d" % (t3, t3, t1))
        a("v_add_u32 v%d, s%d, v%d" % (t4, sT0, t0))
        a("v_add_u32 v%d, %d, v%d" % (t4, 8 * i, t4))
        a("v_lshlrev_b32 v%d, 13, v%d" % (t4, t4))
        a("v_lshl_add_u32 v%d, v%d, 4, v%d" % (wAOFF + i, t3, t4))
    a("v_lshrrev_b32 v%d, 4, v%d" % (t0, L))
    a("v_and_b32 v%d, 15, v%d" % (t1, L))
    a("v_lshlrev_b32 v%d, 2, v%d" % (t2, t0))
    a("v_xor_b32 v%d, v%d, v%d" % (t1, t1, t2))
    a("s_lshl_b32 s%d, s%d, 3" % (sT0, sWAVE))
    a("v_add_u32 v%d, s%d, v%d" % (t0, sT0, t0))
    a("v_lshlrev_b32 v%d, 10, v%d" % (t0, t0))
    a("v_lshl_add_u32 v%d, v%d, 4, v%d" % (t0, t1, t0))
    a("s_lshl_b32 s%d, s%d, 8" % (sT1, sHP))
    a("v_add_u32 v%d, s%d, v%d" % (wBOFF, sT1, t0))
    a("s_lshl_b32 s%d, s%d, 11" % (sM0A, sWAVE))
    a("s_add_u32 s%d, s%d, 16384" % (sM0B, sM0A))

    def dma2_setup(stage):
        a("s_add_u32 s%d, s%d, %d" % (sT3, sROT, stage))
        a("s_and_b32 s%d, s%d, 15" % (sT3, sT3))
        a("s_lshl_b32 s%d, s%d, 7" % (sAS, sT3))
        a("s_add_u32 s%d, s%d, s%d" % (sAS, sAS, sABASE))
        a("s_lshl_b32 s%d, s%d, 16" % (sT3, sT3))
        a("s_add_u32 s%d, s%d, s%d" % (sT3, sT3, sBBASE))

    def dma2_a(stage, i):
        buf = stage % K2_NB
        a("s_add_u32 m0, s%d, %d" % (sM0A, buf * K2_BUF + i * 1024))
        a("s_nop 0")
        a("buffer_load_dwordx4 v%d, %s, s%d offen lds" % (wAOFF + i, sr(S_A, 4), sAS))

    def dma2_b(stage, j):
        buf = stage % K2_NB
        a("s_add_u32 s%d, s%d, %d" % (sBS, sT3, j * 4096))
        a("s_add_u32 m0, s%d, %d" % (sM0B, buf * K2_BUF + j * 1024))
        a("s_nop 0")
        a("buffer_load_dwordx4 v%d, %s, s%d offen lds" % (wBOFF, sr(S_B, 4), sBS))

    def dma2(stage):
        dma2_setup(stage)
        dma2_a(stage, 0)
        dma2_a(stage, 1)
        dma2_b(stage, 0)
        dma2_b(stage, 1)

    D2 = K2_NB - 1
    log2 = []
    for s in range(D2):
        dma2_setup(s)
        dma2_b(s, 0)
        dma2_b(s, 1)
        log2 += [("b", s)] * 2
    S_D = 48
    a("s_add_u32 s36, s30, 0x%x" % F_WS_OFF)
    a("s_addc_u32 s37, s31, 0")
    make_srd(a, S_D, 36, 8192)
    sG1, sCNT, sNON = 67, 69, 68
    sXCC = 12
    a("s_cmp_lg_u32 s%d, 0" % sWAVE)
    a("s_cbranch_scc1 F_S1_SKIP")
    a("v_readfirstlane_b32 s%d, v%d" % (sNON, vNON))
    a("s_and_b32 s%d, s2, 7" % sT0)
    a("s_lshl_b32 s%d, s%d, 3" % (sG1, sT0))
    a("s_add_u32 s%d, s%d, s%d" % (sG1, sG1, sBG))
    a("s_lshl_b32 s%d, s%d, 7" % (sG1, sG1))
    a("s_cmp_eq_u32 s%d, 0" % sNON)
    a("s_cselect_b32 s%d, s%d, s%d" % (sNON, sNT, sNON))
    a("s_getreg_b32 s%d, hwreg(HW_REG_XCC_ID)" % sXCC)
    a("s_and_b32 s%d, s%d, 7" % (sXCC, sXCC))

    def publish(base):
        a("s_lshl_b32 s%d, s%d, 3" % (sT0, sHP))
        a("s_add_u32 s%d, s%d, s%d" % (sT0, sT0, sG1))
        a("v_mov_b32 v%d, s%d" % (t0, sT0))
        a("v_mov_b32 v%d, s%d" % (t2, sNON))
        a("v_mov_b32 v%d, s%d" % (t3, sXCC))
        a("v_cmp_eq_u32 vcc, 0, v%d" % L)
        a("s_and_saveexec_b64 s[10:11], vcc")
        a("buffer_store_dwordx2 v[%d:%d], v%d, %s, 0 offen offset:%d sc0 sc1" % (t2, t3, t0, sr(S_D, 4), base))
        a("s_mov_b64 exec, s[10:11]")

    def waitall(tag, base):
        a("v_and_b32 v%d, 3, v%d" % (t0, L))
        a("v_lshlrev_b32 v%d, 3, v%d" % (t0, t0))
        a("v_add_u32 v%d, s%d, v%d" % (t0, sG1, t0))
        a("s_mov_b32 s%d, 0" % sCNT)
        a.label("%s_POLL" % tag)
        a("buffer_load_dwordx2 v[%d:%d], v%d, %s, 0 offen offset:%d sc0 sc1" % (t2, t3, t0, sr(S_D, 4), base))
        a("s_waitcnt vmcnt(0)")
        a("v_cmp_ne_u32 vcc, s%d, v%d" % (sNON, t2))
        a("s_nop 3")
        a("s_cmp_eq_u64 vcc, 0")
        a("s_cbranch_scc1 %s_OK" % tag)
        a("s_sleep 2")
        a("s_add_u32 s%d, s%d, 1" % (sCNT, sCNT))
        a("s_cmp_lt_u32 s%d, %d" % (sCNT, SPIN_MAX))
        a("s_cbranch_scc1 %s_POLL" % tag)
        a.label("%s_OK" % tag)

    publish(0)
    waitall("F_S1A", 0)
    a("v_cmp_ne_u32 vcc, s%d, v%d" % (sXCC, t3))
    a("s_nop 3")
    if "forceslow" not in EXP:
        a("s_cmp_eq_u64 vcc, 0")
        a("s_cbranch_scc1 F_S1_SKIP")
    a("buffer_wbl2 sc1")
    a("s_waitcnt vmcnt(0)")
    publish(64)
    waitall("F_S1B", 64)
    a("buffer_inv sc1")
    a("s_waitcnt vmcnt(0)")
    a.label("F_S1_SKIP")
    a("s_barrier")
    stamp(a, 8)

    for s in range(D2):
        dma2_setup(s)
        dma2_a(s, 0)
        dma2_a(s, 1)
        log2 += [("a", s)] * 2
    a("v_and_b32 v%d, 31, v%d" % (t0, L))
    a("v_lshrrev_b32 v%d, 5, v%d" % (t1, L))
    a("v_bfe_u32 v%d, v%d, 1, 3" % (t2, t0))
    a("s_lshl_b32 s%d, s%d, 6" % (sT0, sWM))
    a("v_add_u32 v%d, s%d, v%d" % (t3, sT0, t0))
    a("v_lshlrev_b32 v%d, 7, v%d" % (t3, t3))
    a("s_lshl_b32 s%d, s%d, 2" % (sT1, sG))
    for cc in range(2):
        a("v_add_u32 v%d, s%d, v%d" % (t4, sT1, t1))
        a("v_add_u32 v%d, %d, v%d" % (t4, 2 * cc, t4))
        a("v_xor_b32 v%d, v%d, v%d" % (t4, t4, t2))
        a("v_lshl_add_u32 v%d, v%d, 4, v%d" % (wAR + 2 * cc, t4, t3))
        a("v_add_u32 v%d, 4096, v%d" % (wAR + 2 * cc + 1, wAR + 2 * cc))
    a("v_lshrrev_b32 v%d, 4, v%d" % (t0, L))
    a("v_and_b32 v%d, 1, v%d" % (t1, t0))
    a("v_lshrrev_b32 v%d, 1, v%d" % (t0, t0))
    a("v_bfe_u32 v%d, v%d, 2, 2" % (t2, L))
    a("v_and_b32 v%d, 1, v%d" % (t3, L))
    a("v_bfe_u32 v%d, v%d, 1, 1" % (t4, L))
    a("v_lshl_add_u32 v%d, v%d, 1, v%d" % (t3, t3, t4))
    a("v_lshlrev_b32 v%d, 3, v%d" % (t3, t3))
    a("v_lshl_add_u32 v%d, v%d, 5, v%d" % (t3, t1, t3))
    a("v_lshl_add_u32 v%d, v%d, 3, v%d" % (t4, t0, t2))
    a("s_lshl_b32 s%d, s%d, 5" % (sT0, sG))
    a("v_add_u32 v%d, s%d, v%d" % (t4, sT0, t4))
    a("v_lshl_add_u32 v%d, v%d, 8, v%d" % (t4, t4, t3))
    a("v_add_u32 v%d, 16384, v%d" % (t4, t4))
    a("s_lshl_b32 s%d, s%d, 1" % (sT1, sWN))
    for nt in range(2):
        a("s_add_u32 s%d, s%d, %d" % (sT2, sT1, nt))
        a("v_xor_b32 v%d, s%d, v%d" % (t1, sT2, t2))
        a("v_lshl_add_u32 v%d, v%d, 6, v%d" % (wBR + nt, t1, t4))
    for k in (1, 2):
        for i in range(4):
            a("v_add_u32 v%d, 0x%x, v%d" % (wAR + 4 * k + i, k * 65536, wAR + i))
        for i in range(2):
            a("v_add_u32 v%d, 0x%x, v%d" % (wBR + 2 * k + i, k * 65536, wBR + i))
    for i in range(64):
        a("v_mov_b32 v%d, 0" % (vACC + i))

    def reads2(stage, cc, st):
        buf = stage % K2_NB
        k, bo = buf >> 1, (buf & 1) * K2_BUF
        for mt in range(2):
            a("ds_read_b128 %s, v%d %s" % (vr(wA[st] + 4 * mt, 4), wAR + 4 * k + 2 * cc + mt, ds_off(bo)))
        for nt in range(2):
            for p in range(2):
                a("ds_read_b64_tr_b16 %s, v%d %s" % (vr(wB[st] + 4 * nt + 2 * p, 2), wBR + 2 * k + nt, ds_off(bo + (16 * cc + 4 * p) * 256)))

    def mf(st, mt, nt, w):
        if w is not None:
            a("s_waitcnt lgkmcnt(%d)" % w)
        acc = vACC + 32 * mt + 16 * nt
        a("v_mfma_f32_32x32x16_bf16 %s, %s, %s, %s" % (vr(acc, 16), vr(wB[st] + 4 * nt, 4), vr(wA[st] + 4 * mt, 4), vr(acc, 16)))

    for s in range(NST):
        idx = max(i for i, t in enumerate(log2) if t in (("a", s), ("b", s)))
        a("s_waitcnt vmcnt(%d)" % (len(log2) - 1 - idx))
        a("s_barrier")
        if s == 0:
            stamp(a, 9)
        if s + D2 < NST:
            log2 += [("a", s + D2)] * 2 + [("b", s + D2)] * 2
        reads2(s, 0, 0)
        nx = s + D2
        if s > 0:
            mf(1, 0, 0, None)
            if nx < NST:
                dma2_setup(nx)
                dma2_a(nx, 0)
            mf(1, 1, 0, None)
            if nx < NST:
                dma2_a(nx, 1)
            mf(1, 0, 1, None)
            if nx < NST:
                dma2_b(nx, 0)
            mf(1, 1, 1, None)
            if nx < NST:
                dma2_b(nx, 1)
        elif nx < NST:
            dma2(nx)
        reads2(s, 1, 1)
        mf(0, 0, 0, 8)
        mf(0, 1, 0, None)
        mf(0, 0, 1, 6)
        mf(0, 1, 1, None)
        a("s_waitcnt lgkmcnt(0)")
    for mt, nt in ((0, 0), (1, 0), (0, 1), (1, 1)):
        mf(1, mt, nt, None)
    stamp(a, 10)
    a("s_barrier")
    RS = 528
    GS = 128 * RS
    a("v_and_b32 v%d, 31, v%d" % (t0, L))
    a("v_lshrrev_b32 v%d, 5, v%d" % (t1, L))
    a("s_lshl_b32 s%d, s%d, 6" % (sT0, sWM))
    a("v_add_u32 v%d, s%d, v%d" % (t0, sT0, t0))
    a("s_movk_i32 s%d, %d" % (sT1, RS))
    a("v_mul_lo_u32 v%d, v%d, s%d" % (t0, t0, sT1))
    a("v_lshl_add_u32 v%d, v%d, 5, v%d" % (t0, t1, t0))
    a("s_mul_i32 s%d, s%d, %d" % (sT0, sG, GS))
    a("s_lshl_b32 s%d, s%d, 8" % (sT1, sWN))
    a("s_add_u32 s%d, s%d, s%d" % (sT0, sT0, sT1))
    a("v_add_u32 v%d, s%d, v%d" % (t0, sT0, t0))
    a("s_nop 3")
    for mt in range(2):
        for nt in range(2):
            for jj in range(2):
                for qq in range(2):
                    a("ds_write_b128 v%d, %s %s" % (t0, vr(vACC + 32 * mt + 16 * nt + 8 * jj + 4 * qq, 4), ds_off(mt * 32 * RS + (nt * 32 + 16 * jj + 4 * qq) * 4)))
        a("s_waitcnt lgkmcnt(4)")
    a("s_waitcnt lgkmcnt(0)")
    a("s_barrier")
    a("v_lshrrev_b32 v%d, 5, v%d" % (t1, L))
    a("v_and_b32 v%d, 31, v%d" % (t2, L))
    a("s_lshl_b32 s%d, s%d, 4" % (sT0, sWAVE))
    a("v_add_u32 v%d, s%d, v%d" % (t3, sT0, t1))
    a("s_movk_i32 s%d, %d" % (sT1, RS))
    a("v_mul_lo_u32 v%d, v%d, s%d" % (t3, t3, sT1))
    a("v_lshl_add_u32 v%d, v%d, 4, v%d" % (t3, t2, t3))
    a("v_add_u32 v%d, 0x%x, v%d" % (t4, GS, t3))

    def rd(i):
        a("ds_read_b128 %s, v%d %s" % (vr(vACC + 4 * i, 4), t3, ds_off(2 * RS * i)))
        a("ds_read_b128 %s, v%d %s" % (vr(vACC + 32 + 4 * i, 4), t4, ds_off(2 * RS * i)))
    for i in range(6):
        rd(i)
    a("v_lshlrev_b32 v%d, 11, v%d" % (t1, t1))
    a("v_lshl_add_u32 v%d, v%d, 4, v%d" % (t1, t2, t1))
    a("s_lshl_b32 s%d, s%d, 7" % (sPB, sBG))
    a("s_add_u32 s%d, s%d, s%d" % (sPB, sPB, sT0))
    a("s_lshl_b32 s%d, s%d, 11" % (sPB, sPB))
    a("s_lshl_b32 s%d, s%d, 9" % (sT0, sHP))
    a("s_add_u32 s%d, s%d, s%d" % (sPB, sPB, sT0))
    a("s_lshl_b32 s%d, s%d, 21" % (sT0, sHG))
    a("s_add_u32 s%d, s%d, s%d" % (sPB, sPB, sT0))
    for i in range(8):
        a("s_waitcnt lgkmcnt(%d)" % (10 if i < 2 else 2 * (7 - i)))
        if i < 2:
            rd(6 + i)
        for q in range(4):
            a("v_add_f32 v%d, v%d, v%d" % (vACC + 4 * i + q, vACC + 4 * i + q, vACC + 32 + 4 * i + q))
        a("s_add_u32 s%d, s%d, %d" % (sT0, sPB, i * 4096))
        a("buffer_store_dwordx4 %s, v%d, %s, s%d offen" % (vr(vACC + 4 * i, 4), t1, sr(S_P, 4), sT0))
    if STAMP:
        stamp(a, 11)
        a("s_waitcnt vmcnt(0)")
        stamp(a, 12)
        stamp_dump(a, 0, 40, vTID)
    a.label("F_DONE")
    a("s_endpgm")
    return kernel_desc(name, NV, 100)


def gen_k3(a):
    name = "k3_kernel"
    kernel_begin(a, name)
    a("s_cmp_ge_u32 s2, %d" % (0 if "k3empty" in EXP else 256))
    a("s_cbranch_scc1 K3_DONE")
    a("s_load_dwordx2 s[4:5], s[0:1], 80")
    a("s_load_dwordx2 s[6:7], s[0:1], 96")
    a("s_lshl_b32 s3, s2, 8")
    a("v_add_u32 v1, s3, v0")
    a("s_waitcnt lgkmcnt(0)")
    a("s_add_u32 s6, s6, 0x%x" % P_WS_OFF)
    a("s_addc_u32 s7, s7, 0")
    make_srd(a, 8, 6, 16 << 20)
    make_srd(a, 12, 4, 2 << 20)
    a("v_lshlrev_b32 v2, 4, v1")
    for i in range(4):
        blk = i >> 1
        for ks in range(4):
            a("s_mov_b32 s%d, 0x%x" % (16 + 4 * i + ks, blk * (8 << 20) + ks * (2 << 20) + (i & 1) * (1 << 20)))
    for i in range(4):
        for ks in range(4):
            a("buffer_load_dwordx4 %s, v2, s[8:11], s%d offen" % (vr(8 + 16 * i + 4 * ks, 4), 16 + 4 * i + ks))
    a("v_lshrrev_b32 v3, 7, v1")
    a("v_lshlrev_b32 v3, 11, v3")
    a("v_and_b32 v4, 127, v1")
    a("v_lshl_add_u32 v3, v4, 3, v3")
    for i in range(4):
        a("s_waitcnt vmcnt(%d)" % (12 - 4 * i))
        b = 8 + 16 * i
        for q in range(4):
            a("v_add_f32 v%d, v%d, v%d" % (b + q, b + q, b + 4 + q))
            a("v_add_f32 v%d, v%d, v%d" % (b + 8 + q, b + 8 + q, b + 12 + q))
        for q in range(4):
            a("v_add_f32 v%d, v%d, v%d" % (b + q, b + q, b + 8 + q))
        a("v_cvt_pk_bf16_f32 v%d, v%d, v%d" % (b, b, b + 1))
        a("v_cvt_pk_bf16_f32 v%d, v%d, v%d" % (b + 1, b + 2, b + 3))
        a("s_mov_b32 s16, 0x%x" % ((i >> 1) * 1024 + (i & 1) * 512 * 2048))
        a("buffer_store_dwordx2 %s, v3, s[12:15], s16 offen" % vr(b, 2))
    a.label("K3_DONE")
    a("s_endpgm")
    return kernel_desc(name, 80, 40)


def main():
    a = Asm()
    launches = [("k12_kernel", 256, 512, F_LDS), ("k3_kernel", 256, 256, 0)]
    hdr = HEADER
    for k, g, b, l in launches:
        hdr += "; @launch kernel=%s grid=(%d,1,1) block=(%d,1,1) lds=%d\n" % (k, g, b, l)
    a.raw('.amdgcn_target "amdgcn-amd-amdhsa--gfx950"')
    a.raw(".text")
    descs = [gen_fused(a), gen_k3(a)]
    a.raw('.section .rodata,"a"')
    for d in descs:
        a.raw(".p2align 6")
        a.raw(d)
    open(OUT, "w").write(hdr + a.text())


if __name__ == "__main__":
    main()
```

```python
import sys, os
EXP = os.environ.get("EXP", "")

NAME = "concat_heads__gqa_block_cached__mha_block_cached__near_ridge"
OUT = os.environ.get("OUT", "cdna_kernels/%s.s" % NAME)

HEADER = """; Kernarg layout for this problem (104 bytes, ptrs only, base s[0:1]):
"""


class Asm:
    def __init__(self):
        self.lines = []

    def __call__(self, s):
        self.lines.append("    " + s)

    def label(self, s):
        self.lines.append(s + ":")

    def raw(self, s):
        self.lines.append(s)

    def comment(self, s):
        self.lines.append("    ; " + s)

    def text(self):
        return "\n".join(self.lines) + "\n"


def vr(base, n):
    return "v[%d:%d]" % (base, base + n - 1)


def sr(base, n):
    return "s[%d:%d]" % (base, base + n - 1)


def buf_off(o):
    assert 0 <= o < 4096, o
    return "offset:%d" % o


def ds_off(o):
    assert 0 <= o < 65536, o
    return "offset:%d" % o


def kernel_begin(a, name):
    a.raw(".globl %s" % name)
    a.raw(".p2align 8")
    a.raw(".type %s,@function" % name)
    a.label(name)


def kernel_desc(name, vgpr, sgpr, accum=None):
    if accum is None:
        accum = (vgpr + 3) // 4 * 4
    return """.amdhsa_kernel %s
  .amdhsa_next_free_vgpr %d
  .amdhsa_next_free_sgpr %d
  .amdhsa_accum_offset %d
  .amdhsa_group_segment_fixed_size 0
  .amdhsa_kernarg_size 104
  .amdhsa_user_sgpr_count 2
  .amdhsa_user_sgpr_kernarg_segment_ptr 1
  .amdhsa_system_sgpr_workgroup_id_x 1
.end_amdhsa_kernel
""" % (name, vgpr, sgpr, accum)


def make_srd(a, d, base_lo, size):
    a("s_mov_b32 s%d, s%d" % (d, base_lo))
    a("s_and_b32 s%d, s%d, 0xffff" % (d + 1, base_lo + 1))
    a("s_mov_b32 s%d, 0x%x" % (d + 2, size))
    a("s_mov_b32 s%d, 0x00020000" % (d + 3))


STAMP = "stamp" in EXP


def stamp(a, idx):
    if STAMP:
        a("s_memtime s[98:99]")
        a("s_waitcnt lgkmcnt(0)")
        a("s_mov_b32 s%d, s98" % (82 + idx))


def stamp_dump(a, n, kidx, vtmp):
    if not STAMP:
        return
    a("s_load_dwordx2 s[4:5], s[0:1], 96")
    a("s_waitcnt lgkmcnt(0)")
    a("s_add_u32 s4, s4, 0x%x" % ((64 << 20) + kidx * 131072))
    a("s_addc_u32 s5, s5, 0")
    a("s_and_b32 s5, s5, 0xffff")
    a("s_mov_b32 s6, 131072")
    a("s_mov_b32 s7, 0x00020000")
    a("s_lshl_b32 s3, s2, 9")
    a("v_lshrrev_b32 v%d, 6, v%d" % (vtmp, vtmp + 19))
    a("v_lshlrev_b32 v%d, 6, v%d" % (vtmp, vtmp))
    a("v_add_u32 v%d, s3, v%d" % (vtmp, vtmp))
    for i in range(n):
        a("v_mov_b32 v%d, s%d" % (vtmp + 1 + i, 82 + i))
    a("v_and_b32 v%d, 63, v%d" % (vtmp + 19, vtmp + 19))
    a("v_cmp_eq_u32 vcc, 0, v%d" % (vtmp + 19))
    a("s_and_saveexec_b64 s[8:9], vcc")
    for i in range(n):
        a("buffer_store_dword v%d, v%d, s[4:7], 0 offen offset:%d" % (vtmp + 1 + i, vtmp, 4 * i))
    a("s_mov_b64 exec, s[8:9]")


O_WS_OFF = 0
P_WS_OFF = 16 << 20

K1_LDS = 147456


def gen_k1(a):
    name = "k1_kernel"
    kernel_begin(a, name)
    S_X, S_W, S_K, S_V, S_O = 40, 44, 48, 52, 56
    sWAVE, sBL, sHL, sBG, sH0, sB, sH = 60, 61, 62, 63, 64, 65, 66
    sKB, sKB2, sOB = 67, 68, 69
    sT0, sT1, sT2, sT3 = 70, 71, 72, 73
    sM0X, sM0W = 74, 75
    sXS, sWS = 76, 77
    sSCALE, sLOG2E = 78, 79
    vACC = 0
    vKR = 64
    vVR = 96
    vA = [128, 144]
    vB = [160, 164]
    vXR = 168
    vWR = 172
    vWR2 = 176
    vXOFF = 180
    vWOFF = 182
    vKOFF = 183
    vVOFF = 184
    vT = 185
    vLANE = 200
    NV = 208

    a("s_cmp_ge_u32 s2, %d" % (0 if "k1empty" in EXP else 256))
    a("s_cbranch_scc1 K1_DONE")
    stamp(a, 0)
    if STAMP:
        a("v_mov_b32 v229, v0")
    a("s_load_dwordx16 s[16:31], s[0:1], 0")
    a("s_load_dwordx4 s[32:35], s[0:1], 64")
    a("s_load_dwordx2 s[36:37], s[0:1], 96")
    a("v_lshrrev_b32 v%d, 6, v0" % vT)
    a("v_and_b32 v%d, 63, v0" % vLANE)
    a("s_nop 0")
    a("v_readfirstlane_b32 s%d, v%d" % (sWAVE, vT))
    a("s_and_b32 s%d, s2, 7" % sT0)
    a("s_lshr_b32 s%d, s2, 3" % sT1)
    a("s_lshr_b32 s%d, s%d, 2" % (sBG, sT1))
    a("s_and_b32 s%d, s%d, 3" % (sT1, sT1))
    a("s_and_b32 s%d, s%d, 3" % (sT2, sT0))
    a("s_lshl_b32 s%d, s%d, 3" % (sH0, sT2))
    a("s_lshl_b32 s%d, s%d, 1" % (sT1, sT1))
    a("s_add_u32 s%d, s%d, s%d" % (sH0, sH0, sT1))
    a("s_lshr_b32 s%d, s%d, 1" % (sBL, sWAVE))
    a("s_and_b32 s%d, s%d, 1" % (sHL, sWAVE))
    a("s_lshl_b32 s%d, s%d, 2" % (sB, sBG))
    a("s_add_u32 s%d, s%d, s%d" % (sB, sB, sBL))
    a("s_add_u32 s%d, s%d, s%d" % (sH, sH0, sHL))
    a("s_lshr_b32 s%d, s%d, 2" % (sT3, sT0))
    a("s_waitcnt lgkmcnt(0)")
    a("s_cmp_eq_u32 s%d, 0" % sT3)
    for i in range(4):
        a("s_cselect_b32 s%d, s%d, s%d" % (16 + 2 * i, 16 + 2 * i, 26 + 2 * i))
        a("s_cselect_b32 s%d, s%d, s%d" % (17 + 2 * i, 17 + 2 * i, 27 + 2 * i))
    make_srd(a, S_X, 16, 1 << 20)
    make_srd(a, S_K, 18, 8 << 20)
    make_srd(a, S_V, 20, 8 << 20)
    make_srd(a, S_W, 22, 4 << 20)
    a("s_lshl_b32 s%d, s%d, 23" % (sT0, sT3))
    a("s_add_u32 s36, s36, s%d" % sT0)
    a("s_addc_u32 s37, s37, 0")
    make_srd(a, S_O, 36, 8 << 20)
    a("s_mov_b32 s%d, 0x3db504f3" % sSCALE)
    a("s_mov_b32 s%d, 0x3fb8aa3b" % sLOG2E)

    L = vLANE
    t0, t1, t2, t3, t4 = vT, vT + 1, vT + 2, vT + 3, vT + 4
    a("v_lshrrev_b32 v%d, 3, v%d" % (t0, L))
    a("v_and_b32 v%d, 7, v%d" % (t1, L))
    a("v_lshrrev_b32 v%d, 1, v%d" % (t2, t0))
    a("s_lshl_b32 s%d, s%d, 7" % (sT0, sBG))
    a("s_lshl_b32 s%d, s%d, 4" % (sT1, sWAVE))
    a("s_add_u32 s%d, s%d, s%d" % (sT0, sT0, sT1))
    for i in range(2):
        a("v_add_u32 v%d, %d, v%d" % (t3, 4 * i, t2))
        a("v_xor_b32 v%d, v%d, v%d" % (t3, t3, t1))
        a("v_add_u32 v%d, s%d, v%d" % (t4, sT0, t0))
        a("v_add_u32 v%d, %d, v%d" % (t4, 8 * i, t4))
        a("v_lshlrev_b32 v%d, 10, v%d" % (t4, t4))
        a("v_lshl_add_u32 v%d, v%d, 4, v%d" % (vXOFF + i, t3, t4))
    a("v_lshrrev_b32 v%d, 4, v%d" % (t0, L))
    a("v_and_b32 v%d, 15, v%d" % (t1, L))
    a("v_lshlrev_b32 v%d, 2, v%d" % (t2, t0))
    a("v_xor_b32 v%d, v%d, v%d" % (t1, t1, t2))
    a("s_lshr_b32 s%d, s%d, 1" % (sT0, sWAVE))
    a("s_lshl_b32 s%d, s%d, 4" % (sT0, sT0))
    a("v_add_u32 v%d, s%d, v%d" % (t0, sT0, t0))
    a("v_lshlrev_b32 v%d, 13, v%d" % (t0, t0))
    a("v_lshl_add_u32 v%d, v%d, 4, v%d" % (t0, t1, t0))
    a("s_and_b32 s%d, s%d, 1" % (sT1, sWAVE))
    a("s_add_u32 s%d, s%d, s%d" % (sT2, sH0, sT1))
    a("s_lshl_b32 s%d, s%d, 8" % (sT2, sT2))
    a("v_add_u32 v%d, s%d, v%d" % (vWOFF, sT2, t0))
    a("s_lshl_b32 s%d, s%d, 11" % (sM0X, sWAVE))
    a("s_lshl_b32 s%d, s%d, 14" % (sM0W, sT1))
    a("s_lshl_b32 s%d, s%d, 8" % (sT0, sT0))
    a("s_add_u32 s%d, s%d, s%d" % (sM0W, sM0W, sT0))
    a("s_add_u32 s%d, s%d, 49152" % (sM0W, sM0W))
    a("v_and_b32 v%d, 31, v%d" % (t0, L))
    a("v_lshrrev_b32 v%d, 5, v%d" % (t1, L))
    a("v_lshlrev_b32 v%d, 8, v%d" % (vKOFF, t0))
    a("v_lshl_add_u32 v%d, v%d, 4, v%d" % (vKOFF, t1, vKOFF))
    a("v_lshlrev_b32 v%d, 4, v%d" % (vVOFF, L))
    a("s_lshl_b32 s%d, s%d, 5" % (sKB, sB))
    a("s_add_u32 s%d, s%d, s%d" % (sKB, sKB, sH))
    a("s_lshl_b32 s%d, s%d, 13" % (sKB, sKB))
    a("s_add_u32 s%d, s%d, 4096" % (sKB2, sKB))
    a("v_lshrrev_b32 v%d, 1, v%d" % (t2, t0))
    a("v_and_b32 v%d, 7, v%d" % (t2, t2))
    a("s_lshl_b32 s%d, s%d, 5" % (sT0, sBL))
    a("v_add_u32 v%d, s%d, v%d" % (t3, sT0, t0))
    a("v_lshlrev_b32 v%d, 7, v%d" % (t3, t3))
    for c in range(4):
        a("v_add_u32 v%d, %d, v%d" % (t4, 2 * c, t1))
        a("v_xor_b32 v%d, v%d, v%d" % (t4, t4, t2))
        a("v_lshl_add_u32 v%d, v%d, 4, v%d" % (vXR + c, t4, t3))
    a("v_lshrrev_b32 v%d, 4, v%d" % (t0, L))
    a("v_and_b32 v%d, 1, v%d" % (t1, t0))
    a("v_lshrrev_b32 v%d, 1, v%d" % (t0, t0))
    a("v_bfe_u32 v%d, v%d, 2, 2" % (t2, L))
    a("v_and_b32 v%d, 1, v%d" % (t3, L))
    a("v_bfe_u32 v%d, v%d, 1, 1" % (t4, L))
    a("v_lshl_add_u32 v%d, v%d, 1, v%d" % (t3, t3, t4))
    a("v_lshlrev_b32 v%d, 3, v%d" % (t3, t3))
    a("v_lshl_add_u32 v%d, v%d, 5, v%d" % (t3, t1, t3))
    a("v_lshl_add_u32 v%d, v%d, 3, v%d" % (t4, t0, t2))
    a("v_lshl_add_u32 v%d, v%d, 8, v%d" % (t4, t4, t3))
    a("s_lshl_b32 s%d, s%d, 14" % (sT0, sHL))
    a("s_add_u32 s%d, s%d, 49152" % (sT0, sT0))
    a("v_add_u32 v%d, s%d, v%d" % (t4, sT0, t4))
    for T in range(4):
        a("v_xor_b32 v%d, %d, v%d" % (t1, T, t2))
        a("v_lshl_add_u32 v%d, v%d, 6, v%d" % (vWR + T, t1, t4))
        a("v_add_u32 v%d, 0x10000, v%d" % (vWR2 + T, vWR + T))
    for i in range(64):
        a("v_mov_b32 v%d, 0" % (vACC + i))

    def dma(stage):
        buf = stage % 3
        if "k1nodma" in EXP:
            return
        a("s_mov_b32 s%d, %d" % (sXS, stage * 128))
        for i in range(2):
            a("s_add_u32 m0, s%d, %d" % (sM0X, buf * 16384 + i * 1024))
            a("s_nop 0")
            a("buffer_load_dwordx4 v%d, %s, s%d offen lds" % (vXOFF + i, sr(S_X, 4), sXS))
        for j in range(4):
            a("s_mov_b32 s%d, %d" % (sWS, stage * 524288 + j * 32768))
            a("s_add_u32 m0, s%d, %d" % (sM0W, buf * 32768 + j * 1024))
            a("s_nop 0")
            a("buffer_load_dwordx4 v%d, %s, s%d offen lds" % (vWOFF, sr(S_W, 4), sWS))

    def kv_load(idx):
        if "k1nokv" in EXP:
            return
        if idx < 8:
            a("buffer_load_dwordx4 %s, v%d, %s, s%d offen %s" % (vr(vKR + 4 * idx, 4), vKOFF, sr(S_K, 4), sKB, buf_off(32 * idx)))
        else:
            j = idx - 8
            a("buffer_load_dwordx4 %s, v%d, %s, s%d offen %s" % (vr(vVR + 4 * j, 4), vVOFF, sr(S_V, 4), sKB if j < 4 else sKB2, buf_off(1024 * (j & 3))))

    def reads(stage, c, st):
        buf = stage % 3
        if "k1nocomp" in EXP:
            return
        if "k1nox" not in EXP:
            a("ds_read_b128 %s, v%d %s" % (vr(vB[st], 4), vXR + c, ds_off(buf * 16384)))
        for T in range(4):
            if "k1notr" in EXP:
                continue
            base = vWR2 if buf == 2 else vWR
            bo = 0 if buf == 2 else buf * 32768
            for p in range(2):
                a("ds_read_b64_tr_b16 %s, v%d %s" % (vr(vA[st] + 4 * T + 2 * p, 2), base + T, ds_off(bo + (16 * c + 4 * p) * 256)))

    def mfmas(st, waits):
        for T in range(4):
            if waits[T] is not None:
                a("s_waitcnt lgkmcnt(%d)" % waits[T])
            a("v_mfma_f32_32x32x16_bf16 %s, %s, %s, %s" % (vr(vACC + 16 * T, 16), vr(vA[st] + 4 * T, 4), vr(vB[st], 4), vr(vACC + 16 * T, 16)))

    def mfma1(st, T, w):
        if "k1nocomp" in EXP:
            return
        if "k1nox" in EXP or "k1notr" in EXP:
            w = 15 if w > 0 else 0
        a("s_waitcnt lgkmcnt(%d)" % w)
        if "k1nomfma" in EXP:
            return
        a("v_mfma_f32_32x32x16_bf16 %s, %s, %s, %s" % (vr(vACC + 16 * T, 16), vr(vA[st] + 4 * T, 4), vr(vB[st], 4), vr(vACC + 16 * T, 16)))

    stamp(a, 1)
    dma(0)
    dma(1)
    NST = 8
    for s in range(NST):
        if s == 0:
            n = 6
        else:
            n = 0
            if s >= 2:
                n += 2
            if s + 1 < NST:
                n += 6
            n += 2
        a("s_waitcnt vmcnt(%d)" % n)
        a("s_barrier")
        stamp(a, 2 + s)
        reads(s, 0, 0)
        if s + 2 < NST:
            dma(s + 2)
        kv_load(2 * s)
        kv_load(2 * s + 1)
        for c in range(4):
            st = c & 1
            mfma1(st, 0, 6)
            mfma1(st, 1, 4)
            if c < 3:
                reads(s, c + 1, st ^ 1)
                mfma1(st, 2, 11)
                mfma1(st, 3, 9)
            else:
                mfma1(st, 2, 2)
                mfma1(st, 3, 0)
    stamp(a, 10)
    a("s_barrier")
    a("s_waitcnt vmcnt(0)")
    stamp(a, 11)
    if "k1noattn" in EXP:
        stamp_dump(a, 12, 0, 210)
        a("s_branch K1_DONE")
    a("v_lshrrev_b32 v%d, 4, v%d" % (t0, L))
    a("v_and_b32 v%d, 15, v%d" % (t1, L))
    a("v_lshlrev_b32 v%d, 2, v%d" % (t2, t0))
    a("v_xor_b32 v%d, v%d, v%d" % (t1, t1, t2))
    a("v_lshlrev_b32 v%d, 8, v%d" % (t0, t0))
    a("v_lshl_add_u32 v%d, v%d, 4, v%d" % (t0, t1, t0))
    a("s_lshl_b32 s%d, s%d, 13" % (sT0, sWAVE))
    a("v_add_u32 v%d, s%d, v%d" % (t0, sT0, t0))
    for j in range(8):
        a("ds_write_b128 v%d, %s %s" % (t0, vr(vVR + 4 * j, 4), ds_off(1024 * j)))
    a("v_lshrrev_b32 v%d, 4, v%d" % (t0, L))
    a("v_and_b32 v%d, 1, v%d" % (t1, t0))
    a("v_lshrrev_b32 v%d, 1, v%d" % (t0, t0))
    a("v_bfe_u32 v%d, v%d, 2, 2" % (t2, L))
    a("v_and_b32 v%d, 1, v%d" % (t3, L))
    a("v_bfe_u32 v%d, v%d, 1, 1" % (t4, L))
    a("v_lshl_add_u32 v%d, v%d, 1, v%d" % (t3, t3, t4))
    a("v_lshlrev_b32 v%d, 3, v%d" % (t3, t3))
    a("v_lshl_add_u32 v%d, v%d, 5, v%d" % (t3, t1, t3))
    a("v_lshl_add_u32 v%d, v%d, 2, v%d" % (t4, t0, t2))
    a("v_lshl_add_u32 v%d, v%d, 8, v%d" % (t4, t4, t3))
    a("v_add_u32 v%d, s%d, v%d" % (t4, sT0, t4))
    for T in range(4):
        a("v_xor_b32 v%d, %d, v%d" % (t1, T, t2))
        a("v_lshl_add_u32 v%d, v%d, 6, v%d" % (vWR + T, t1, t4))
    vQ = 128
    a("s_nop 7")
    for i in range(32):
        a("v_cvt_pk_bf16_f32 v%d, v%d, v%d" % (vQ + i, vACC + 2 * i, vACC + 2 * i + 1))
    vS = 0
    a("s_nop 1")
    for j in range(8):
        a("v_mfma_f32_32x32x16_bf16 %s, %s, %s, %s" % (vr(vS, 16), vr(vKR + 4 * j, 4), vr(vQ + 4 * j, 4), "0" if j == 0 else vr(vS, 16)))
    a("s_waitcnt lgkmcnt(0)")
    vVF = 64
    vVF = 96
    for T in range(4):
        for c2 in range(2):
            for p in range(2):
                a("ds_read_b64_tr_b16 %s, v%d %s" % (vr(vVF + 8 * T + 4 * c2 + 2 * p, 2), vWR + T, ds_off((16 * c2 + 8 * p) * 256)))
    a("s_nop 7")
    a("s_nop 3")
    vP = 16
    vE = 32
    for i in range(8):
        a("v_cvt_pk_bf16_f32 v%d, v%d, v%d" % (vP + i, vS + 2 * i, vS + 2 * i + 1))
    for i in range(8):
        a("v_lshlrev_b32 v%d, 16, v%d" % (vE + 2 * i, vP + i))
        a("v_and_b32 v%d, 0xffff0000, v%d" % (vE + 2 * i + 1, vP + i))
    for i in range(16):
        a("v_mul_f32 v%d, s%d, v%d" % (vE + i, sSCALE, vE + i))
    for i in range(8):
        a("v_cvt_pk_bf16_f32 v%d, v%d, v%d" % (vP + i, vE + 2 * i, vE + 2 * i + 1))
    for i in range(8):
        a("v_lshlrev_b32 v%d, 16, v%d" % (vE + 2 * i, vP + i))
        a("v_and_b32 v%d, 0xffff0000, v%d" % (vE + 2 * i + 1, vP + i))
    m0_, m1_ = t0, t1
    a("v_max3_f32 v%d, v%d, v%d, v%d" % (m0_, vE, vE + 1, vE + 2))
    for i in range(3, 15, 2):
        a("v_max3_f32 v%d, v%d, v%d, v%d" % (m0_, m0_, vE + i, vE + i + 1))
    a("v_max_f32 v%d, v%d, v%d" % (m0_, m0_, vE + 15))
    a("v_mov_b32 v%d, v%d" % (m1_, m0_))
    a("s_nop 1")
    a("v_permlane32_swap_b32 v%d, v%d" % (m0_, m1_))
    a("s_nop 1")
    a("v_max_f32 v%d, v%d, v%d" % (m0_, m0_, m1_))
    a("v_mul_f32 v%d, s%d, v%d" % (m0_, sLOG2E, m0_))
    for i in range(16):
        a("v_fma_f32 v%d, v%d, s%d, -v%d" % (vE + i, vE + i, sLOG2E, m0_))
    for i in range(16):
        a("v_exp_f32 v%d, v%d" % (vE + i, vE + i))
    a("s_nop 0")
    s0_, s1_ = t2, t3
    a("v_add_f32 v%d, v%d, v%d" % (s0_, vE, vE + 1))
    a("v_add_f32 v%d, v%d, v%d" % (s1_, vE + 2, vE + 3))
    for i in range(4, 16, 2):
        a("v_add_f32 v%d, v%d, v%d" % (s0_, s0_, vE + i))
        a("v_add_f32 v%d, v%d, v%d" % (s1_, s1_, vE + i + 1))
    a("v_add_f32 v%d, v%d, v%d" % (s0_, s0_, s1_))
    a("v_mov_b32 v%d, v%d" % (s1_, s0_))
    a("s_nop 1")
    a("v_permlane32_swap_b32 v%d, v%d" % (s0_, s1_))
    a("s_nop 1")
    a("v_add_f32 v%d, v%d, v%d" % (s0_, s0_, s1_))
    a("v_rcp_f32 v%d, v%d" % (s0_, s0_))
    a("s_nop 0")
    for i in range(16):
        a("v_mul_f32 v%d, v%d, v%d" % (vE + i, vE + i, s0_))
    for i in range(8):
        a("v_cvt_pk_bf16_f32 v%d, v%d, v%d" % (vP + i, vE + 2 * i, vE + 2 * i + 1))
    vO = 32
    a("s_waitcnt lgkmcnt(0)")
    a("s_nop 1")
    for T in range(4):
        for c2 in range(2):
            a("v_mfma_f32_32x32x16_bf16 %s, %s, %s, %s" % (vr(vO + 16 * T, 16), vr(vVF + 8 * T + 4 * c2, 4), vr(vP + 4 * c2, 4), "0" if c2 == 0 else vr(vO + 16 * T, 16)))
    a("v_and_b32 v%d, 31, v%d" % (t0, L))
    a("v_lshrrev_b32 v%d, 5, v%d" % (t1, L))
    a("v_lshlrev_b32 v%d, 13, v%d" % (t0, t0))
    a("v_lshl_add_u32 v%d, v%d, 4, v%d" % (t0, t1, t0))
    a("s_lshl_b32 s%d, s%d, 18" % (sOB, sB))
    a("s_lshl_b32 s%d, s%d, 8" % (sT0, sH))
    a("s_add_u32 s%d, s%d, s%d" % (sOB, sOB, sT0))
    a("s_nop 7")
    a("s_nop 3")
    vOP = 128
    for T in range(4):
        for jj in range(2):
            for i in range(4):
                a("v_cvt_pk_bf16_f32 v%d, v%d, v%d" % (vOP + 8 * T + 4 * jj + i, vO + 16 * T + 8 * jj + 2 * i, vO + 16 * T + 8 * jj + 2 * i + 1))
            a("buffer_store_dwordx4 %s, v%d, %s, s%d offen %s" % (vr(vOP + 8 * T + 4 * jj, 4), t0, sr(S_O, 4), sOB, buf_off(64 * T + 32 * jj)))
    if STAMP:
        stamp(a, 12)
        a("s_waitcnt vmcnt(0)")
        stamp(a, 13)
        stamp_dump(a, 14, 0, 210)
        NV = 232
    a.label("K1_DONE")
    a("s_endpgm")
    return kernel_desc(name, NV, 100)


K2_LDS = 131072


def gen_k2(a):
    name = "k2_kernel"
    kernel_begin(a, name)
    S_A, S_B, S_P = 40, 44, 48
    sWAVE, sG, sWM, sWN, sTM, sTN, sKS, sBLK = 60, 61, 62, 63, 64, 65, 66, 67
    sT0, sT1, sT2, sT3 = 70, 71, 72, 73
    sM0A, sM0B = 74, 75
    sAS, sBS = 76, 77
    sABASE, sBBASE = 78, 79
    sPB = 80
    sROT = 81
    vACC = 0
    vA = [64, 72]
    vB = [80, 88]
    vAR = 96
    vBR = 100
    vAR2 = 102
    vBR2 = 106
    vAOFF = 108
    vBOFF = 110
    vT = 112
    vLANE = 124
    NV = 128
    L = vLANE
    t0, t1, t2, t3, t4, t5 = [vT + i for i in range(6)]
    a("s_cmp_ge_u32 s2, %d" % (0 if "k2empty" in EXP else 256))
    a("s_cbranch_scc1 K2_DONE")
    a("s_load_dwordx2 s[16:17], s[0:1], 32")
    a("s_load_dwordx2 s[18:19], s[0:1], 72")
    a("s_load_dwordx2 s[36:37], s[0:1], 96")
    a("v_lshrrev_b32 v%d, 6, v0" % t0)
    a("v_and_b32 v%d, 63, v0" % L)
    a("s_nop 0")
    a("v_readfirstlane_b32 s%d, v%d" % (sWAVE, t0))
    a("s_and_b32 s%d, s2, 7" % sT0)
    a("s_lshr_b32 s%d, s%d, 2" % (sBLK, sT0))
    a("s_and_b32 s%d, s%d, 3" % (sKS, sT0))
    a("s_lshr_b32 s%d, s2, 3" % sT1)
    a("s_lshr_b32 s%d, s%d, 2" % (sTM, sT1))
    a("s_and_b32 s%d, s%d, 3" % (sTN, sT1))
    a("s_lshr_b32 s%d, s2, 3" % sROT)
    a("s_lshr_b32 s%d, s%d, 2" % (sG, sWAVE))
    a("s_bfe_u32 s%d, s%d, 0x10001" % (sWM, sWAVE))
    a("s_and_b32 s%d, s%d, 1" % (sWN, sWAVE))
    a("s_waitcnt lgkmcnt(0)")
    a("s_cmp_eq_u32 s%d, 0" % sBLK)
    a("s_cselect_b32 s16, s16, s18")
    a("s_cselect_b32 s17, s17, s19")
    make_srd(a, S_B, 16, 4 << 20)
    a("s_lshl_b32 s%d, s%d, 23" % (sT0, sBLK))
    a("s_add_u32 s20, s36, s%d" % sT0)
    a("s_addc_u32 s21, s37, 0")
    make_srd(a, S_A, 20, 8 << 20)
    a("s_lshl_b32 s%d, s%d, 2" % (sT0, sBLK))
    a("s_add_u32 s%d, s%d, s%d" % (sT0, sT0, sKS))
    a("s_lshl_b32 s%d, s%d, 21" % (sT0, sT0))
    a("s_add_u32 s%d, s%d, 0x%x" % (sT0, sT0, P_WS_OFF))
    a("s_add_u32 s22, s36, s%d" % sT0)
    a("s_addc_u32 s23, s37, 0")
    make_srd(a, S_P, 22, 2 << 20)
    a("s_lshl_b32 s%d, s%d, 11" % (sABASE, sKS))
    a("s_lshl_b32 s%d, s%d, 20" % (sBBASE, sKS))
    a("v_lshrrev_b32 v%d, 3, v%d" % (t0, L))
    a("v_and_b32 v%d, 7, v%d" % (t1, L))
    a("v_lshrrev_b32 v%d, 1, v%d" % (t2, t0))
    a("s_lshl_b32 s%d, s%d, 7" % (sT0, sTM))
    a("s_lshl_b32 s%d, s%d, 4" % (sT1, sWAVE))
    a("s_add_u32 s%d, s%d, s%d" % (sT0, sT0, sT1))
    for i in range(2):
        a("v_add_u32 v%d, %d, v%d" % (t3, 4 * i, t2))
        a("v_xor_b32 v%d, v%d, v%d" % (t3, t3, t1))
        a("v_add_u32 v%d, s%d, v%d" % (t4, sT0, t0))
        a("v_add_u32 v%d, %d, v%d" % (t4, 8 * i, t4))
        a("v_lshlrev_b32 v%d, 13, v%d" % (t4, t4))
        a("v_lshl_add_u32 v%d, v%d, 4, v%d" % (vAOFF + i, t3, t4))
    a("v_lshrrev_b32 v%d, 4, v%d" % (t0, L))
    a("v_and_b32 v%d, 15, v%d" % (t1, L))
    a("v_lshlrev_b32 v%d, 2, v%d" % (t2, t0))
    a("v_xor_b32 v%d, v%d, v%d" % (t1, t1, t2))
    a("s_lshl_b32 s%d, s%d, 3" % (sT0, sWAVE))
    a("v_add_u32 v%d, s%d, v%d" % (t0, sT0, t0))
    a("v_lshlrev_b32 v%d, 10, v%d" % (t0, t0))
    a("v_lshl_add_u32 v%d, v%d, 4, v%d" % (t0, t1, t0))
    a("s_lshl_b32 s%d, s%d, 8" % (sT1, sTN))
    a("v_add_u32 v%d, s%d, v%d" % (vBOFF, sT1, t0))
    a("s_lshl_b32 s%d, s%d, 11" % (sM0A, sWAVE))
    a("s_lshl_b32 s%d, s%d, 11" % (sM0B, sWAVE))
    a("s_add_u32 s%d, s%d, 16384" % (sM0B, sM0B))
    a("v_and_b32 v%d, 31, v%d" % (t0, L))
    a("v_lshrrev_b32 v%d, 5, v%d" % (t1, L))
    a("v_lshrrev_b32 v%d, 1, v%d" % (t2, t0))
    a("v_and_b32 v%d, 7, v%d" % (t2, t2))
    a("s_lshl_b32 s%d, s%d, 6" % (sT0, sWM))
    a("v_add_u32 v%d, s%d, v%d" % (t3, sT0, t0))
    a("v_lshlrev_b32 v%d, 7, v%d" % (t3, t3))
    a("s_lshl_b32 s%d, s%d, 2" % (sT1, sG))
    for cc in range(2):
        a("v_add_u32 v%d, s%d, v%d" % (t4, sT1, t1))
        a("v_add_u32 v%d, %d, v%d" % (t4, 2 * cc, t4))
        a("v_xor_b32 v%d, v%d, v%d" % (t4, t4, t2))
        a("v_lshl_add_u32 v%d, v%d, 4, v%d" % (vAR + 2 * cc, t4, t3))
        a("v_add_u32 v%d, 4096, v%d" % (vAR + 2 * cc + 1, vAR + 2 * cc))
    a("v_lshrrev_b32 v%d, 4, v%d" % (t0, L))
    a("v_and_b32 v%d, 1, v%d" % (t1, t0))
    a("v_lshrrev_b32 v%d, 1, v%d" % (t0, t0))
    a("v_bfe_u32 v%d, v%d, 2, 2" % (t2, L))
    a("v_and_b32 v%d, 3, v%d" % (t3, L))
    a("v_lshlrev_b32 v%d, 3, v%d" % (t3, t3))
    a("v_lshl_add_u32 v%d, v%d, 5, v%d" % (t3, t1, t3))
    a("v_lshl_add_u32 v%d, v%d, 3, v%d" % (t4, t0, t2))
    a("s_lshl_b32 s%d, s%d, 5" % (sT0, sG))
    a("v_add_u32 v%d, s%d, v%d" % (t4, sT0, t4))
    a("v_lshl_add_u32 v%d, v%d, 8, v%d" % (t4, t4, t3))
    a("v_add_u32 v%d, 16384, v%d" % (t4, t4))
    a("s_lshl_b32 s%d, s%d, 1" % (sT1, sWN))
    for nt in range(2):
        a("v_add_u32 v%d, s%d, v%d" % (t5, sT1, t2)) if False else None
        a("s_add_u32 s%d, s%d, %d" % (sT2, sT1, nt))
        a("v_xor_b32 v%d, s%d, v%d" % (t1, sT2, t2))
        a("v_lshl_add_u32 v%d, v%d, 6, v%d" % (vBR + nt, t1, t4))
    for i in range(4):
        a("v_add_u32 v%d, 0x10000, v%d" % (vAR2 + i, vAR + i))
    for i in range(2):
        a("v_add_u32 v%d, 0x10000, v%d" % (vBR2 + i, vBR + i))
    for i in range(64):
        a("v_mov_b32 v%d, 0" % (vACC + i))

    NST = 16
    NB = 4

    def dma(stage):
        buf = stage % NB
        if "k2nodma" in EXP:
            return
        a("s_add_u32 s%d, s%d, %d" % (sT3, sROT, stage))
        a("s_and_b32 s%d, s%d, 15" % (sT3, sT3))
        a("s_lshl_b32 s%d, s%d, 7" % (sAS, sT3))
        a("s_add_u32 s%d, s%d, s%d" % (sAS, sAS, sABASE))
        a("s_lshl_b32 s%d, s%d, 16" % (sT3, sT3))
        a("s_add_u32 s%d, s%d, s%d" % (sT3, sT3, sBBASE))
        for i in range(2):
            a("s_add_u32 m0, s%d, %d" % (sM0A, buf * 32768 + i * 1024))
            a("s_nop 0")
            a("buffer_load_dwordx4 v%d, %s, s%d offen lds" % (vAOFF + i, sr(S_A, 4), sAS))
        for j in range(2):
            a("s_add_u32 s%d, s%d, %d" % (sBS, sT3, j * 4096))
            a("s_add_u32 m0, s%d, %d" % (sM0B, buf * 32768 + j * 1024))
            a("s_nop 0")
            a("buffer_load_dwordx4 v%d, %s, s%d offen lds" % (vBOFF, sr(S_B, 4), sBS))

    def reads(stage, cc, st):
        if "k2nocomp" in EXP:
            return
        buf = stage % NB
        ar = vAR2 if buf >= 2 else vAR
        br = vBR2 if buf >= 2 else vBR
        bo = (buf & 1) * 32768
        for mt in range(2):
            a("ds_read_b128 %s, v%d %s" % (vr(vA[st] + 4 * mt, 4), ar + 2 * cc + mt, ds_off(bo)))
        for nt in range(2):
            for p in range(2):
                a("ds_read_b64_tr_b16 %s, v%d %s" % (vr(vB[st] + 4 * nt + 2 * p, 2), br + nt, ds_off(bo + (16 * cc + 4 * p) * 256)))

    def mf(st, mt, nt, w):
        if "k2nocomp" in EXP or "k2nomfma" in EXP:
            if w is not None:
                a("s_waitcnt lgkmcnt(%d)" % w)
            return
        if w is not None:
            a("s_waitcnt lgkmcnt(%d)" % w)
        acc = vACC + 32 * mt + 16 * nt
        a("v_mfma_f32_32x32x16_bf16 %s, %s, %s, %s" % (vr(acc, 16), vr(vA[st] + 4 * mt, 4), vr(vB[st] + 4 * nt, 4), vr(acc, 16)))

    for s in range(NB - 1):
        dma(s)
    for s in range(NST):
        n = 4 * min(NB - 2, NST - 1 - s)
        a("s_waitcnt vmcnt(%d)" % n)
        a("s_barrier")
        reads(s, 0, 0)
        reads(s, 1, 1)
        if s + NB - 1 < NST:
            dma(s + NB - 1)
        mf(0, 0, 0, 8)
        mf(0, 1, 0, None)
        mf(0, 0, 1, 6)
        mf(0, 1, 1, None)
        mf(1, 0, 0, 2)
        mf(1, 1, 0, None)
        mf(1, 0, 1, 0)
        mf(1, 1, 1, None)
    a("s_barrier")
    a("v_lshlrev_b32 v%d, 4, v%d" % (t0, L))
    a("s_lshl_b32 s%d, s%d, 13" % (sT0, sWAVE))
    a("v_add_u32 v%d, s%d, v%d" % (t1, sT0, t0))
    a("s_xor_b32 s%d, s%d, 4" % (sT1, sWAVE))
    a("s_lshl_b32 s%d, s%d, 13" % (sT1, sT1))
    a("v_add_u32 v%d, s%d, v%d" % (t2, sT1, t0))
    a("s_nop 7")
    a("s_cmp_eq_u32 s%d, 0" % sG)
    a("s_cbranch_scc1 K2_G0W")
    for i in range(8):
        a("ds_write_b128 v%d, %s %s" % (t1, vr(vACC + 4 * i, 4), ds_off(1024 * i)))
    a("s_waitcnt lgkmcnt(0)")
    for i in range(32):
        a("v_mov_b32 v%d, v%d" % (vACC + i, vACC + 32 + i))
    a("s_branch K2_WD")
    a.label("K2_G0W")
    for i in range(8):
        a("ds_write_b128 v%d, %s %s" % (t1, vr(vACC + 32 + 4 * i, 4), ds_off(1024 * i)))
    a.label("K2_WD")
    a("s_waitcnt lgkmcnt(0)")
    a("s_barrier")
    for i in range(8):
        a("ds_read_b128 %s, v%d %s" % (vr(vACC + 32 + 4 * i, 4), t2, ds_off(1024 * i)))
    a("v_and_b32 v%d, 31, v%d" % (t3, L))
    a("v_lshrrev_b32 v%d, 5, v%d" % (t4, L))
    a("v_lshlrev_b32 v%d, 13, v%d" % (t4, t4))
    a("v_lshl_add_u32 v%d, v%d, 2, v%d" % (t3, t3, t4))
    a("s_lshl_b32 s%d, s%d, 7" % (sPB, sTM))
    a("s_lshl_b32 s%d, s%d, 6" % (sT0, sWM))
    a("s_add_u32 s%d, s%d, s%d" % (sPB, sPB, sT0))
    a("s_lshl_b32 s%d, s%d, 5" % (sT0, sG))
    a("s_add_u32 s%d, s%d, s%d" % (sPB, sPB, sT0))
    a("s_lshl_b32 s%d, s%d, 11" % (sPB, sPB))
    a("s_lshl_b32 s%d, s%d, 9" % (sT0, sTN))
    a("s_add_u32 s%d, s%d, s%d" % (sPB, sPB, sT0))
    a("s_lshl_b32 s%d, s%d, 8" % (sT0, sWN))
    a("s_add_u32 s%d, s%d, s%d" % (sPB, sPB, sT0))
    for i in range(8):
        a("s_waitcnt lgkmcnt(%d)" % (7 - i))
        for q in range(4):
            a("v_add_f32 v%d, v%d, v%d" % (vACC + 4 * i + q, vACC + 4 * i + q, vACC + 32 + 4 * i + q))
    for rq in range(4):
        a("s_add_u32 s%d, s%d, %d" % (sT0, sPB, rq * 8 * 2048))
        a("s_add_u32 s%d, s%d, %d" % (sT1, sPB, rq * 8 * 2048 + 4096))
        for nt in range(2):
            for rr in range(4):
                so = sT0 if rr < 2 else sT1
                if "k2nostore" in EXP:
                    continue
                a("buffer_store_dword v%d, v%d, %s, s%d offen %s" % (vACC + 16 * nt + 4 * rq + rr, t3, sr(S_P, 4), so, buf_off((rr & 1) * 2048 + nt * 128)))
    a.label("K2_DONE")
    a("s_endpgm")
    return kernel_desc(name, NV, 96)


def gen_k3(a):
    name = "k3_kernel"
    kernel_begin(a, name)
    a("s_cmp_ge_u32 s2, %d" % (0 if "k3empty" in EXP else 256))
    a("s_cbranch_scc1 K3_DONE")
    a("s_load_dwordx2 s[4:5], s[0:1], 80")
    a("s_load_dwordx2 s[6:7], s[0:1], 96")
    a("s_lshl_b32 s3, s2, 8")
    a("v_add_u32 v1, s3, v0")
    a("s_waitcnt lgkmcnt(0)")
    a("s_add_u32 s6, s6, 0x%x" % P_WS_OFF)
    a("s_addc_u32 s7, s7, 0")
    make_srd(a, 8, 6, 16 << 20)
    make_srd(a, 12, 4, 2 << 20)
    a("v_lshlrev_b32 v2, 4, v1")
    for i in range(4):
        blk = i >> 1
        for ks in range(4):
            a("s_mov_b32 s%d, 0x%x" % (16 + 4 * i + ks, blk * (8 << 20) + ks * (2 << 20) + (i & 1) * (1 << 20)))
    for i in range(4):
        for ks in range(4):
            a("buffer_load_dwordx4 %s, v2, s[8:11], s%d offen" % (vr(8 + 16 * i + 4 * ks, 4), 16 + 4 * i + ks))
    a("v_lshrrev_b32 v3, 7, v1")
    a("v_lshlrev_b32 v3, 11, v3")
    a("v_and_b32 v4, 127, v1")
    a("v_lshl_add_u32 v3, v4, 3, v3")
    for i in range(4):
        a("s_waitcnt vmcnt(%d)" % (12 - 4 * i))
        b = 8 + 16 * i
        for q in range(4):
            a("v_add_f32 v%d, v%d, v%d" % (b + q, b + q, b + 4 + q))
            a("v_add_f32 v%d, v%d, v%d" % (b + 8 + q, b + 8 + q, b + 12 + q))
        for q in range(4):
            a("v_add_f32 v%d, v%d, v%d" % (b + q, b + q, b + 8 + q))
        a("v_cvt_pk_bf16_f32 v%d, v%d, v%d" % (b, b, b + 1))
        a("v_cvt_pk_bf16_f32 v%d, v%d, v%d" % (b + 1, b + 2, b + 3))
        a("s_mov_b32 s16, 0x%x" % ((i >> 1) * 1024 + (i & 1) * 512 * 2048))
        a("buffer_store_dwordx2 %s, v3, s[12:15], s16 offen" % vr(b, 2))
    a.label("K3_DONE")
    a("s_endpgm")
    return kernel_desc(name, 80, 40)


def main():
    a = Asm()
    launches = [("k1_kernel", 256, 512, K1_LDS), ("k2_kernel", 256, 512, K2_LDS), ("k3_kernel", 256, 256, 0)]
    hdr = HEADER
    for k, g, b, l in launches:
        hdr += "; @launch kernel=%s grid=(%d,1,1) block=(%d,1,1) lds=%d\n" % (k, g, b, l)
    a.raw('.amdgcn_target "amdgcn-amd-amdhsa--gfx950"')
    a.raw(".text")
    descs = []
    descs.append(gen_k1(a))
    descs.append(gen_k2(a))
    descs.append(gen_k3(a))
    a.raw('.section .rodata,"a"')
    for d in descs:
        a.raw(".p2align 6")
        a.raw(d)
    open(OUT, "w").write(hdr + a.text())


if __name__ == "__main__":
    main()
```

```python
import sys, os
EXP = os.environ.get("EXP", "")

NAME = "concat_heads__gqa_block_cached__mha_block_cached__near_ridge"
OUT = os.environ.get("OUT", "cdna_kernels/%s.s" % NAME)

HEADER = """; Kernarg layout for this problem (104 bytes, ptrs only, base s[0:1]):
"""


class Asm:
    def __init__(self):
        self.lines = []

    def __call__(self, s):
        self.lines.append("    " + s)

    def label(self, s):
        self.lines.append(s + ":")

    def raw(self, s):
        self.lines.append(s)

    def text(self):
        return "\n".join(self.lines) + "\n"


def vr(base, n):
    return "v[%d:%d]" % (base, base + n - 1)


def sr(base, n):
    return "s[%d:%d]" % (base, base + n - 1)


def buf_off(o):
    assert 0 <= o < 4096, o
    return "offset:%d" % o


def ds_off(o):
    assert 0 <= o < 65536, o
    return "offset:%d" % o


def kernel_begin(a, name):
    a.raw(".globl %s" % name)
    a.raw(".p2align 8")
    a.raw(".type %s,@function" % name)
    a.label(name)


def kernel_desc(name, vgpr, sgpr, accum=None):
    if accum is None:
        accum = (vgpr + 3) // 4 * 4
    return """.amdhsa_kernel %s
  .amdhsa_next_free_vgpr %d
  .amdhsa_next_free_sgpr %d
  .amdhsa_accum_offset %d
  .amdhsa_group_segment_fixed_size 0
  .amdhsa_kernarg_size 104
  .amdhsa_user_sgpr_count 2
  .amdhsa_user_sgpr_kernarg_segment_ptr 1
  .amdhsa_system_sgpr_workgroup_id_x 1
.end_amdhsa_kernel
""" % (name, vgpr, sgpr, accum)


def make_srd(a, d, base_lo, size):
    a("s_mov_b32 s%d, s%d" % (d, base_lo))
    a("s_and_b32 s%d, s%d, 0xffff" % (d + 1, base_lo + 1))
    a("s_mov_b32 s%d, 0x%x" % (d + 2, size))
    a("s_mov_b32 s%d, 0x00020000" % (d + 3))


STAMP = "stamp" in EXP
KVMOD = "" if "kvplain" in EXP else " sc0 sc1 nt"
WMOD = " nt" if "wnt" in EXP else ""
DMOD = "" if "dplain" in EXP else " nt"
NSTAMP = 16


def stamp(a, idx):
    if STAMP:
        assert idx < NSTAMP
        a("s_memtime s[98:99]")
        a("s_waitcnt lgkmcnt(0)")
        a("s_mov_b32 s%d, s98" % (82 + idx))


def stamp_init(a, vtid):
    if STAMP:
        a("v_mov_b32 v%d, v0" % vtid)
        for i in range(NSTAMP):
            a("s_mov_b32 s%d, 0" % (82 + i))


def stamp_dump(a, kidx, vtmp, vtid):
    if not STAMP:
        return
    a("s_load_dwordx2 s[4:5], s[0:1], 96")
    a("s_waitcnt lgkmcnt(0)")
    a("s_add_u32 s4, s4, 0x%x" % ((64 << 20) + kidx * 262144))
    a("s_addc_u32 s5, s5, 0")
    a("s_and_b32 s5, s5, 0xffff")
    a("s_mov_b32 s6, 262144")
    a("s_mov_b32 s7, 0x00020000")
    a("s_lshl_b32 s3, s2, 10")
    a("v_lshrrev_b32 v%d, 6, v%d" % (vtmp, vtid))
    a("v_lshlrev_b32 v%d, 6, v%d" % (vtmp, vtmp))
    a("v_add_u32 v%d, s3, v%d" % (vtmp, vtmp))
    a("v_and_b32 v%d, 63, v%d" % (vtid, vtid))
    a("v_cmp_eq_u32 vcc, 0, v%d" % vtid)
    a("s_and_saveexec_b64 s[8:9], vcc")
    for i in range(NSTAMP):
        a("v_mov_b32 v%d, s%d" % (vtmp + 1, 82 + i))
        a("buffer_store_dword v%d, v%d, s[4:7], 0 offen offset:%d" % (vtmp + 1, vtmp, 4 * i))
        a("s_nop 1")
    a("s_mov_b64 exec, s[8:9]")


O_WS_OFF = 0
P_WS_OFF = 16 << 20

K1_BUF = 24576
K1_NB = 6
K2_BUF = 32768
K2_NB = 5
F_LDS = 163840
SPIN_MAX = 200000
F_WS_OFF = 48 << 20
WOPF = [5, 7, 9, 11]


def gen_fused(a):
    name = "k12_kernel"
    kernel_begin(a, name)
    S_X, S_W, S_K, S_V, S_O = 40, 44, 48, 52, 56
    sWAVE, sBL, sHL, sBG, sH0, sB, sH = 60, 61, 62, 63, 64, 65, 66
    sKB, sKB2, sOB = 67, 68, 69
    sT0, sT1, sT2, sT3 = 70, 71, 72, 73
    sM0X, sM0W = 74, 75
    sXS, sWS = 76, 77
    sSCALE, sLOG2E = 78, 79
    sBLK, sHG, sHP = 80, 81, 39
    vACC = 0
    vKR = 64
    vVR = 96
    vA = [128, 144]
    vB = [160, 164]
    vXR = 168
    vWR = 174
    vVOFF = 187
    vXOFF = 188
    vWOFF = 189
    vT = 190
    vLANE = 200
    vTID = 201
    vJ = 204
    NV = 216
    L = vLANE
    t0, t1, t2, t3, t4 = vT, vT + 1, vT + 2, vT + 3, vT + 4
    NST = 16

    a("s_cmp_ge_u32 s2, 256")
    a("s_cbranch_scc1 F_DONE")
    stamp_init(a, vTID)
    stamp(a, 0)
    if STAMP:
        a("s_memrealtime s[98:99]")
        a("s_waitcnt lgkmcnt(0)")
        a("s_mov_b32 s96, s98")
    a("s_load_dwordx16 s[16:31], s[0:1], 0")
    a("s_load_dwordx8 s[32:39], s[0:1], 64")
    a("s_load_dwordx2 s[14:15], s[0:1], 96")
    a("v_lshrrev_b32 v%d, 6, v0" % vT)
    a("v_and_b32 v%d, 63, v0" % vLANE)
    a("s_nop 0")
    a("v_readfirstlane_b32 s%d, v%d" % (sWAVE, vT))
    if "staticid" not in EXP:
        a("s_load_dwordx2 s[10:11], s[0:1], 88")
        a("s_getreg_b32 s12, hwreg(HW_REG_XCC_ID)")
        a("s_and_b32 s12, s12, 7")
        a("s_cmp_lg_u32 s%d, 0" % sWAVE)
        a("s_cbranch_scc1 F_TK_WAIT")
        a("s_waitcnt lgkmcnt(0)")
        make_srd(a, 4, 10, 256)
        a("s_lshl_b32 s13, s12, 2")
        a("v_mov_b32 v%d, s13" % (vT + 1))
        a("v_mov_b32 v%d, 1" % (vT + 2))
        a("v_mov_b32 v%d, 0" % (vT + 3))
        a("v_cmp_eq_u32 vcc, 0, v%d" % vLANE)
        a("s_and_saveexec_b64 s[8:9], vcc")
        a("buffer_atomic_add v%d, v%d, s[4:7], 0 offen sc0" % (vT + 2, vT + 1))
        a("s_waitcnt vmcnt(0)")
        a("ds_write_b32 v%d, v%d" % (vT + 3, vT + 2))
        a("s_mov_b64 exec, s[8:9]")
        a("s_waitcnt lgkmcnt(0)")
        a.label("F_TK_WAIT")
        a("s_barrier")
        a("v_mov_b32 v%d, 0" % (vT + 3))
        a("ds_read_b32 v%d, v%d" % (vT + 2, vT + 3))
        a("s_waitcnt lgkmcnt(0)")
        a("v_readfirstlane_b32 s13, v%d" % (vT + 2))
        a("s_nop 3")
        a("s_barrier")
        a("s_cmp_ge_u32 s13, 32")
        a("s_cbranch_scc1 F_DONE")
        a("s_lshl_b32 s13, s13, 3")
        a("s_add_u32 s2, s13, s12")
    a("s_and_b32 s%d, s2, 7" % sT0)
    a("s_lshr_b32 s%d, s2, 3" % sT1)
    a("s_lshr_b32 s%d, s%d, 2" % (sBG, sT1))
    a("s_and_b32 s%d, s%d, 3" % (sT1, sT1))
    a("s_and_b32 s%d, s%d, 3" % (sHG, sT0))
    a("s_lshl_b32 s%d, s%d, 3" % (sH0, sHG))
    a("s_lshl_b32 s%d, s%d, 1" % (sT2, sT1))
    a("s_add_u32 s%d, s%d, s%d" % (sH0, sH0, sT2))
    a("s_lshr_b32 s%d, s%d, 2" % (sBLK, sT0))
    a("s_mov_b32 s13, s%d" % sT1)
    a("v_lshrrev_b32 v%d, 2, v%d" % (t0, L))
    a("v_and_b32 v%d, 3, v%d" % (t1, L))
    a("v_lshrrev_b32 v%d, 4, v%d" % (t2, L))
    a("v_xor_b32 v%d, v%d, v%d" % (t1, t1, t2))
    a("s_lshl_b32 s%d, s%d, 7" % (sT0, sBG))
    a("s_lshl_b32 s%d, s%d, 4" % (sT1, sWAVE))
    a("s_add_u32 s%d, s%d, s%d" % (sT0, sT0, sT1))
    a("v_add_u32 v%d, s%d, v%d" % (t0, sT0, t0))
    a("v_lshlrev_b32 v%d, 10, v%d" % (t0, t0))
    a("v_lshl_add_u32 v%d, v%d, 4, v%d" % (vXOFF, t1, t0))
    a("s_lshl_b32 s%d, s%d, 10" % (sM0X, sWAVE))
    a("v_lshrrev_b32 v%d, 4, v%d" % (t0, L))
    a("v_and_b32 v%d, 15, v%d" % (t1, L))
    a("v_lshlrev_b32 v%d, 2, v%d" % (t2, t0))
    a("v_xor_b32 v%d, v%d, v%d" % (t1, t1, t2))
    a("s_lshr_b32 s%d, s%d, 1" % (sT0, sWAVE))
    a("s_lshl_b32 s%d, s%d, 3" % (sT0, sT0))
    a("v_add_u32 v%d, s%d, v%d" % (t0, sT0, t0))
    a("v_lshlrev_b32 v%d, 13, v%d" % (t0, t0))
    a("v_lshl_add_u32 v%d, v%d, 4, v%d" % (t0, t1, t0))
    a("s_and_b32 s%d, s%d, 1" % (sT1, sWAVE))
    a("s_add_u32 s%d, s%d, s%d" % (sT2, sH0, sT1))
    a("s_lshl_b32 s%d, s%d, 8" % (sT2, sT2))
    a("v_add_u32 v%d, s%d, v%d" % (vWOFF, sT2, t0))
    a("s_lshl_b32 s%d, s%d, 13" % (sM0W, sT1))
    a("s_lshl_b32 s%d, s%d, 8" % (sT0, sT0))
    a("s_add_u32 s%d, s%d, s%d" % (sM0W, sM0W, sT0))
    a("s_add_u32 s%d, s%d, 8192" % (sM0W, sM0W))
    a("s_waitcnt lgkmcnt(0)")
    a("s_cmp_eq_u32 s%d, 0" % sBLK)
    for i in range(5):
        a("s_cselect_b32 s%d, s%d, s%d" % (16 + 2 * i, 16 + 2 * i, 26 + 2 * i))
        a("s_cselect_b32 s%d, s%d, s%d" % (17 + 2 * i, 17 + 2 * i, 27 + 2 * i))
    a("s_mov_b32 s26, s36")
    a("s_mov_b32 s27, s37")
    a("s_mov_b32 s28, s38")
    a("s_mov_b32 s29, s39")
    a("s_mov_b32 s30, s14")
    a("s_mov_b32 s31, s15")
    a("s_mov_b32 s%d, s13" % sHP)
    make_srd(a, S_X, 16, 1 << 20)
    make_srd(a, S_W, 22, 4 << 20)
    vNON = 212
    sNT = 8

    def dma_x(stage):
        buf = stage % K1_NB
        a("s_mov_b32 s%d, %d" % (sXS, stage * 64))
        a("s_add_u32 m0, s%d, %d" % (sM0X, buf * K1_BUF))
        a("s_nop 0")
        a("buffer_load_dwordx4 v%d, %s, s%d offen%s lds" % (vXOFF, sr(S_X, 4), sXS, DMOD))

    def dma_w(stage, j):
        buf = stage % K1_NB
        a("s_mov_b32 s%d, %d" % (sWS, stage * 262144 + j * 32768))
        a("s_add_u32 m0, s%d, %d" % (sM0W, buf * K1_BUF + j * 1024))
        a("s_nop 0")
        a("buffer_load_dwordx4 v%d, %s, s%d offen%s lds" % (vWOFF, sr(S_W, 4), sWS, DMOD))

    NINIT = 2
    for s in range(NINIT):
        dma_x(s)
        dma_w(s, 0)
        dma_w(s, 1)
    make_srd(a, S_K, 18, 8 << 20)
    make_srd(a, S_V, 20, 8 << 20)
    a("s_lshl_b32 s%d, s%d, 23" % (sT0, sBLK))
    a("s_add_u32 s36, s30, s%d" % sT0)
    a("s_addc_u32 s37, s31, 0")
    make_srd(a, S_O, 36, 8 << 20)
    a("s_lshr_b32 s%d, s%d, 1" % (sBL, sWAVE))
    a("s_and_b32 s%d, s%d, 1" % (sHL, sWAVE))
    a("s_lshl_b32 s%d, s%d, 2" % (sB, sBG))
    a("s_add_u32 s%d, s%d, s%d" % (sB, sB, sBL))
    a("s_add_u32 s%d, s%d, s%d" % (sH, sH0, sHL))
    a("s_mov_b32 s%d, 0x3db504f3" % sSCALE)
    a("s_mov_b32 s%d, 0x3fb8aa3b" % sLOG2E)
    a("v_and_b32 v%d, 31, v%d" % (t0, L))
    a("v_lshrrev_b32 v%d, 5, v%d" % (t1, L))
    a("v_lshlrev_b32 v%d, 4, v%d" % (vVOFF, L))
    a("s_lshl_b32 s%d, s%d, 5" % (sKB, sB))
    a("s_add_u32 s%d, s%d, s%d" % (sKB, sKB, sH))
    a("s_lshl_b32 s%d, s%d, 13" % (sKB, sKB))
    a("s_add_u32 s%d, s%d, 4096" % (sKB2, sKB))

    def kv_load(idx):
        if idx < 8:
            a("buffer_load_dwordx4 %s, v%d, %s, s%d offen %s" % (vr(vKR + 4 * idx, 4), vVOFF, sr(S_K, 4), sKB if idx < 4 else sKB2, buf_off(1024 * (idx & 3))) + KVMOD)
        else:
            j = idx - 8
            a("buffer_load_dwordx4 %s, v%d, %s, s%d offen %s" % (vr(vVR + 4 * j, 4), vVOFF, sr(S_V, 4), sKB if j < 4 else sKB2, buf_off(1024 * (j & 3))) + KVMOD)

    a("v_bfe_u32 v%d, v%d, 2, 2" % (t2, t0))
    a("s_lshl_b32 s%d, s%d, 5" % (sT0, sBL))
    a("v_add_u32 v%d, s%d, v%d" % (t3, sT0, t0))
    a("v_lshlrev_b32 v%d, 6, v%d" % (t3, t3))
    for c in range(2):
        a("v_add_u32 v%d, %d, v%d" % (t4, 2 * c, t1))
        a("v_xor_b32 v%d, v%d, v%d" % (t4, t4, t2))
        a("v_lshl_add_u32 v%d, v%d, 4, v%d" % (vXR + c, t4, t3))
        for k in (1, 2):
            a("v_add_u32 v%d, %d, v%d" % (vXR + 2 * k + c, 2 * k * K1_BUF, vXR + c))
    a("v_lshrrev_b32 v%d, 4, v%d" % (t0, L))
    a("v_and_b32 v%d, 1, v%d" % (t1, t0))
    a("v_lshrrev_b32 v%d, 1, v%d" % (t0, t0))
    a("v_bfe_u32 v%d, v%d, 2, 2" % (t2, L))
    a("v_and_b32 v%d, 1, v%d" % (t3, L))
    a("v_bfe_u32 v%d, v%d, 1, 1" % (t4, L))
    a("v_lshl_add_u32 v%d, v%d, 1, v%d" % (t3, t3, t4))
    a("v_lshlrev_b32 v%d, 3, v%d" % (t3, t3))
    a("v_lshl_add_u32 v%d, v%d, 5, v%d" % (t3, t1, t3))
    a("v_lshl_add_u32 v%d, v%d, 3, v%d" % (t4, t0, t2))
    a("v_lshl_add_u32 v%d, v%d, 8, v%d" % (t4, t4, t3))
    a("s_lshl_b32 s%d, s%d, 13" % (sT0, sHL))
    a("s_add_u32 s%d, s%d, 8192" % (sT0, sT0))
    a("v_add_u32 v%d, s%d, v%d" % (t4, sT0, t4))
    for T in range(4):
        a("v_xor_b32 v%d, %d, v%d" % (t1, T, t2))
        a("v_lshl_add_u32 v%d, v%d, 6, v%d" % (vWR + T, t1, t4))
        for k in (1, 2):
            a("v_add_u32 v%d, %d, v%d" % (vWR + 4 * k + T, 2 * k * K1_BUF, vWR + T))
    for i in range(64):
        a("v_mov_b32 v%d, 0" % (vACC + i))

    def reads(stage, c, st):
        buf = stage % K1_NB
        third, bo = buf >> 1, (buf & 1) * K1_BUF
        a("ds_read_b128 %s, v%d %s" % (vr(vB[st], 4), vXR + 2 * third + c, ds_off(bo)))
        for T in range(4):
            for p in range(2):
                a("ds_read_b64_tr_b16 %s, v%d %s" % (vr(vA[st] + 4 * T + 2 * p, 2), vWR + 4 * third + T, ds_off(bo + (16 * c + 4 * p) * 256)))

    def mfma1(st, T, w):
        if w is not None:
            a("s_waitcnt lgkmcnt(%d)" % w)
        a("v_mfma_f32_32x32x16_bf16 %s, %s, %s, %s" % (vr(vACC + 16 * T, 16), vr(vA[st] + 4 * T, 4), vr(vB[st], 4), vr(vACC + 16 * T, 16)))

    make_srd(a, 4, 24, 4 << 20)
    a("s_lshr_b32 s%d, s2, 3" % sT0)
    a("s_lshl_b32 s%d, s%d, 5" % (sT0, sT0))
    a("s_lshl_b32 s%d, s%d, 2" % (sT1, sWAVE))
    a("s_add_u32 s%d, s%d, s%d" % (sT0, sT0, sT1))
    a("s_lshl_b32 s%d, s%d, 10" % (sT1, sHG))
    a("s_add_u32 s%d, s%d, s%d" % (sT0, sT0, sT1))
    a("s_lshl_b32 s9, s%d, 10" % sT0)
    stamp(a, 1)
    log = []
    for s in range(NINIT):
        log += [("d", s)] * 3
    D = K1_NB - 1
    nxt = NINIT
    for s in range(NST):
        idx = max([i for i, t in enumerate(log) if t == ("d", s)], default=-1)
        n = len(log) - 1 - idx
        a("s_waitcnt vmcnt(%d)" % min(n, 63))
        a("s_barrier")
        if s in (0, 8):
            stamp(a, {0: 2, 8: 3}[s])
        reads(s, 0, 0)
        todo = []
        while nxt < NST and nxt <= s + D and len(todo) < 2:
            todo.append(nxt)
            nxt += 1
        ops = []
        for t in todo:
            ops += [(dma_x, (t,)), (dma_w, (t, 0)), (dma_w, (t, 1))]
            log += [("d", t)] * 3
        if s > 0:
            for T in range(4):
                mfma1(1, T, None)
                k = (len(ops) + 3 - T) // (4 - T) if T < 3 else len(ops)
                for f, args in ops[:k]:
                    f(*args)
                ops = ops[k:]
        else:
            for f, args in ops:
                f(*args)
        a("s_waitcnt lgkmcnt(6)")
        reads(s, 1, 1)
        mfma1(0, 0, 15)
        kv_load(s)
        log.append(("kv", s))
        if s == 10:
            a("s_cmp_lg_u32 s%d, 0" % sWAVE)
            a("s_cbranch_scc1 F_NON_SKIP")
            make_srd(a, 12, 28, 256)
            a("s_memrealtime s[10:11]")
            a("s_waitcnt lgkmcnt(0)")
            a("s_or_b32 s%d, s10, 1" % sNT)
            a("v_mov_b32 v%d, s%d" % (vNON, sNT))
            a("v_mov_b32 v%d, 0" % (vNON + 1))
            a("v_mov_b32 v%d, 128" % (vNON + 2))
            a("v_cmp_eq_u32 vcc, 0, v%d" % L)
            a("s_and_saveexec_b64 s[10:11], vcc")
            a("buffer_atomic_cmpswap v[%d:%d], v%d, s[12:15], 0 offen sc0 sc1" % (vNON, vNON + 1, vNON + 2))
            a("s_mov_b64 exec, s[10:11]")
            a.label("F_NON_SKIP")


        mfma1(0, 1, 13)
        if "nowopf" not in EXP and s in WOPF:
            i = WOPF.index(s)
            a("buffer_load_dwordx4 %s, v%d, s[4:7], s9 offen %s" % (vr(vJ + 4 * (i & 1), 4), vVOFF, buf_off(i * 1024)))
            log.append(("wo", s))
        mfma1(0, 2, 11)
        mfma1(0, 3, 9)
        a("s_waitcnt lgkmcnt(0)")
    for T in range(4):
        mfma1(1, T, None)
    stamp(a, 4)
    a("s_barrier")
    a("s_waitcnt vmcnt(0)")
    stamp(a, 5)
    S_WO = 44
    make_srd(a, S_WO, 24, 4 << 20)
    u0, u1, u2, u3, u4 = vT + 5, vT + 6, vT + 7, vT + 8, vT + 9
    a("v_lshrrev_b32 v%d, 4, v%d" % (u0, L))
    a("v_and_b32 v%d, 15, v%d" % (u1, L))
    a("v_lshlrev_b32 v%d, 2, v%d" % (u2, u0))
    a("v_xor_b32 v%d, v%d, v%d" % (u1, u1, u2))
    a("v_lshlrev_b32 v%d, 8, v%d" % (u0, u0))
    a("v_lshl_add_u32 v%d, v%d, 4, v%d" % (u0, u1, u0))
    a("s_lshl_b32 s%d, s%d, 13" % (sT0, sWAVE))
    a("v_add_u32 v%d, s%d, v%d" % (u0, sT0, u0))
    a("v_lshrrev_b32 v%d, 4, v%d" % (u3, L))
    a("v_and_b32 v%d, 15, v%d" % (u4, L))
    a("v_xor_b32 v%d, v%d, v%d" % (u4, u4, u3))
    a("v_lshlrev_b32 v%d, 8, v%d" % (u3, u3))
    a("v_lshl_add_u32 v%d, v%d, 4, v%d" % (u3, u4, u3))
    a("v_add_u32 v%d, s%d, v%d" % (u3, sT0, u3))
    a("v_add_u32 v%d, 0x10000, v%d" % (u3, u3))
    for j in range(8):
        a("v_xor_b32 v%d, %d, v%d" % (u4, 64 * (j & 3), u3))
        a("ds_write_b128 v%d, %s %s" % (u4, vr(vKR + 4 * j, 4), ds_off(1024 * j)))
    for j in range(8):
        a("ds_write_b128 v%d, %s %s" % (u0, vr(vVR + 4 * j, 4), ds_off(1024 * j)))
    a("v_and_b32 v%d, 31, v%d" % (u1, L))
    a("v_lshrrev_b32 v%d, 5, v%d" % (u2, L))
    a("v_and_b32 v%d, 15, v%d" % (u4, u1))
    a("v_xor_b32 v%d, v%d, v%d" % (u4, u4, u2))
    a("v_lshlrev_b32 v%d, 8, v%d" % (u1, u1))
    a("v_lshl_add_u32 v%d, v%d, 4, v%d" % (u1, u4, u1))
    a("v_add_u32 v%d, s%d, v%d" % (u1, sT0, u1))
    a("v_add_u32 v%d, 0x10000, v%d" % (u1, u1))
    a("s_waitcnt lgkmcnt(7)")
    for jj in range(8):
        a("v_xor_b32 v%d, %d, v%d" % (u4, 32 * jj, u1))
        a("ds_read_b128 %s, v%d" % (vr(vKR + 4 * jj, 4), u4))
    a("v_lshl_add_u32 v%d, v%d, 2, v%d" % (t4, t0, t2))
    a("v_lshl_add_u32 v%d, v%d, 8, v%d" % (t4, t4, t3))
    a("v_add_u32 v%d, s%d, v%d" % (t4, sT0, t4))
    for T in range(4):
        a("v_xor_b32 v%d, %d, v%d" % (t1, T, t2))
        a("v_lshl_add_u32 v%d, v%d, 6, v%d" % (vWR + T, t1, t4))
    vQ = 128
    for i in range(32):
        a("v_cvt_pk_bf16_f32 v%d, v%d, v%d" % (vQ + i, vACC + 2 * i, vACC + 2 * i + 1))
    vS = 0
    for j in range(8):
        a("s_waitcnt lgkmcnt(%d)" % (7 - j))
        a("v_mfma_f32_32x32x16_bf16 %s, %s, %s, %s" % (vr(vS, 16), vr(vKR + 4 * j, 4), vr(vQ + 4 * j, 4), "0" if j == 0 else vr(vS, 16)))
    vVF = 32
    for T in range(4):
        for c2 in range(2):
            for p in range(2):
                a("ds_read_b64_tr_b16 %s, v%d %s" % (vr(vVF + 8 * T + 4 * c2 + 2 * p, 2), vWR + T, ds_off((16 * c2 + 8 * p) * 256)))
    vP = 16
    vE = 96
    for i in range(8):
        a("v_cvt_pk_bf16_f32 v%d, v%d, v%d" % (vP + i, vS + 2 * i, vS + 2 * i + 1))
    for i in range(8):
        a("v_lshlrev_b32 v%d, 16, v%d" % (vE + 2 * i, vP + i))
        a("v_and_b32 v%d, 0xffff0000, v%d" % (vE + 2 * i + 1, vP + i))
    for i in range(16):
        a("v_mul_f32 v%d, s%d, v%d" % (vE + i, sSCALE, vE + i))
    for i in range(8):
        a("v_cvt_pk_bf16_f32 v%d, v%d, v%d" % (vP + i, vE + 2 * i, vE + 2 * i + 1))
    for i in range(8):
        a("v_lshlrev_b32 v%d, 16, v%d" % (vE + 2 * i, vP + i))
        a("v_and_b32 v%d, 0xffff0000, v%d" % (vE + 2 * i + 1, vP + i))
    m0_, m1_ = t0, t1
    a("v_max3_f32 v%d, v%d, v%d, v%d" % (m0_, vE, vE + 1, vE + 2))
    for i in range(3, 15, 2):
        a("v_max3_f32 v%d, v%d, v%d, v%d" % (m0_, m0_, vE + i, vE + i + 1))
    a("v_max_f32 v%d, v%d, v%d" % (m0_, m0_, vE + 15))
    a("v_mov_b32 v%d, v%d" % (m1_, m0_))
    a("s_nop 1")
    a("v_permlane32_swap_b32 v%d, v%d" % (m0_, m1_))
    a("s_nop 1")
    a("v_max_f32 v%d, v%d, v%d" % (m0_, m0_, m1_))
    a("v_mul_f32 v%d, s%d, v%d" % (m0_, sLOG2E, m0_))
    for i in range(16):
        a("v_fma_f32 v%d, v%d, s%d, -v%d" % (vE + i, vE + i, sLOG2E, m0_))
    for i in range(16):
        a("v_exp_f32 v%d, v%d" % (vE + i, vE + i))
    a("s_nop 0")
    s0_, s1_ = t2, t3
    a("v_add_f32 v%d, v%d, v%d" % (s0_, vE, vE + 1))
    a("v_add_f32 v%d, v%d, v%d" % (s1_, vE + 2, vE + 3))
    for i in range(4, 16, 2):
        a("v_add_f32 v%d, v%d, v%d" % (s0_, s0_, vE + i))
        a("v_add_f32 v%d, v%d, v%d" % (s1_, s1_, vE + i + 1))
    a("v_add_f32 v%d, v%d, v%d" % (s0_, s0_, s1_))
    a("v_mov_b32 v%d, v%d" % (s1_, s0_))
    a("s_nop 1")
    a("v_permlane32_swap_b32 v%d, v%d" % (s0_, s1_))
    a("s_nop 1")
    a("v_add_f32 v%d, v%d, v%d" % (s0_, s0_, s1_))
    a("v_rcp_f32 v%d, v%d" % (s0_, s0_))
    a("s_nop 0")
    for i in range(16):
        a("v_mul_f32 v%d, v%d, v%d" % (vE + i, vE + i, s0_))
    for i in range(8):
        a("v_cvt_pk_bf16_f32 v%d, v%d, v%d" % (vP + i, vE + 2 * i, vE + 2 * i + 1))
    vO = 64
    a("s_waitcnt lgkmcnt(0)")
    a("s_nop 1")
    for T in range(4):
        for c2 in range(2):
            a("v_mfma_f32_32x32x16_bf16 %s, %s, %s, %s" % (vr(vO + 16 * T, 16), vr(vVF + 8 * T + 4 * c2, 4), vr(vP + 4 * c2, 4), "0" if c2 == 0 else vr(vO + 16 * T, 16)))
    a("v_lshrrev_b32 v%d, 4, v%d" % (t0, L))
    a("v_and_b32 v%d, 15, v%d" % (t1, L))
    a("v_lshlrev_b32 v%d, 13, v%d" % (t0, t0))
    a("v_lshl_add_u32 v%d, v%d, 4, v%d" % (t0, t1, t0))
    a("s_lshl_b32 s%d, s%d, 18" % (sOB, sB))
    a("s_lshl_b32 s%d, s%d, 8" % (sT0, sH))
    a("s_add_u32 s%d, s%d, s%d" % (sOB, sOB, sT0))
    a("s_nop 7")
    a("s_nop 3")
    vOP = 128
    for T in range(4):
        for jj in range(2):
            for i in range(4):
                a("v_cvt_pk_bf16_f32 v%d, v%d, v%d" % (vOP + 8 * T + 4 * jj + i, vO + 16 * T + 8 * jj + 2 * i, vO + 16 * T + 8 * jj + 2 * i + 1))
            a("v_xor_b32 v%d, %d, v%d" % (u4, 32 * (2 * T + jj), u1))
            a("ds_write_b128 v%d, %s" % (u4, vr(vOP + 8 * T + 4 * jj, 4)))
    a("s_waitcnt lgkmcnt(0)")
    for j in range(8):
        a("v_xor_b32 v%d, %d, v%d" % (u4, 64 * (j & 3), u3))
        a("ds_read_b128 %s, v%d %s" % (vr(vO + 4 * j, 4), u4, ds_off(1024 * j)))
    for j in range(8):
        a("s_add_u32 s%d, s%d, %d" % (sT0, sOB, j * 32768))
        a("s_waitcnt lgkmcnt(%d)" % (7 - j))
        a("buffer_store_dwordx4 %s, v%d, %s, s%d offen" % (vr(vO + 4 * j, 4), t0, sr(S_O, 4), sT0))
    stamp(a, 6)
    a("s_waitcnt vmcnt(0)")
    a("s_barrier")
    stamp(a, 7)

    S_A, S_B, S_P = S_O, S_WO, 52
    sG, sWM, sWN = 61, 62, 65
    sM0A, sM0B = 74, 75
    sAS, sBS = 76, 77
    sABASE, sBBASE = 78, 79
    sPB, sROT = 66, 64
    wA = [64, 72]
    wB = [80, 88]
    wAR = 96
    wBR = 108
    wAOFF = 114
    wBOFF = 116
    a("s_lshl_b32 s%d, s%d, 23" % (sT0, sBLK))
    a("s_add_u32 s%d, s%d, 0x%x" % (sT0, sT0, P_WS_OFF))
    a("s_add_u32 s36, s30, s%d" % sT0)
    a("s_addc_u32 s37, s31, 0")
    make_srd(a, S_P, 36, 8 << 20)
    a("s_lshr_b32 s%d, s%d, 2" % (sG, sWAVE))
    a("s_bfe_u32 s%d, s%d, 0x10001" % (sWM, sWAVE))
    a("s_and_b32 s%d, s%d, 1" % (sWN, sWAVE))
    a("s_lshl_b32 s%d, s%d, 2" % (sROT, sHP))
    a("s_lshl_b32 s%d, s%d, 11" % (sABASE, sHG))
    a("s_lshl_b32 s%d, s%d, 20" % (sBBASE, sHG))
    a("v_lshrrev_b32 v%d, 3, v%d" % (t0, L))
    a("v_and_b32 v%d, 7, v%d" % (t1, L))
    a("v_lshrrev_b32 v%d, 1, v%d" % (t2, t0))
    a("s_lshl_b32 s%d, s%d, 7" % (sT0, sBG))
    a("s_lshl_b32 s%d, s%d, 4" % (sT1, sWAVE))
    a("s_add_u32 s%d, s%d, s%d" % (sT0, sT0, sT1))
    for i in range(2):
        a("v_add_u32 v%d, %d, v%d" % (t3, 4 * i, t2))
        a("v_xor_b32 v%d, v%d, v%d" % (t3, t3, t1))
        a("v_add_u32 v%d, s%d, v%d" % (t4, sT0, t0))
        a("v_add_u32 v%d, %d, v%d" % (t4, 8 * i, t4))
        a("v_lshlrev_b32 v%d, 13, v%d" % (t4, t4))
        a("v_lshl_add_u32 v%d, v%d, 4, v%d" % (wAOFF + i, t3, t4))
    a("v_lshrrev_b32 v%d, 4, v%d" % (t0, L))
    a("v_and_b32 v%d, 15, v%d" % (t1, L))
    a("v_lshlrev_b32 v%d, 2, v%d" % (t2, t0))
    a("v_xor_b32 v%d, v%d, v%d" % (t1, t1, t2))
    a("s_lshl_b32 s%d, s%d, 3" % (sT0, sWAVE))
    a("v_add_u32 v%d, s%d, v%d" % (t0, sT0, t0))
    a("v_lshlrev_b32 v%d, 10, v%d" % (t0, t0))
    a("v_lshl_add_u32 v%d, v%d, 4, v%d" % (t0, t1, t0))
    a("s_lshl_b32 s%d, s%d, 8" % (sT1, sHP))
    a("v_add_u32 v%d, s%d, v%d" % (wBOFF, sT1, t0))
    a("s_lshl_b32 s%d, s%d, 11" % (sM0A, sWAVE))
    a("s_add_u32 s%d, s%d, 16384" % (sM0B, sM0A))

    def dma2_setup(stage):
        a("s_add_u32 s%d, s%d, %d" % (sT3, sROT, stage))
        a("s_and_b32 s%d, s%d, 15" % (sT3, sT3))
        a("s_lshl_b32 s%d, s%d, 7" % (sAS, sT3))
        a("s_add_u32 s%d, s%d, s%d" % (sAS, sAS, sABASE))
        a("s_lshl_b32 s%d, s%d, 16" % (sT3, sT3))
        a("s_add_u32 s%d, s%d, s%d" % (sT3, sT3, sBBASE))

    def dma2_a(stage, i):
        buf = stage % K2_NB
        a("s_add_u32 m0, s%d, %d" % (sM0A, buf * K2_BUF + i * 1024))
        a("s_nop 0")
        a("buffer_load_dwordx4 v%d, %s, s%d offen lds" % (wAOFF + i, sr(S_A, 4), sAS))

    def dma2_b(stage, j):
        buf = stage % K2_NB
        a("s_add_u32 s%d, s%d, %d" % (sBS, sT3, j * 4096))
        a("s_add_u32 m0, s%d, %d" % (sM0B, buf * K2_BUF + j * 1024))
        a("s_nop 0")
        a("buffer_load_dwordx4 v%d, %s, s%d offen lds" % (wBOFF, sr(S_B, 4), sBS))

    def dma2(stage):
        dma2_setup(stage)
        dma2_a(stage, 0)
        dma2_a(stage, 1)
        dma2_b(stage, 0)
        dma2_b(stage, 1)

    D2 = K2_NB - 1
    log2 = []
    S_D = 48
    a("s_add_u32 s36, s30, 0x%x" % F_WS_OFF)
    a("s_addc_u32 s37, s31, 0")
    make_srd(a, S_D, 36, 8192)
    sG1, sCNT, sNON = 67, 69, 68
    sXCC = 12
    a("s_cmp_lg_u32 s%d, 0" % sWAVE)
    a("s_cbranch_scc1 F_S1_SKIP")
    a("v_readfirstlane_b32 s%d, v%d" % (sNON, vNON))
    a("s_and_b32 s%d, s2, 7" % sT0)
    a("s_lshl_b32 s%d, s%d, 3" % (sG1, sT0))
    a("s_add_u32 s%d, s%d, s%d" % (sG1, sG1, sBG))
    a("s_lshl_b32 s%d, s%d, 7" % (sG1, sG1))
    a("s_cmp_eq_u32 s%d, 0" % sNON)
    a("s_cselect_b32 s%d, s%d, s%d" % (sNON, sNT, sNON))
    a("s_getreg_b32 s%d, hwreg(HW_REG_XCC_ID)" % sXCC)
    a("s_and_b32 s%d, s%d, 7" % (sXCC, sXCC))

    def publish(base):
        a("s_lshl_b32 s%d, s%d, 3" % (sT0, sHP))
        a("s_add_u32 s%d, s%d, s%d" % (sT0, sT0, sG1))
        a("v_mov_b32 v%d, s%d" % (t0, sT0))
        a("v_mov_b32 v%d, s%d" % (t2, sNON))
        a("v_mov_b32 v%d, s%d" % (t3, sXCC))
        a("v_cmp_eq_u32 vcc, 0, v%d" % L)
        a("s_and_saveexec_b64 s[10:11], vcc")
        a("buffer_store_dwordx2 v[%d:%d], v%d, %s, 0 offen offset:%d sc0 sc1" % (t2, t3, t0, sr(S_D, 4), base))
        a("s_mov_b64 exec, s[10:11]")

    def waitall(tag, base):
        a("v_and_b32 v%d, 3, v%d" % (t0, L))
        a("v_lshlrev_b32 v%d, 3, v%d" % (t0, t0))
        a("v_add_u32 v%d, s%d, v%d" % (t0, sG1, t0))
        a("s_mov_b32 s%d, 0" % sCNT)
        a.label("%s_POLL" % tag)
        a("buffer_load_dwordx2 v[%d:%d], v%d, %s, 0 offen offset:%d sc0 sc1" % (t2, t3, t0, sr(S_D, 4), base))
        a("s_waitcnt vmcnt(0)")
        a("v_cmp_ne_u32 vcc, s%d, v%d" % (sNON, t2))
        a("s_nop 3")
        a("s_cmp_eq_u64 vcc, 0")
        a("s_cbranch_scc1 %s_OK" % tag)
        a("s_sleep 2")
        a("s_add_u32 s%d, s%d, 1" % (sCNT, sCNT))
        a("s_cmp_lt_u32 s%d, %d" % (sCNT, SPIN_MAX))
        a("s_cbranch_scc1 %s_POLL" % tag)
        a.label("%s_OK" % tag)

    publish(0)
    a.label("F_S1_SKIP")

    def peer_wait():
        a("s_cmp_lg_u32 s%d, 0" % sWAVE)
        a("s_cbranch_scc1 F_S1_DONE")
        waitall("F_S1A", 0)
        a("v_cmp_ne_u32 vcc, s%d, v%d" % (sXCC, t3))
        a("s_nop 3")
        if "forceslow" not in EXP:
            a("s_cmp_eq_u64 vcc, 0")
            a("s_cbranch_scc1 F_S1_DONE")
        a("buffer_wbl2 sc1")
        a("s_waitcnt vmcnt(0)")
        publish(64)
        waitall("F_S1B", 64)
        a("buffer_inv sc1")
        a("s_waitcnt vmcnt(0)")
        a.label("F_S1_DONE")

    stamp(a, 8)
    NINIT2 = 2
    for s in range(NINIT2):
        dma2(s)
        log2 += [("a", s)] * 2 + [("b", s)] * 2
    if STAMP and "p2diag" in EXP:
        stamp(a, 13)
        a("s_waitcnt vmcnt(14)")
        stamp(a, 2)
        a("s_waitcnt vmcnt(12)")
        stamp(a, 3)
    a("v_and_b32 v%d, 31, v%d" % (t0, L))
    a("v_lshrrev_b32 v%d, 5, v%d" % (t1, L))
    a("v_bfe_u32 v%d, v%d, 1, 3" % (t2, t0))
    a("s_lshl_b32 s%d, s%d, 6" % (sT0, sWM))
    a("v_add_u32 v%d, s%d, v%d" % (t3, sT0, t0))
    a("v_lshlrev_b32 v%d, 7, v%d" % (t3, t3))
    a("s_lshl_b32 s%d, s%d, 2" % (sT1, sG))
    for cc in range(2):
        a("v_add_u32 v%d, s%d, v%d" % (t4, sT1, t1))
        a("v_add_u32 v%d, %d, v%d" % (t4, 2 * cc, t4))
        a("v_xor_b32 v%d, v%d, v%d" % (t4, t4, t2))
        a("v_lshl_add_u32 v%d, v%d, 4, v%d" % (wAR + 2 * cc, t4, t3))
        a("v_add_u32 v%d, 4096, v%d" % (wAR + 2 * cc + 1, wAR + 2 * cc))
    a("v_lshrrev_b32 v%d, 4, v%d" % (t0, L))
    a("v_and_b32 v%d, 1, v%d" % (t1, t0))
    a("v_lshrrev_b32 v%d, 1, v%d" % (t0, t0))
    a("v_bfe_u32 v%d, v%d, 2, 2" % (t2, L))
    a("v_and_b32 v%d, 1, v%d" % (t3, L))
    a("v_bfe_u32 v%d, v%d, 1, 1" % (t4, L))
    a("v_lshl_add_u32 v%d, v%d, 1, v%d" % (t3, t3, t4))
    a("v_lshlrev_b32 v%d, 3, v%d" % (t3, t3))
    a("v_lshl_add_u32 v%d, v%d, 5, v%d" % (t3, t1, t3))
    a("v_lshl_add_u32 v%d, v%d, 3, v%d" % (t4, t0, t2))
    a("s_lshl_b32 s%d, s%d, 5" % (sT0, sG))
    a("v_add_u32 v%d, s%d, v%d" % (t4, sT0, t4))
    a("v_lshl_add_u32 v%d, v%d, 8, v%d" % (t4, t4, t3))
    a("v_add_u32 v%d, 16384, v%d" % (t4, t4))
    a("s_lshl_b32 s%d, s%d, 1" % (sT1, sWN))
    for nt in range(2):
        a("s_add_u32 s%d, s%d, %d" % (sT2, sT1, nt))
        a("v_xor_b32 v%d, s%d, v%d" % (t1, sT2, t2))
        a("v_lshl_add_u32 v%d, v%d, 6, v%d" % (wBR + nt, t1, t4))
    for k in (1, 2):
        for i in range(4):
            a("v_add_u32 v%d, 0x%x, v%d" % (wAR + 4 * k + i, k * 65536, wAR + i))
        for i in range(2):
            a("v_add_u32 v%d, 0x%x, v%d" % (wBR + 2 * k + i, k * 65536, wBR + i))
    for i in range(64):
        a("v_mov_b32 v%d, 0" % (vACC + i))

    def reads2(stage, cc, st):
        buf = stage % K2_NB
        k, bo = buf >> 1, (buf & 1) * K2_BUF
        for mt in range(2):
            a("ds_read_b128 %s, v%d %s" % (vr(wA[st] + 4 * mt, 4), wAR + 4 * k + 2 * cc + mt, ds_off(bo)))
        for nt in range(2):
            for p in range(2):
                a("ds_read_b64_tr_b16 %s, v%d %s" % (vr(wB[st] + 4 * nt + 2 * p, 2), wBR + 2 * k + nt, ds_off(bo + (16 * cc + 4 * p) * 256)))

    def mf(st, mt, nt, w):
        if w is not None:
            a("s_waitcnt lgkmcnt(%d)" % w)
        acc = vACC + 32 * mt + 16 * nt
        a("v_mfma_f32_32x32x16_bf16 %s, %s, %s, %s" % (vr(acc, 16), vr(wB[st] + 4 * nt, 4), vr(wA[st] + 4 * mt, 4), vr(acc, 16)))

    WAITS = int(os.environ.get("WAITS", "1"))
    nx2 = NINIT2
    for s in range(NST):
        if s == WAITS:
            peer_wait()
        idx = max(i for i, t in enumerate(log2) if t in (("a", s), ("b", s)))
        a("s_waitcnt vmcnt(%d)" % (len(log2) - 1 - idx))
        a("s_barrier")
        if s == 0:
            stamp(a, 9)
        reads2(s, 0, 0)
        todo = []
        while (s >= WAITS or nx2 < 4) and nx2 < NST and nx2 <= s + D2 and len(todo) < 2:
            todo.append(nx2)
            nx2 += 1
        ops = []
        for t in todo:
            ops += [[(dma2_setup, (t,)), (dma2_a, (t, 0))], [(dma2_a, (t, 1))], [(dma2_b, (t, 0))], [(dma2_b, (t, 1))]]
            log2 += [("a", t)] * 2 + [("b", t)] * 2
        order = ((0, 0), (1, 0), (0, 1), (1, 1))
        for q in range(4):
            if s > 0:
                mf(1, order[q][0], order[q][1], None)
            k = (len(ops) + 3 - q) // (4 - q) if q < 3 else len(ops)
            for grp in ops[:k]:
                for fn, args in grp:
                    fn(*args)
            ops = ops[k:]
        reads2(s, 1, 1)
        mf(0, 0, 0, 8)
        mf(0, 1, 0, None)
        mf(0, 0, 1, 6)
        mf(0, 1, 1, None)
        a("s_waitcnt lgkmcnt(0)")
    for mt, nt in ((0, 0), (1, 0), (0, 1), (1, 1)):
        mf(1, mt, nt, None)
    stamp(a, 10)
    a("s_barrier")
    RS = 528
    GS = 128 * RS
    a("v_and_b32 v%d, 31, v%d" % (t0, L))
    a("v_lshrrev_b32 v%d, 5, v%d" % (t1, L))
    a("s_lshl_b32 s%d, s%d, 6" % (sT0, sWM))
    a("v_add_u32 v%d, s%d, v%d" % (t0, sT0, t0))
    a("s_movk_i32 s%d, %d" % (sT1, RS))
    a("v_mul_lo_u32 v%d, v%d, s%d" % (t0, t0, sT1))
    a("v_lshl_add_u32 v%d, v%d, 5, v%d" % (t0, t1, t0))
    a("s_mul_i32 s%d, s%d, %d" % (sT0, sG, GS))
    a("s_lshl_b32 s%d, s%d, 8" % (sT1, sWN))
    a("s_add_u32 s%d, s%d, s%d" % (sT0, sT0, sT1))
    a("v_add_u32 v%d, s%d, v%d" % (t0, sT0, t0))
    a("s_nop 3")
    for mt in range(2):
        for nt in range(2):
            for jj in range(2):
                for qq in range(2):
                    a("ds_write_b128 v%d, %s %s" % (t0, vr(vACC + 32 * mt + 16 * nt + 8 * jj + 4 * qq, 4), ds_off(mt * 32 * RS + (nt * 32 + 16 * jj + 4 * qq) * 4)))
        a("s_waitcnt lgkmcnt(4)")
    a("s_waitcnt lgkmcnt(0)")
    a("s_barrier")
    a("v_lshrrev_b32 v%d, 5, v%d" % (t1, L))
    a("v_and_b32 v%d, 31, v%d" % (t2, L))
    a("s_lshl_b32 s%d, s%d, 4" % (sT0, sWAVE))
    a("v_add_u32 v%d, s%d, v%d" % (t3, sT0, t1))
    a("s_movk_i32 s%d, %d" % (sT1, RS))
    a("v_mul_lo_u32 v%d, v%d, s%d" % (t3, t3, sT1))
    a("v_lshl_add_u32 v%d, v%d, 4, v%d" % (t3, t2, t3))
    a("v_add_u32 v%d, 0x%x, v%d" % (t4, GS, t3))

    def rd(i):
        a("ds_read_b128 %s, v%d %s" % (vr(vACC + 4 * i, 4), t3, ds_off(2 * RS * i)))
        a("ds_read_b128 %s, v%d %s" % (vr(vACC + 32 + 4 * i, 4), t4, ds_off(2 * RS * i)))
    for i in range(6):
        rd(i)
    a("v_lshlrev_b32 v%d, 11, v%d" % (t1, t1))
    a("v_lshl_add_u32 v%d, v%d, 4, v%d" % (t1, t2, t1))
    a("s_lshl_b32 s%d, s%d, 7" % (sPB, sBG))
    a("s_add_u32 s%d, s%d, s%d" % (sPB, sPB, sT0))
    a("s_lshl_b32 s%d, s%d, 11" % (sPB, sPB))
    a("s_lshl_b32 s%d, s%d, 9" % (sT0, sHP))
    a("s_add_u32 s%d, s%d, s%d" % (sPB, sPB, sT0))
    a("s_lshl_b32 s%d, s%d, 21" % (sT0, sHG))
    a("s_add_u32 s%d, s%d, s%d" % (sPB, sPB, sT0))
    for i in range(8):
        a("s_waitcnt lgkmcnt(%d)" % (10 if i < 2 else 2 * (7 - i)))
        if i < 2:
            rd(6 + i)
        for q in range(4):
            a("v_add_f32 v%d, v%d, v%d" % (vACC + 4 * i + q, vACC + 4 * i + q, vACC + 32 + 4 * i + q))
        a("s_add_u32 s%d, s%d, %d" % (sT0, sPB, i * 4096))
        a("buffer_store_dwordx4 %s, v%d, %s, s%d offen" % (vr(vACC + 4 * i, 4), t1, sr(S_P, 4), sT0))
    if STAMP:
        stamp(a, 11)
        a("s_waitcnt vmcnt(0)")
        stamp(a, 12)
        a("s_memrealtime s[98:99]")
        a("s_waitcnt lgkmcnt(0)")
        a("s_mov_b32 s97, s98")
        stamp_dump(a, 0, 40, vTID)
    a.label("F_DONE")
    a("s_endpgm")
    return kernel_desc(name, NV, 100)


def gen_k3(a):
    name = "k3_kernel"
    kernel_begin(a, name)
    a("s_cmp_ge_u32 s2, %d" % (0 if "k3empty" in EXP else 256))
    a("s_cbranch_scc1 K3_DONE")
    a("s_load_dwordx2 s[4:5], s[0:1], 80")
    a("s_load_dwordx2 s[6:7], s[0:1], 96")
    a("s_lshl_b32 s3, s2, 8")
    a("v_add_u32 v1, s3, v0")
    a("s_waitcnt lgkmcnt(0)")
    a("s_add_u32 s6, s6, 0x%x" % P_WS_OFF)
    a("s_addc_u32 s7, s7, 0")
    make_srd(a, 8, 6, 16 << 20)
    make_srd(a, 12, 4, 2 << 20)
    a("v_lshlrev_b32 v2, 4, v1")
    for i in range(4):
        blk = i >> 1
        for ks in range(4):
            a("s_mov_b32 s%d, 0x%x" % (16 + 4 * i + ks, blk * (8 << 20) + ks * (2 << 20) + (i & 1) * (1 << 20)))
    for i in range(4):
        for ks in range(4):
            a("buffer_load_dwordx4 %s, v2, s[8:11], s%d offen" % (vr(8 + 16 * i + 4 * ks, 4), 16 + 4 * i + ks))
    a("v_lshrrev_b32 v3, 7, v1")
    a("v_lshlrev_b32 v3, 11, v3")
    a("v_and_b32 v4, 127, v1")
    a("v_lshl_add_u32 v3, v4, 3, v3")
    for i in range(4):
        a("s_waitcnt vmcnt(%d)" % (12 - 4 * i))
        b = 8 + 16 * i
        for q in range(4):
            a("v_add_f32 v%d, v%d, v%d" % (b + q, b + q, b + 4 + q))
            a("v_add_f32 v%d, v%d, v%d" % (b + 8 + q, b + 8 + q, b + 12 + q))
        for q in range(4):
            a("v_add_f32 v%d, v%d, v%d" % (b + q, b + q, b + 8 + q))
        a("v_cvt_pk_bf16_f32 v%d, v%d, v%d" % (b, b, b + 1))
        a("v_cvt_pk_bf16_f32 v%d, v%d, v%d" % (b + 1, b + 2, b + 3))
        a("s_mov_b32 s16, 0x%x" % ((i >> 1) * 1024 + (i & 1) * 512 * 2048))
        a("buffer_store_dwordx2 %s, v3, s[12:15], s16 offen" % vr(b, 2))
    a.label("K3_DONE")
    a("s_endpgm")
    return kernel_desc(name, 80, 40)


def main():
    a = Asm()
    launches = [("k12_kernel", 256, 512, F_LDS), ("k3_kernel", 256, 256, 0)]
    hdr = HEADER
    for k, g, b, l in launches:
        hdr += "; @launch kernel=%s grid=(%d,1,1) block=(%d,1,1) lds=%d\n" % (k, g, b, l)
    a.raw('.amdgcn_target "amdgcn-amd-amdhsa--gfx950"')
    a.raw(".text")
    descs = [gen_fused(a), gen_k3(a)]
    a.raw('.section .rodata,"a"')
    for d in descs:
        a.raw(".p2align 6")
        a.raw(d)
    open(OUT, "w").write(hdr + a.text())


if __name__ == "__main__":
    main()
```

```python
import sys, os
EXP = os.environ.get("EXP", "")

NAME = "concat_heads__gqa_block_cached__mha_block_cached__near_ridge"
OUT = os.environ.get("OUT", "cdna_kernels/%s.s" % NAME)

HEADER = """; Kernarg layout for this problem (104 bytes, ptrs only, base s[0:1]):
"""


class Asm:
    def __init__(self):
        self.lines = []

    def __call__(self, s):
        self.lines.append("    " + s)

    def label(self, s):
        self.lines.append(s + ":")

    def raw(self, s):
        self.lines.append(s)

    def text(self):
        return "\n".join(self.lines) + "\n"


def vr(base, n):
    return "v[%d:%d]" % (base, base + n - 1)


def sr(base, n):
    return "s[%d:%d]" % (base, base + n - 1)


def buf_off(o):
    assert 0 <= o < 4096, o
    return "offset:%d" % o


def ds_off(o):
    assert 0 <= o < 65536, o
    return "offset:%d" % o


def kernel_begin(a, name):
    a.raw(".globl %s" % name)
    a.raw(".p2align 8")
    a.raw(".type %s,@function" % name)
    a.label(name)


def kernel_desc(name, vgpr, sgpr, accum=None):
    if accum is None:
        accum = (vgpr + 3) // 4 * 4
    return """.amdhsa_kernel %s
  .amdhsa_next_free_vgpr %d
  .amdhsa_next_free_sgpr %d
  .amdhsa_accum_offset %d
  .amdhsa_group_segment_fixed_size 0
  .amdhsa_kernarg_size 104
  .amdhsa_user_sgpr_count 2
  .amdhsa_user_sgpr_kernarg_segment_ptr 1
  .amdhsa_system_sgpr_workgroup_id_x 1
.end_amdhsa_kernel
""" % (name, vgpr, sgpr, accum)


def make_srd(a, d, base_lo, size):
    a("s_mov_b32 s%d, s%d" % (d, base_lo))
    a("s_and_b32 s%d, s%d, 0xffff" % (d + 1, base_lo + 1))
    a("s_mov_b32 s%d, 0x%x" % (d + 2, size))
    a("s_mov_b32 s%d, 0x00020000" % (d + 3))


STAMP = "stamp" in EXP
KVMOD = "" if "kvplain" in EXP else " sc0 sc1 nt"
WMOD = " nt" if "wnt" in EXP else ""
DMOD = "" if "dplain" in EXP else " nt"
NSTAMP = 16


def stamp(a, idx):
    if STAMP:
        assert idx < NSTAMP
        a("s_memtime s[98:99]")
        a("s_waitcnt lgkmcnt(0)")
        a("s_mov_b32 s%d, s98" % (82 + idx))


def stamp_init(a, vtid):
    if STAMP:
        a("v_mov_b32 v%d, v0" % vtid)
        for i in range(NSTAMP):
            a("s_mov_b32 s%d, 0" % (82 + i))


def stamp_dump(a, kidx, vtmp, vtid):
    if not STAMP:
        return
    a("s_load_dwordx2 s[4:5], s[0:1], 96")
    a("s_waitcnt lgkmcnt(0)")
    a("s_add_u32 s4, s4, 0x%x" % ((64 << 20) + kidx * 262144))
    a("s_addc_u32 s5, s5, 0")
    a("s_and_b32 s5, s5, 0xffff")
    a("s_mov_b32 s6, 262144")
    a("s_mov_b32 s7, 0x00020000")
    a("s_lshl_b32 s3, s2, 10")
    a("v_lshrrev_b32 v%d, 6, v%d" % (vtmp, vtid))
    a("v_lshlrev_b32 v%d, 6, v%d" % (vtmp, vtmp))
    a("v_add_u32 v%d, s3, v%d" % (vtmp, vtmp))
    a("v_and_b32 v%d, 63, v%d" % (vtid, vtid))
    a("v_cmp_eq_u32 vcc, 0, v%d" % vtid)
    a("s_and_saveexec_b64 s[8:9], vcc")
    for i in range(NSTAMP):
        a("v_mov_b32 v%d, s%d" % (vtmp + 1, 82 + i))
        a("buffer_store_dword v%d, v%d, s[4:7], 0 offen offset:%d" % (vtmp + 1, vtmp, 4 * i))
        a("s_nop 1")
    a("s_mov_b64 exec, s[8:9]")


O_WS_OFF = 0
P_WS_OFF = 16 << 20

K1_BUF = 24576
K1_NB = 6
K2_BUF = 32768
K2_NB = 5
F_LDS = 163840
SPIN_MAX = 200000
F_WS_OFF = 48 << 20
WOPF = [5, 7, 9, 11]


def gen_fused(a):
    name = "k12_kernel"
    kernel_begin(a, name)
    S_X, S_W, S_K, S_V, S_O = 40, 44, 48, 52, 56
    sWAVE, sBL, sHL, sBG, sH0, sB, sH = 60, 61, 62, 63, 64, 65, 66
    sKB, sKB2, sOB = 67, 68, 69
    sT0, sT1, sT2, sT3 = 70, 71, 72, 73
    sM0X, sM0W = 74, 75
    sXS, sWS = 76, 77
    sSCALE, sLOG2E = 78, 79
    sBLK, sHG, sHP = 80, 81, 39
    vACC = 0
    vKR = 64
    vVR = 96
    vA = [128, 144]
    vB = [160, 164]
    vXR = 168
    vWR = 174
    vVOFF = 187
    vXOFF = 188
    vWOFF = 189
    vT = 190
    vLANE = 200
    vTID = 201
    vJ = 204
    NV = 216
    L = vLANE
    t0, t1, t2, t3, t4 = vT, vT + 1, vT + 2, vT + 3, vT + 4
    NST = 16

    a("s_cmp_ge_u32 s2, 256")
    a("s_cbranch_scc1 F_DONE")
    stamp_init(a, vTID)
    stamp(a, 0)
    if "diag" in EXP:
        a("s_memrealtime s[98:99]")
        a("s_waitcnt lgkmcnt(0)")
        a("s_mov_b32 s96, s98")
    if STAMP:
        a("s_memrealtime s[98:99]")
        a("s_waitcnt lgkmcnt(0)")
        a("s_mov_b32 s96, s98")
    a("s_load_dwordx16 s[16:31], s[0:1], 0")
    a("s_load_dwordx8 s[32:39], s[0:1], 64")
    a("s_load_dwordx2 s[14:15], s[0:1], 96")
    a("v_lshrrev_b32 v%d, 6, v0" % vT)
    a("v_and_b32 v%d, 63, v0" % vLANE)
    a("s_nop 0")
    a("v_readfirstlane_b32 s%d, v%d" % (sWAVE, vT))
    if "staticid" not in EXP:
        a("s_load_dwordx2 s[10:11], s[0:1], 88")
        a("s_getreg_b32 s12, hwreg(HW_REG_XCC_ID)")
        a("s_and_b32 s12, s12, 7")
        a("s_cmp_lg_u32 s%d, 0" % sWAVE)
        a("s_cbranch_scc1 F_TK_WAIT")
        a("s_waitcnt lgkmcnt(0)")
        make_srd(a, 4, 10, 256)
        a("s_lshl_b32 s13, s12, 2")
        a("v_mov_b32 v%d, s13" % (vT + 1))
        a("v_mov_b32 v%d, 1" % (vT + 2))
        a("v_mov_b32 v%d, 0" % (vT + 3))
        a("v_cmp_eq_u32 vcc, 0, v%d" % vLANE)
        a("s_and_saveexec_b64 s[8:9], vcc")
        a("buffer_atomic_add v%d, v%d, s[4:7], 0 offen sc0" % (vT + 2, vT + 1))
        a("s_waitcnt vmcnt(0)")
        a("ds_write_b32 v%d, v%d" % (vT + 3, vT + 2))
        a("s_mov_b64 exec, s[8:9]")
        a("s_waitcnt lgkmcnt(0)")
        a.label("F_TK_WAIT")
        a("s_barrier")
        a("v_mov_b32 v%d, 0" % (vT + 3))
        a("ds_read_b32 v%d, v%d" % (vT + 2, vT + 3))
        a("s_waitcnt lgkmcnt(0)")
        a("v_readfirstlane_b32 s13, v%d" % (vT + 2))
        a("s_nop 3")
        a("s_barrier")
        a("s_cmp_ge_u32 s13, 32")
        a("s_cbranch_scc1 F_DONE")
        a("s_lshl_b32 s13, s13, 3")
        a("s_add_u32 s2, s13, s12")
    a("s_and_b32 s%d, s2, 7" % sT0)
    a("s_lshr_b32 s%d, s2, 3" % sT1)
    a("s_lshr_b32 s%d, s%d, 2" % (sBG, sT1))
    a("s_and_b32 s%d, s%d, 3" % (sT1, sT1))
    a("s_and_b32 s%d, s%d, 3" % (sHG, sT0))
    a("s_lshl_b32 s%d, s%d, 3" % (sH0, sHG))
    a("s_lshl_b32 s%d, s%d, 1" % (sT2, sT1))
    a("s_add_u32 s%d, s%d, s%d" % (sH0, sH0, sT2))
    a("s_lshr_b32 s%d, s%d, 2" % (sBLK, sT0))
    a("s_mov_b32 s13, s%d" % sT1)
    a("v_lshrrev_b32 v%d, 2, v%d" % (t0, L))
    a("v_and_b32 v%d, 3, v%d" % (t1, L))
    a("v_lshrrev_b32 v%d, 4, v%d" % (t2, L))
    a("v_xor_b32 v%d, v%d, v%d" % (t1, t1, t2))
    a("s_lshl_b32 s%d, s%d, 7" % (sT0, sBG))
    a("s_lshl_b32 s%d, s%d, 4" % (sT1, sWAVE))
    a("s_add_u32 s%d, s%d, s%d" % (sT0, sT0, sT1))
    a("v_add_u32 v%d, s%d, v%d" % (t0, sT0, t0))
    a("v_lshlrev_b32 v%d, 10, v%d" % (t0, t0))
    a("v_lshl_add_u32 v%d, v%d, 4, v%d" % (vXOFF, t1, t0))
    a("s_lshl_b32 s%d, s%d, 10" % (sM0X, sWAVE))
    a("v_lshrrev_b32 v%d, 4, v%d" % (t0, L))
    a("v_and_b32 v%d, 15, v%d" % (t1, L))
    a("v_lshlrev_b32 v%d, 2, v%d" % (t2, t0))
    a("v_xor_b32 v%d, v%d, v%d" % (t1, t1, t2))
    a("s_lshr_b32 s%d, s%d, 1" % (sT0, sWAVE))
    a("s_lshl_b32 s%d, s%d, 3" % (sT0, sT0))
    a("v_add_u32 v%d, s%d, v%d" % (t0, sT0, t0))
    a("v_lshlrev_b32 v%d, 13, v%d" % (t0, t0))
    a("v_lshl_add_u32 v%d, v%d, 4, v%d" % (t0, t1, t0))
    a("s_and_b32 s%d, s%d, 1" % (sT1, sWAVE))
    a("s_add_u32 s%d, s%d, s%d" % (sT2, sH0, sT1))
    a("s_lshl_b32 s%d, s%d, 8" % (sT2, sT2))
    a("v_add_u32 v%d, s%d, v%d" % (vWOFF, sT2, t0))
    a("s_lshl_b32 s%d, s%d, 13" % (sM0W, sT1))
    a("s_lshl_b32 s%d, s%d, 8" % (sT0, sT0))
    a("s_add_u32 s%d, s%d, s%d" % (sM0W, sM0W, sT0))
    a("s_add_u32 s%d, s%d, 8192" % (sM0W, sM0W))
    a("s_waitcnt lgkmcnt(0)")
    a("s_cmp_eq_u32 s%d, 0" % sBLK)
    for i in range(5):
        a("s_cselect_b32 s%d, s%d, s%d" % (16 + 2 * i, 16 + 2 * i, 26 + 2 * i))
        a("s_cselect_b32 s%d, s%d, s%d" % (17 + 2 * i, 17 + 2 * i, 27 + 2 * i))
    a("s_mov_b32 s26, s36")
    a("s_mov_b32 s27, s37")
    a("s_mov_b32 s28, s38")
    a("s_mov_b32 s29, s39")
    a("s_mov_b32 s30, s14")
    a("s_mov_b32 s31, s15")
    a("s_mov_b32 s%d, s13" % sHP)
    make_srd(a, S_X, 16, 1 << 20)
    make_srd(a, S_W, 22, 4 << 20)
    vNON = 212
    sNT = 8

    def dma_x(stage):
        buf = stage % K1_NB
        a("s_mov_b32 s%d, %d" % (sXS, stage * 64))
        a("s_add_u32 m0, s%d, %d" % (sM0X, buf * K1_BUF))
        a("s_nop 0")
        a("buffer_load_dwordx4 v%d, %s, s%d offen%s lds" % (vXOFF, sr(S_X, 4), sXS, DMOD))

    def dma_w(stage, j):
        buf = stage % K1_NB
        a("s_mov_b32 s%d, %d" % (sWS, stage * 262144 + j * 32768))
        a("s_add_u32 m0, s%d, %d" % (sM0W, buf * K1_BUF + j * 1024))
        a("s_nop 0")
        a("buffer_load_dwordx4 v%d, %s, s%d offen%s lds" % (vWOFF, sr(S_W, 4), sWS, DMOD))

    NINIT = 2
    for s in range(NINIT):
        dma_x(s)
        dma_w(s, 0)
        dma_w(s, 1)
    make_srd(a, S_K, 18, 8 << 20)
    make_srd(a, S_V, 20, 8 << 20)
    a("s_lshl_b32 s%d, s%d, 23" % (sT0, sBLK))
    a("s_add_u32 s36, s30, s%d" % sT0)
    a("s_addc_u32 s37, s31, 0")
    make_srd(a, S_O, 36, 8 << 20)
    a("s_lshr_b32 s%d, s%d, 1" % (sBL, sWAVE))
    a("s_and_b32 s%d, s%d, 1" % (sHL, sWAVE))
    a("s_lshl_b32 s%d, s%d, 2" % (sB, sBG))
    a("s_add_u32 s%d, s%d, s%d" % (sB, sB, sBL))
    a("s_add_u32 s%d, s%d, s%d" % (sH, sH0, sHL))
    a("s_mov_b32 s%d, 0x3db504f3" % sSCALE)
    a("s_mov_b32 s%d, 0x3fb8aa3b" % sLOG2E)
    a("v_and_b32 v%d, 31, v%d" % (t0, L))
    a("v_lshrrev_b32 v%d, 5, v%d" % (t1, L))
    a("v_lshlrev_b32 v%d, 4, v%d" % (vVOFF, L))
    a("s_lshl_b32 s%d, s%d, 5" % (sKB, sB))
    a("s_add_u32 s%d, s%d, s%d" % (sKB, sKB, sH))
    a("s_lshl_b32 s%d, s%d, 13" % (sKB, sKB))
    a("s_add_u32 s%d, s%d, 4096" % (sKB2, sKB))

    def kv_load(idx):
        if idx < 8:
            a("buffer_load_dwordx4 %s, v%d, %s, s%d offen %s" % (vr(vKR + 4 * idx, 4), vVOFF, sr(S_K, 4), sKB if idx < 4 else sKB2, buf_off(1024 * (idx & 3))) + KVMOD)
        else:
            j = idx - 8
            a("buffer_load_dwordx4 %s, v%d, %s, s%d offen %s" % (vr(vVR + 4 * j, 4), vVOFF, sr(S_V, 4), sKB if j < 4 else sKB2, buf_off(1024 * (j & 3))) + KVMOD)

    a("v_bfe_u32 v%d, v%d, 2, 2" % (t2, t0))
    a("s_lshl_b32 s%d, s%d, 5" % (sT0, sBL))
    a("v_add_u32 v%d, s%d, v%d" % (t3, sT0, t0))
    a("v_lshlrev_b32 v%d, 6, v%d" % (t3, t3))
    for c in range(2):
        a("v_add_u32 v%d, %d, v%d" % (t4, 2 * c, t1))
        a("v_xor_b32 v%d, v%d, v%d" % (t4, t4, t2))
        a("v_lshl_add_u32 v%d, v%d, 4, v%d" % (vXR + c, t4, t3))
        for k in (1, 2):
            a("v_add_u32 v%d, %d, v%d" % (vXR + 2 * k + c, 2 * k * K1_BUF, vXR + c))
    a("v_lshrrev_b32 v%d, 4, v%d" % (t0, L))
    a("v_and_b32 v%d, 1, v%d" % (t1, t0))
    a("v_lshrrev_b32 v%d, 1, v%d" % (t0, t0))
    a("v_bfe_u32 v%d, v%d, 2, 2" % (t2, L))
    a("v_and_b32 v%d, 1, v%d" % (t3, L))
    a("v_bfe_u32 v%d, v%d, 1, 1" % (t4, L))
    a("v_lshl_add_u32 v%d, v%d, 1, v%d" % (t3, t3, t4))
    a("v_lshlrev_b32 v%d, 3, v%d" % (t3, t3))
    a("v_lshl_add_u32 v%d, v%d, 5, v%d" % (t3, t1, t3))
    a("v_lshl_add_u32 v%d, v%d, 3, v%d" % (t4, t0, t2))
    a("v_lshl_add_u32 v%d, v%d, 8, v%d" % (t4, t4, t3))
    a("s_lshl_b32 s%d, s%d, 13" % (sT0, sHL))
    a("s_add_u32 s%d, s%d, 8192" % (sT0, sT0))
    a("v_add_u32 v%d, s%d, v%d" % (t4, sT0, t4))
    for T in range(4):
        a("v_xor_b32 v%d, %d, v%d" % (t1, T, t2))
        a("v_lshl_add_u32 v%d, v%d, 6, v%d" % (vWR + T, t1, t4))
        for k in (1, 2):
            a("v_add_u32 v%d, %d, v%d" % (vWR + 4 * k + T, 2 * k * K1_BUF, vWR + T))
    for i in range(64):
        a("v_mov_b32 v%d, 0" % (vACC + i))

    def reads(stage, c, st):
        buf = stage % K1_NB
        third, bo = buf >> 1, (buf & 1) * K1_BUF
        a("ds_read_b128 %s, v%d %s" % (vr(vB[st], 4), vXR + 2 * third + c, ds_off(bo)))
        for T in range(4):
            for p in range(2):
                a("ds_read_b64_tr_b16 %s, v%d %s" % (vr(vA[st] + 4 * T + 2 * p, 2), vWR + 4 * third + T, ds_off(bo + (16 * c + 4 * p) * 256)))

    def mfma1(st, T, w):
        if w is not None:
            a("s_waitcnt lgkmcnt(%d)" % w)
        a("v_mfma_f32_32x32x16_bf16 %s, %s, %s, %s" % (vr(vACC + 16 * T, 16), vr(vA[st] + 4 * T, 4), vr(vB[st], 4), vr(vACC + 16 * T, 16)))

    make_srd(a, 4, 24, 4 << 20)
    a("s_lshr_b32 s%d, s2, 3" % sT0)
    a("s_lshl_b32 s%d, s%d, 5" % (sT0, sT0))
    a("s_lshl_b32 s%d, s%d, 2" % (sT1, sWAVE))
    a("s_add_u32 s%d, s%d, s%d" % (sT0, sT0, sT1))
    a("s_lshl_b32 s%d, s%d, 10" % (sT1, sHG))
    a("s_add_u32 s%d, s%d, s%d" % (sT0, sT0, sT1))
    a("s_lshl_b32 s9, s%d, 10" % sT0)
    stamp(a, 1)
    log = []
    for s in range(NINIT):
        log += [("d", s)] * 3
    D = K1_NB - 1
    nxt = NINIT
    for s in range(NST):
        idx = max([i for i, t in enumerate(log) if t == ("d", s)], default=-1)
        n = len(log) - 1 - idx
        a("s_waitcnt vmcnt(%d)" % min(n, 63))
        a("s_barrier")
        if s in (0, 8):
            stamp(a, {0: 2, 8: 3}[s])
        reads(s, 0, 0)
        todo = []
        while nxt < NST and nxt <= s + D and len(todo) < 2:
            todo.append(nxt)
            nxt += 1
        ops = []
        for t in todo:
            ops += [(dma_x, (t,)), (dma_w, (t, 0)), (dma_w, (t, 1))]
            log += [("d", t)] * 3
        if s > 0:
            for T in range(4):
                mfma1(1, T, None)
                k = (len(ops) + 3 - T) // (4 - T) if T < 3 else len(ops)
                for f, args in ops[:k]:
                    f(*args)
                ops = ops[k:]
        else:
            for f, args in ops:
                f(*args)
        a("s_waitcnt lgkmcnt(6)")
        reads(s, 1, 1)
        mfma1(0, 0, 15)
        kv_load(s)
        log.append(("kv", s))
        if s == 10:
            a("s_cmp_lg_u32 s%d, 0" % sWAVE)
            a("s_cbranch_scc1 F_NON_SKIP")
            make_srd(a, 12, 28, 256)
            a("s_memrealtime s[10:11]")
            a("s_waitcnt lgkmcnt(0)")
            a("s_or_b32 s%d, s10, 1" % sNT)
            a("v_mov_b32 v%d, s%d" % (vNON, sNT))
            a("v_mov_b32 v%d, 0" % (vNON + 1))
            a("v_mov_b32 v%d, 128" % (vNON + 2))
            a("v_cmp_eq_u32 vcc, 0, v%d" % L)
            a("s_and_saveexec_b64 s[10:11], vcc")
            a("buffer_atomic_cmpswap v[%d:%d], v%d, s[12:15], 0 offen sc0 sc1" % (vNON, vNON + 1, vNON + 2))
            a("s_mov_b64 exec, s[10:11]")
            a.label("F_NON_SKIP")


        mfma1(0, 1, 13)
        if "nowopf" not in EXP and s in WOPF:
            i = WOPF.index(s)
            a("buffer_load_dwordx4 %s, v%d, s[4:7], s9 offen %s" % (vr(vJ + 4 * (i & 1), 4), vVOFF, buf_off(i * 1024)))
            log.append(("wo", s))
        mfma1(0, 2, 11)
        mfma1(0, 3, 9)
        a("s_waitcnt lgkmcnt(0)")
    for T in range(4):
        mfma1(1, T, None)
    stamp(a, 4)
    a("s_barrier")
    a("s_waitcnt vmcnt(0)")
    stamp(a, 5)
    S_WO = 44
    make_srd(a, S_WO, 24, 4 << 20)
    u0, u1, u2, u3, u4 = vT + 5, vT + 6, vT + 7, vT + 8, vT + 9
    a("v_lshrrev_b32 v%d, 4, v%d" % (u0, L))
    a("v_and_b32 v%d, 15, v%d" % (u1, L))
    a("v_lshlrev_b32 v%d, 2, v%d" % (u2, u0))
    a("v_xor_b32 v%d, v%d, v%d" % (u1, u1, u2))
    a("v_lshlrev_b32 v%d, 8, v%d" % (u0, u0))
    a("v_lshl_add_u32 v%d, v%d, 4, v%d" % (u0, u1, u0))
    a("s_lshl_b32 s%d, s%d, 13" % (sT0, sWAVE))
    a("v_add_u32 v%d, s%d, v%d" % (u0, sT0, u0))
    a("v_lshrrev_b32 v%d, 4, v%d" % (u3, L))
    a("v_and_b32 v%d, 15, v%d" % (u4, L))
    a("v_xor_b32 v%d, v%d, v%d" % (u4, u4, u3))
    a("v_lshlrev_b32 v%d, 8, v%d" % (u3, u3))
    a("v_lshl_add_u32 v%d, v%d, 4, v%d" % (u3, u4, u3))
    a("v_add_u32 v%d, s%d, v%d" % (u3, sT0, u3))
    a("v_add_u32 v%d, 0x10000, v%d" % (u3, u3))
    for j in range(8):
        a("v_xor_b32 v%d, %d, v%d" % (u4, 64 * (j & 3), u3))
        a("ds_write_b128 v%d, %s %s" % (u4, vr(vKR + 4 * j, 4), ds_off(1024 * j)))
    for j in range(8):
        a("ds_write_b128 v%d, %s %s" % (u0, vr(vVR + 4 * j, 4), ds_off(1024 * j)))
    a("v_and_b32 v%d, 31, v%d" % (u1, L))
    a("v_lshrrev_b32 v%d, 5, v%d" % (u2, L))
    a("v_and_b32 v%d, 15, v%d" % (u4, u1))
    a("v_xor_b32 v%d, v%d, v%d" % (u4, u4, u2))
    a("v_lshlrev_b32 v%d, 8, v%d" % (u1, u1))
    a("v_lshl_add_u32 v%d, v%d, 4, v%d" % (u1, u4, u1))
    a("v_add_u32 v%d, s%d, v%d" % (u1, sT0, u1))
    a("v_add_u32 v%d, 0x10000, v%d" % (u1, u1))
    a("s_waitcnt lgkmcnt(7)")
    for jj in range(8):
        a("v_xor_b32 v%d, %d, v%d" % (u4, 32 * jj, u1))
        a("ds_read_b128 %s, v%d" % (vr(vKR + 4 * jj, 4), u4))
    a("v_lshl_add_u32 v%d, v%d, 2, v%d" % (t4, t0, t2))
    a("v_lshl_add_u32 v%d, v%d, 8, v%d" % (t4, t4, t3))
    a("v_add_u32 v%d, s%d, v%d" % (t4, sT0, t4))
    for T in range(4):
        a("v_xor_b32 v%d, %d, v%d" % (t1, T, t2))
        a("v_lshl_add_u32 v%d, v%d, 6, v%d" % (vWR + T, t1, t4))
    vQ = 128
    for i in range(32):
        a("v_cvt_pk_bf16_f32 v%d, v%d, v%d" % (vQ + i, vACC + 2 * i, vACC + 2 * i + 1))
    vS = 0
    for j in range(8):
        a("s_waitcnt lgkmcnt(%d)" % (7 - j))
        a("v_mfma_f32_32x32x16_bf16 %s, %s, %s, %s" % (vr(vS, 16), vr(vKR + 4 * j, 4), vr(vQ + 4 * j, 4), "0" if j == 0 else vr(vS, 16)))
    vVF = 32
    for T in range(4):
        for c2 in range(2):
            for p in range(2):
                a("ds_read_b64_tr_b16 %s, v%d %s" % (vr(vVF + 8 * T + 4 * c2 + 2 * p, 2), vWR + T, ds_off((16 * c2 + 8 * p) * 256)))
    vP = 16
    vE = 96
    for i in range(8):
        a("v_cvt_pk_bf16_f32 v%d, v%d, v%d" % (vP + i, vS + 2 * i, vS + 2 * i + 1))
    for i in range(8):
        a("v_lshlrev_b32 v%d, 16, v%d" % (vE + 2 * i, vP + i))
        a("v_and_b32 v%d, 0xffff0000, v%d" % (vE + 2 * i + 1, vP + i))
    for i in range(16):
        a("v_mul_f32 v%d, s%d, v%d" % (vE + i, sSCALE, vE + i))
    for i in range(8):
        a("v_cvt_pk_bf16_f32 v%d, v%d, v%d" % (vP + i, vE + 2 * i, vE + 2 * i + 1))
    for i in range(8):
        a("v_lshlrev_b32 v%d, 16, v%d" % (vE + 2 * i, vP + i))
        a("v_and_b32 v%d, 0xffff0000, v%d" % (vE + 2 * i + 1, vP + i))
    m0_, m1_ = t0, t1
    a("v_max3_f32 v%d, v%d, v%d, v%d" % (m0_, vE, vE + 1, vE + 2))
    for i in range(3, 15, 2):
        a("v_max3_f32 v%d, v%d, v%d, v%d" % (m0_, m0_, vE + i, vE + i + 1))
    a("v_max_f32 v%d, v%d, v%d" % (m0_, m0_, vE + 15))
    a("v_mov_b32 v%d, v%d" % (m1_, m0_))
    a("s_nop 1")
    a("v_permlane32_swap_b32 v%d, v%d" % (m0_, m1_))
    a("s_nop 1")
    a("v_max_f32 v%d, v%d, v%d" % (m0_, m0_, m1_))
    a("v_mul_f32 v%d, s%d, v%d" % (m0_, sLOG2E, m0_))
    for i in range(16):
        a("v_fma_f32 v%d, v%d, s%d, -v%d" % (vE + i, vE + i, sLOG2E, m0_))
    for i in range(16):
        a("v_exp_f32 v%d, v%d" % (vE + i, vE + i))
    a("s_nop 0")
    s0_, s1_ = t2, t3
    a("v_add_f32 v%d, v%d, v%d" % (s0_, vE, vE + 1))
    a("v_add_f32 v%d, v%d, v%d" % (s1_, vE + 2, vE + 3))
    for i in range(4, 16, 2):
        a("v_add_f32 v%d, v%d, v%d" % (s0_, s0_, vE + i))
        a("v_add_f32 v%d, v%d, v%d" % (s1_, s1_, vE + i + 1))
    a("v_add_f32 v%d, v%d, v%d" % (s0_, s0_, s1_))
    a("v_mov_b32 v%d, v%d" % (s1_, s0_))
    a("s_nop 1")
    a("v_permlane32_swap_b32 v%d, v%d" % (s0_, s1_))
    a("s_nop 1")
    a("v_add_f32 v%d, v%d, v%d" % (s0_, s0_, s1_))
    a("v_rcp_f32 v%d, v%d" % (s0_, s0_))
    a("s_nop 0")
    for i in range(16):
        a("v_mul_f32 v%d, v%d, v%d" % (vE + i, vE + i, s0_))
    for i in range(8):
        a("v_cvt_pk_bf16_f32 v%d, v%d, v%d" % (vP + i, vE + 2 * i, vE + 2 * i + 1))
    vO = 64
    a("s_waitcnt lgkmcnt(0)")
    a("s_nop 1")
    for T in range(4):
        for c2 in range(2):
            a("v_mfma_f32_32x32x16_bf16 %s, %s, %s, %s" % (vr(vO + 16 * T, 16), vr(vVF + 8 * T + 4 * c2, 4), vr(vP + 4 * c2, 4), "0" if c2 == 0 else vr(vO + 16 * T, 16)))
    a("v_lshrrev_b32 v%d, 4, v%d" % (t0, L))
    a("v_and_b32 v%d, 15, v%d" % (t1, L))
    a("v_lshlrev_b32 v%d, 13, v%d" % (t0, t0))
    a("v_lshl_add_u32 v%d, v%d, 4, v%d" % (t0, t1, t0))
    a("s_lshl_b32 s%d, s%d, 18" % (sOB, sB))
    a("s_lshl_b32 s%d, s%d, 8" % (sT0, sH))
    a("s_add_u32 s%d, s%d, s%d" % (sOB, sOB, sT0))
    a("s_nop 7")
    a("s_nop 3")
    vOP = 128
    for T in range(4):
        for jj in range(2):
            for i in range(4):
                a("v_cvt_pk_bf16_f32 v%d, v%d, v%d" % (vOP + 8 * T + 4 * jj + i, vO + 16 * T + 8 * jj + 2 * i, vO + 16 * T + 8 * jj + 2 * i + 1))
            a("v_xor_b32 v%d, %d, v%d" % (u4, 32 * (2 * T + jj), u1))
            a("ds_write_b128 v%d, %s" % (u4, vr(vOP + 8 * T + 4 * jj, 4)))
    a("s_waitcnt lgkmcnt(0)")
    for j in range(8):
        a("v_xor_b32 v%d, %d, v%d" % (u4, 64 * (j & 3), u3))
        a("ds_read_b128 %s, v%d %s" % (vr(vO + 4 * j, 4), u4, ds_off(1024 * j)))
    for j in range(8):
        a("s_add_u32 s%d, s%d, %d" % (sT0, sOB, j * 32768))
        a("s_waitcnt lgkmcnt(%d)" % (7 - j))
        a("buffer_store_dwordx4 %s, v%d, %s, s%d offen" % (vr(vO + 4 * j, 4), t0, sr(S_O, 4), sT0))
    stamp(a, 6)
    a("s_waitcnt vmcnt(0)")
    a("s_barrier")
    stamp(a, 7)

    S_A, S_B, S_P = S_O, S_WO, 52
    sG, sWM, sWN = 61, 62, 65
    sM0A, sM0B = 74, 75
    sAS, sBS = 76, 77
    sABASE, sBBASE = 78, 79
    sPB, sROT = 66, 64
    wA = [64, 72]
    wB = [80, 88]
    wAR = 96
    wBR = 108
    wAOFF = 114
    wBOFF = 116
    a("s_lshl_b32 s%d, s%d, 23" % (sT0, sBLK))
    a("s_add_u32 s%d, s%d, 0x%x" % (sT0, sT0, P_WS_OFF))
    a("s_add_u32 s36, s30, s%d" % sT0)
    a("s_addc_u32 s37, s31, 0")
    make_srd(a, S_P, 36, 8 << 20)
    a("s_lshr_b32 s%d, s%d, 2" % (sG, sWAVE))
    a("s_bfe_u32 s%d, s%d, 0x10001" % (sWM, sWAVE))
    a("s_and_b32 s%d, s%d, 1" % (sWN, sWAVE))
    a("s_lshl_b32 s%d, s%d, 2" % (sROT, sHP))
    a("s_lshl_b32 s%d, s%d, 11" % (sABASE, sHG))
    a("s_lshl_b32 s%d, s%d, 20" % (sBBASE, sHG))
    a("v_lshrrev_b32 v%d, 3, v%d" % (t0, L))
    a("v_and_b32 v%d, 7, v%d" % (t1, L))
    a("v_lshrrev_b32 v%d, 1, v%d" % (t2, t0))
    a("s_lshl_b32 s%d, s%d, 7" % (sT0, sBG))
    a("s_lshl_b32 s%d, s%d, 4" % (sT1, sWAVE))
    a("s_add_u32 s%d, s%d, s%d" % (sT0, sT0, sT1))
    for i in range(2):
        a("v_add_u32 v%d, %d, v%d" % (t3, 4 * i, t2))
        a("v_xor_b32 v%d, v%d, v%d" % (t3, t3, t1))
        a("v_add_u32 v%d, s%d, v%d" % (t4, sT0, t0))
        a("v_add_u32 v%d, %d, v%d" % (t4, 8 * i, t4))
        a("v_lshlrev_b32 v%d, 13, v%d" % (t4, t4))
        a("v_lshl_add_u32 v%d, v%d, 4, v%d" % (wAOFF + i, t3, t4))
    a("v_lshrrev_b32 v%d, 4, v%d" % (t0, L))
    a("v_and_b32 v%d, 15, v%d" % (t1, L))
    a("v_lshlrev_b32 v%d, 2, v%d" % (t2, t0))
    a("v_xor_b32 v%d, v%d, v%d" % (t1, t1, t2))
    a("s_lshl_b32 s%d, s%d, 3" % (sT0, sWAVE))
    a("v_add_u32 v%d, s%d, v%d" % (t0, sT0, t0))
    a("v_lshlrev_b32 v%d, 10, v%d" % (t0, t0))
    a("v_lshl_add_u32 v%d, v%d, 4, v%d" % (t0, t1, t0))
    a("s_lshl_b32 s%d, s%d, 8" % (sT1, sHP))
    a("v_add_u32 v%d, s%d, v%d" % (wBOFF, sT1, t0))
    a("s_lshl_b32 s%d, s%d, 11" % (sM0A, sWAVE))
    a("s_add_u32 s%d, s%d, 16384" % (sM0B, sM0A))

    def dma2_setup(stage):
        a("s_add_u32 s%d, s%d, %d" % (sT3, sROT, stage))
        a("s_and_b32 s%d, s%d, 15" % (sT3, sT3))
        a("s_lshl_b32 s%d, s%d, 7" % (sAS, sT3))
        a("s_add_u32 s%d, s%d, s%d" % (sAS, sAS, sABASE))
        a("s_lshl_b32 s%d, s%d, 16" % (sT3, sT3))
        a("s_add_u32 s%d, s%d, s%d" % (sT3, sT3, sBBASE))

    def dma2_a(stage, i):
        buf = stage % K2_NB
        a("s_add_u32 m0, s%d, %d" % (sM0A, buf * K2_BUF + i * 1024))
        a("s_nop 0")
        a("buffer_load_dwordx4 v%d, %s, s%d offen lds" % (wAOFF + i, sr(S_A, 4), sAS))

    def dma2_b(stage, j):
        buf = stage % K2_NB
        a("s_add_u32 s%d, s%d, %d" % (sBS, sT3, j * 4096))
        a("s_add_u32 m0, s%d, %d" % (sM0B, buf * K2_BUF + j * 1024))
        a("s_nop 0")
        a("buffer_load_dwordx4 v%d, %s, s%d offen lds" % (wBOFF, sr(S_B, 4), sBS))

    def dma2(stage):
        dma2_setup(stage)
        dma2_a(stage, 0)
        dma2_a(stage, 1)
        dma2_b(stage, 0)
        dma2_b(stage, 1)

    D2 = K2_NB - 1
    log2 = []
    S_D = 48
    a("s_add_u32 s36, s30, 0x%x" % F_WS_OFF)
    a("s_addc_u32 s37, s31, 0")
    make_srd(a, S_D, 36, 8192)
    sG1, sCNT, sNON = 67, 69, 68
    sXCC = 12
    a("s_cmp_lg_u32 s%d, 0" % sWAVE)
    a("s_cbranch_scc1 F_S1_SKIP")
    a("v_readfirstlane_b32 s%d, v%d" % (sNON, vNON))
    a("s_and_b32 s%d, s2, 7" % sT0)
    a("s_lshl_b32 s%d, s%d, 3" % (sG1, sT0))
    a("s_add_u32 s%d, s%d, s%d" % (sG1, sG1, sBG))
    a("s_lshl_b32 s%d, s%d, 7" % (sG1, sG1))
    a("s_cmp_eq_u32 s%d, 0" % sNON)
    a("s_cselect_b32 s%d, s%d, s%d" % (sNON, sNT, sNON))
    a("s_getreg_b32 s%d, hwreg(HW_REG_XCC_ID)" % sXCC)
    a("s_and_b32 s%d, s%d, 7" % (sXCC, sXCC))

    def publish(base):
        a("s_lshl_b32 s%d, s%d, 3" % (sT0, sHP))
        a("s_add_u32 s%d, s%d, s%d" % (sT0, sT0, sG1))
        a("v_mov_b32 v%d, s%d" % (t0, sT0))
        a("v_mov_b32 v%d, s%d" % (t2, sNON))
        a("v_mov_b32 v%d, s%d" % (t3, sXCC))
        a("v_cmp_eq_u32 vcc, 0, v%d" % L)
        a("s_and_saveexec_b64 s[10:11], vcc")
        a("buffer_store_dwordx2 v[%d:%d], v%d, %s, 0 offen offset:%d sc0 sc1" % (t2, t3, t0, sr(S_D, 4), base))
        a("s_mov_b64 exec, s[10:11]")

    def waitall(tag, base):
        a("v_and_b32 v%d, 3, v%d" % (t0, L))
        a("v_lshlrev_b32 v%d, 3, v%d" % (t0, t0))
        a("v_add_u32 v%d, s%d, v%d" % (t0, sG1, t0))
        a("s_mov_b32 s%d, 0" % sCNT)
        a.label("%s_POLL" % tag)
        a("buffer_load_dwordx2 v[%d:%d], v%d, %s, 0 offen offset:%d sc0 sc1" % (t2, t3, t0, sr(S_D, 4), base))
        a("s_waitcnt vmcnt(0)")
        a("v_cmp_ne_u32 vcc, s%d, v%d" % (sNON, t2))
        a("s_nop 3")
        a("s_cmp_eq_u64 vcc, 0")
        a("s_cbranch_scc1 %s_OK" % tag)
        a("s_sleep 2")
        a("s_add_u32 s%d, s%d, 1" % (sCNT, sCNT))
        a("s_cmp_lt_u32 s%d, %d" % (sCNT, SPIN_MAX))
        a("s_cbranch_scc1 %s_POLL" % tag)
        a.label("%s_OK" % tag)

    publish(0)
    a.label("F_S1_SKIP")

    def peer_wait():
        a("s_cmp_lg_u32 s%d, 0" % sWAVE)
        a("s_cbranch_scc1 F_S1_DONE")
        waitall("F_S1A", 0)
        a("v_cmp_ne_u32 vcc, s%d, v%d" % (sXCC, t3))
        a("s_nop 3")
        if "forceslow" not in EXP:
            a("s_cmp_eq_u64 vcc, 0")
            a("s_cbranch_scc1 F_S1_DONE")
        a("buffer_wbl2 sc1")
        a("s_waitcnt vmcnt(0)")
        publish(64)
        waitall("F_S1B", 64)
        a("buffer_inv sc1")
        a("s_waitcnt vmcnt(0)")
        a.label("F_S1_DONE")

    stamp(a, 8)
    NINIT2 = 2
    for s in range(NINIT2):
        dma2(s)
        log2 += [("a", s)] * 2 + [("b", s)] * 2
    if STAMP and "p2diag" in EXP:
        stamp(a, 13)
        a("s_waitcnt vmcnt(14)")
        stamp(a, 2)
        a("s_waitcnt vmcnt(12)")
        stamp(a, 3)
    a("v_and_b32 v%d, 31, v%d" % (t0, L))
    a("v_lshrrev_b32 v%d, 5, v%d" % (t1, L))
    a("v_bfe_u32 v%d, v%d, 1, 3" % (t2, t0))
    a("s_lshl_b32 s%d, s%d, 6" % (sT0, sWM))
    a("v_add_u32 v%d, s%d, v%d" % (t3, sT0, t0))
    a("v_lshlrev_b32 v%d, 7, v%d" % (t3, t3))
    a("s_lshl_b32 s%d, s%d, 2" % (sT1, sG))
    for cc in range(2):
        a("v_add_u32 v%d, s%d, v%d" % (t4, sT1, t1))
        a("v_add_u32 v%d, %d, v%d" % (t4, 2 * cc, t4))
        a("v_xor_b32 v%d, v%d, v%d" % (t4, t4, t2))
        a("v_lshl_add_u32 v%d, v%d, 4, v%d" % (wAR + 2 * cc, t4, t3))
        a("v_add_u32 v%d, 4096, v%d" % (wAR + 2 * cc + 1, wAR + 2 * cc))
    a("v_lshrrev_b32 v%d, 4, v%d" % (t0, L))
    a("v_and_b32 v%d, 1, v%d" % (t1, t0))
    a("v_lshrrev_b32 v%d, 1, v%d" % (t0, t0))
    a("v_bfe_u32 v%d, v%d, 2, 2" % (t2, L))
    a("v_and_b32 v%d, 1, v%d" % (t3, L))
    a("v_bfe_u32 v%d, v%d, 1, 1" % (t4, L))
    a("v_lshl_add_u32 v%d, v%d, 1, v%d" % (t3, t3, t4))
    a("v_lshlrev_b32 v%d, 3, v%d" % (t3, t3))
    a("v_lshl_add_u32 v%d, v%d, 5, v%d" % (t3, t1, t3))
    a("v_lshl_add_u32 v%d, v%d, 3, v%d" % (t4, t0, t2))
    a("s_lshl_b32 s%d, s%d, 5" % (sT0, sG))
    a("v_add_u32 v%d, s%d, v%d" % (t4, sT0, t4))
    a("v_lshl_add_u32 v%d, v%d, 8, v%d" % (t4, t4, t3))
    a("v_add_u32 v%d, 16384, v%d" % (t4, t4))
    a("s_lshl_b32 s%d, s%d, 1" % (sT1, sWN))
    for nt in range(2):
        a("s_add_u32 s%d, s%d, %d" % (sT2, sT1, nt))
        a("v_xor_b32 v%d, s%d, v%d" % (t1, sT2, t2))
        a("v_lshl_add_u32 v%d, v%d, 6, v%d" % (wBR + nt, t1, t4))
    for k in (1, 2):
        for i in range(4):
            a("v_add_u32 v%d, 0x%x, v%d" % (wAR + 4 * k + i, k * 65536, wAR + i))
        for i in range(2):
            a("v_add_u32 v%d, 0x%x, v%d" % (wBR + 2 * k + i, k * 65536, wBR + i))
    for i in range(64):
        a("v_mov_b32 v%d, 0" % (vACC + i))

    def reads2(stage, cc, st):
        buf = stage % K2_NB
        k, bo = buf >> 1, (buf & 1) * K2_BUF
        for mt in range(2):
            a("ds_read_b128 %s, v%d %s" % (vr(wA[st] + 4 * mt, 4), wAR + 4 * k + 2 * cc + mt, ds_off(bo)))
        for nt in range(2):
            for p in range(2):
                a("ds_read_b64_tr_b16 %s, v%d %s" % (vr(wB[st] + 4 * nt + 2 * p, 2), wBR + 2 * k + nt, ds_off(bo + (16 * cc + 4 * p) * 256)))

    def mf(st, mt, nt, w):
        if w is not None:
            a("s_waitcnt lgkmcnt(%d)" % w)
        acc = vACC + 32 * mt + 16 * nt
        a("v_mfma_f32_32x32x16_bf16 %s, %s, %s, %s" % (vr(acc, 16), vr(wB[st] + 4 * nt, 4), vr(wA[st] + 4 * mt, 4), vr(acc, 16)))

    WAITS = int(os.environ.get("WAITS", "1"))
    nx2 = NINIT2
    for s in range(NST):
        if s == WAITS:
            peer_wait()
        idx = max(i for i, t in enumerate(log2) if t in (("a", s), ("b", s)))
        a("s_waitcnt vmcnt(%d)" % (len(log2) - 1 - idx))
        a("s_barrier")
        if s == 0:
            stamp(a, 9)
        reads2(s, 0, 0)
        todo = []
        while (s >= WAITS or nx2 < 4) and nx2 < NST and nx2 <= s + D2 and len(todo) < 2:
            todo.append(nx2)
            nx2 += 1
        ops = []
        for t in todo:
            ops += [[(dma2_setup, (t,)), (dma2_a, (t, 0))], [(dma2_a, (t, 1))], [(dma2_b, (t, 0))], [(dma2_b, (t, 1))]]
            log2 += [("a", t)] * 2 + [("b", t)] * 2
        order = ((0, 0), (1, 0), (0, 1), (1, 1))
        for q in range(4):
            if s > 0:
                mf(1, order[q][0], order[q][1], None)
            k = (len(ops) + 3 - q) // (4 - q) if q < 3 else len(ops)
            for grp in ops[:k]:
                for fn, args in grp:
                    fn(*args)
            ops = ops[k:]
        reads2(s, 1, 1)
        mf(0, 0, 0, 8)
        mf(0, 1, 0, None)
        mf(0, 0, 1, 6)
        mf(0, 1, 1, None)
        a("s_waitcnt lgkmcnt(0)")
    for mt, nt in ((0, 0), (1, 0), (0, 1), (1, 1)):
        mf(1, mt, nt, None)
    stamp(a, 10)
    a("s_barrier")
    RS = 528
    GS = 128 * RS
    a("v_and_b32 v%d, 31, v%d" % (t0, L))
    a("v_lshrrev_b32 v%d, 5, v%d" % (t1, L))
    a("s_lshl_b32 s%d, s%d, 6" % (sT0, sWM))
    a("v_add_u32 v%d, s%d, v%d" % (t0, sT0, t0))
    a("s_movk_i32 s%d, %d" % (sT1, RS))
    a("v_mul_lo_u32 v%d, v%d, s%d" % (t0, t0, sT1))
    a("v_lshl_add_u32 v%d, v%d, 5, v%d" % (t0, t1, t0))
    a("s_mul_i32 s%d, s%d, %d" % (sT0, sG, GS))
    a("s_lshl_b32 s%d, s%d, 8" % (sT1, sWN))
    a("s_add_u32 s%d, s%d, s%d" % (sT0, sT0, sT1))
    a("v_add_u32 v%d, s%d, v%d" % (t0, sT0, t0))
    a("s_nop 3")
    for mt in range(2):
        for nt in range(2):
            for jj in range(2):
                for qq in range(2):
                    a("ds_write_b128 v%d, %s %s" % (t0, vr(vACC + 32 * mt + 16 * nt + 8 * jj + 4 * qq, 4), ds_off(mt * 32 * RS + (nt * 32 + 16 * jj + 4 * qq) * 4)))
        a("s_waitcnt lgkmcnt(4)")
    a("s_waitcnt lgkmcnt(0)")
    a("s_barrier")
    a("v_lshrrev_b32 v%d, 5, v%d" % (t1, L))
    a("v_and_b32 v%d, 31, v%d" % (t2, L))
    a("s_lshl_b32 s%d, s%d, 4" % (sT0, sWAVE))
    a("v_add_u32 v%d, s%d, v%d" % (t3, sT0, t1))
    a("s_movk_i32 s%d, %d" % (sT1, RS))
    a("v_mul_lo_u32 v%d, v%d, s%d" % (t3, t3, sT1))
    a("v_lshl_add_u32 v%d, v%d, 4, v%d" % (t3, t2, t3))
    a("v_add_u32 v%d, 0x%x, v%d" % (t4, GS, t3))

    def rd(i):
        a("ds_read_b128 %s, v%d %s" % (vr(vACC + 4 * i, 4), t3, ds_off(2 * RS * i)))
        a("ds_read_b128 %s, v%d %s" % (vr(vACC + 32 + 4 * i, 4), t4, ds_off(2 * RS * i)))
    for i in range(6):
        rd(i)
    a("v_lshlrev_b32 v%d, 11, v%d" % (t1, t1))
    a("v_lshl_add_u32 v%d, v%d, 4, v%d" % (t1, t2, t1))
    a("s_lshl_b32 s%d, s%d, 7" % (sPB, sBG))
    a("s_add_u32 s%d, s%d, s%d" % (sPB, sPB, sT0))
    a("s_lshl_b32 s%d, s%d, 11" % (sPB, sPB))
    a("s_lshl_b32 s%d, s%d, 9" % (sT0, sHP))
    a("s_add_u32 s%d, s%d, s%d" % (sPB, sPB, sT0))
    a("s_lshl_b32 s%d, s%d, 21" % (sT0, sHG))
    a("s_add_u32 s%d, s%d, s%d" % (sPB, sPB, sT0))
    for i in range(8):
        a("s_waitcnt lgkmcnt(%d)" % (10 if i < 2 else 2 * (7 - i)))
        if i < 2:
            rd(6 + i)
        for q in range(4):
            a("v_add_f32 v%d, v%d, v%d" % (vACC + 4 * i + q, vACC + 4 * i + q, vACC + 32 + 4 * i + q))
        a("s_add_u32 s%d, s%d, %d" % (sT0, sPB, i * 4096))
        a("buffer_store_dwordx4 %s, v%d, %s, s%d offen" % (vr(vACC + 4 * i, 4), t1, sr(S_P, 4), sT0))
    if STAMP:
        stamp(a, 11)
        a("s_waitcnt vmcnt(0)")
        stamp(a, 12)
        a("s_memrealtime s[98:99]")
        a("s_waitcnt lgkmcnt(0)")
        a("s_mov_b32 s97, s98")
        stamp_dump(a, 0, 40, vTID)
    if "diag" in EXP:
        a("s_waitcnt vmcnt(0)")
        a("s_memrealtime s[98:99]")
        a("s_waitcnt lgkmcnt(0)")
        a("s_add_u32 s36, s30, 0x%x" % (60 << 20))
        a("s_addc_u32 s37, s31, 0")
        make_srd(a, 40, 36, 65536)
        a("s_lshl_b32 s3, s2, 3")
        a("v_mov_b32 v0, s3")
        a("v_mov_b32 v2, s96")
        a("v_mov_b32 v3, s98")
        a("s_cmp_lg_u32 s%d, 0" % sWAVE)
        a("s_cbranch_scc1 F_DONE")
        a("buffer_store_dwordx2 v[2:3], v0, s[40:43], 0 offen")
    a.label("F_DONE")
    a("s_endpgm")
    return kernel_desc(name, NV, 100)


def gen_k3(a):
    name = "k3_kernel"
    kernel_begin(a, name)
    a("s_cmp_ge_u32 s2, %d" % (0 if "k3empty" in EXP else 256))
    a("s_cbranch_scc1 K3_DONE")
    if "diag" in EXP:
        a("s_memrealtime s[36:37]")
    a("s_load_dwordx2 s[4:5], s[0:1], 80")
    a("s_load_dwordx2 s[6:7], s[0:1], 96")
    a("s_lshl_b32 s3, s2, 8")
    a("v_add_u32 v1, s3, v0")
    a("s_waitcnt lgkmcnt(0)")
    a("s_add_u32 s6, s6, 0x%x" % P_WS_OFF)
    a("s_addc_u32 s7, s7, 0")
    make_srd(a, 8, 6, 16 << 20)
    make_srd(a, 12, 4, 2 << 20)
    a("v_lshlrev_b32 v2, 4, v1")
    for i in range(4):
        blk = i >> 1
        for ks in range(4):
            a("s_mov_b32 s%d, 0x%x" % (16 + 4 * i + ks, blk * (8 << 20) + ks * (2 << 20) + (i & 1) * (1 << 20)))
    for i in range(4):
        for ks in range(4):
            a("buffer_load_dwordx4 %s, v2, s[8:11], s%d offen" % (vr(8 + 16 * i + 4 * ks, 4), 16 + 4 * i + ks))
    a("v_lshrrev_b32 v3, 7, v1")
    a("v_lshlrev_b32 v3, 11, v3")
    a("v_and_b32 v4, 127, v1")
    a("v_lshl_add_u32 v3, v4, 3, v3")
    for i in range(4):
        a("s_waitcnt vmcnt(%d)" % (12 - 4 * i))
        b = 8 + 16 * i
        for q in range(4):
            a("v_add_f32 v%d, v%d, v%d" % (b + q, b + q, b + 4 + q))
            a("v_add_f32 v%d, v%d, v%d" % (b + 8 + q, b + 8 + q, b + 12 + q))
        for q in range(4):
            a("v_add_f32 v%d, v%d, v%d" % (b + q, b + q, b + 8 + q))
        a("v_cvt_pk_bf16_f32 v%d, v%d, v%d" % (b, b, b + 1))
        a("v_cvt_pk_bf16_f32 v%d, v%d, v%d" % (b + 1, b + 2, b + 3))
        a("s_mov_b32 s16, 0x%x" % ((i >> 1) * 1024 + (i & 1) * 512 * 2048))
        a("buffer_store_dwordx2 %s, v3, s[12:15], s16 offen" % vr(b, 2))
    if "diag" in EXP:
        a("s_cmp_lg_u32 s2, 0")
        a("s_cbranch_scc1 K3_DONE")
        a("s_waitcnt vmcnt(0)")
        a("s_memrealtime s[38:39]")
        a("s_load_dwordx2 s[4:5], s[0:1], 88")
        a("s_load_dwordx2 s[6:7], s[0:1], 96")
        a("s_waitcnt lgkmcnt(0)")
        a("s_add_u32 s6, s6, 0x%x" % (60 << 20))
        a("s_addc_u32 s7, s7, 0")
        make_srd(a, 8, 6, 65536)
        make_srd(a, 12, 4, 256)
        a("v_lshlrev_b32 v1, 3, v0")
        a("buffer_load_dwordx2 v[4:5], v1, s[8:11], 0 offen")
        a("s_waitcnt vmcnt(0)")
        a("v_cmp_gt_u32 vcc, 6, v0")
        a("s_and_saveexec_b64 s[20:21], vcc")
        a("buffer_store_dwordx2 v[4:5], v1, s[12:15], 0 offen")
        a("s_mov_b64 exec, s[20:21]")
        a("v_mov_b32 v6, s36")
        a("v_mov_b32 v7, s38")
        a("v_mov_b32 v1, 48")
        a("v_cmp_eq_u32 vcc, 0, v0")
        a("s_and_saveexec_b64 s[20:21], vcc")
        a("buffer_store_dwordx2 v[6:7], v1, s[12:15], 0 offen")
    a.label("K3_DONE")
    a("s_endpgm")
    return kernel_desc(name, 80, 40)


def main():
    a = Asm()
    launches = [("k12_kernel", 256, 512, F_LDS), ("k3_kernel", 256, 256, 0)]
    hdr = HEADER
    for k, g, b, l in launches:
        hdr += "; @launch kernel=%s grid=(%d,1,1) block=(%d,1,1) lds=%d\n" % (k, g, b, l)
    a.raw('.amdgcn_target "amdgcn-amd-amdhsa--gfx950"')
    a.raw(".text")
    descs = [gen_fused(a), gen_k3(a)]
    a.raw('.section .rodata,"a"')
    for d in descs:
        a.raw(".p2align 6")
        a.raw(d)
    open(OUT, "w").write(hdr + a.text())


if __name__ == "__main__":
    main()
```

```python
import sys, os
EXP = os.environ.get("EXP", "")

NAME = "concat_heads__gqa_block_cached__mha_block_cached__near_ridge"
OUT = os.environ.get("OUT", "cdna_kernels/%s.s" % NAME)

HEADER = """; Kernarg layout for this problem (104 bytes, ptrs only, base s[0:1]):
"""


class Asm:
    def __init__(self):
        self.lines = []

    def __call__(self, s):
        self.lines.append("    " + s)

    def label(self, s):
        self.lines.append(s + ":")

    def raw(self, s):
        self.lines.append(s)

    def text(self):
        return "\n".join(self.lines) + "\n"


def vr(base, n):
    return "v[%d:%d]" % (base, base + n - 1)


def sr(base, n):
    return "s[%d:%d]" % (base, base + n - 1)


def buf_off(o):
    assert 0 <= o < 4096, o
    return "offset:%d" % o


def ds_off(o):
    assert 0 <= o < 65536, o
    return "offset:%d" % o


def kernel_begin(a, name):
    a.raw(".globl %s" % name)
    a.raw(".p2align 8")
    a.raw(".type %s,@function" % name)
    a.label(name)


def kernel_desc(name, vgpr, sgpr, accum=None):
    if accum is None:
        accum = (vgpr + 3) // 4 * 4
    return """.amdhsa_kernel %s
  .amdhsa_next_free_vgpr %d
  .amdhsa_next_free_sgpr %d
  .amdhsa_accum_offset %d
  .amdhsa_group_segment_fixed_size 0
  .amdhsa_kernarg_size 104
  .amdhsa_user_sgpr_count 2
  .amdhsa_user_sgpr_kernarg_segment_ptr 1
  .amdhsa_system_sgpr_workgroup_id_x 1
.end_amdhsa_kernel
""" % (name, vgpr, sgpr, accum)


def make_srd(a, d, base_lo, size):
    a("s_mov_b32 s%d, s%d" % (d, base_lo))
    a("s_and_b32 s%d, s%d, 0xffff" % (d + 1, base_lo + 1))
    a("s_mov_b32 s%d, 0x%x" % (d + 2, size))
    a("s_mov_b32 s%d, 0x00020000" % (d + 3))


STAMP = "stamp" in EXP
KVMOD = " sc0 sc1 nt" if "kvnt" in EXP else ""
WMOD = " nt" if "wnt" in EXP else ""
DMOD = " nt" if "dnt" in EXP else ""
NSTAMP = 16


def stamp(a, idx):
    if STAMP:
        assert idx < NSTAMP
        a("s_memtime s[98:99]")
        a("s_waitcnt lgkmcnt(0)")
        a("s_mov_b32 s%d, s98" % (82 + idx))


def stamp_init(a, vtid):
    if STAMP:
        a("v_mov_b32 v%d, v0" % vtid)
        for i in range(NSTAMP):
            a("s_mov_b32 s%d, 0" % (82 + i))


def stamp_dump(a, kidx, vtmp, vtid):
    if not STAMP:
        return
    a("s_load_dwordx2 s[4:5], s[0:1], 96")
    a("s_waitcnt lgkmcnt(0)")
    a("s_add_u32 s4, s4, 0x%x" % ((64 << 20) + kidx * 262144))
    a("s_addc_u32 s5, s5, 0")
    a("s_and_b32 s5, s5, 0xffff")
    a("s_mov_b32 s6, 262144")
    a("s_mov_b32 s7, 0x00020000")
    a("s_lshl_b32 s3, s2, 10")
    a("v_lshrrev_b32 v%d, 6, v%d" % (vtmp, vtid))
    a("v_lshlrev_b32 v%d, 6, v%d" % (vtmp, vtmp))
    a("v_add_u32 v%d, s3, v%d" % (vtmp, vtmp))
    a("v_and_b32 v%d, 63, v%d" % (vtid, vtid))
    a("v_cmp_eq_u32 vcc, 0, v%d" % vtid)
    a("s_and_saveexec_b64 s[8:9], vcc")
    for i in range(NSTAMP):
        a("v_mov_b32 v%d, s%d" % (vtmp + 1, 82 + i))
        a("buffer_store_dword v%d, v%d, s[4:7], 0 offen offset:%d" % (vtmp + 1, vtmp, 4 * i))
        a("s_nop 1")
    a("s_mov_b64 exec, s[8:9]")


O_WS_OFF = 0
P_WS_OFF = 16 << 20

K1_BUF = 24576
K1_NB = 6
K2_BUF = 32768
K2_NB = 5
F_LDS = 163840
SPIN_MAX = 200000
F_WS_OFF = 48 << 20
WOPF = [5, 7, 9, 11]


def gen_fused(a):
    name = NAME + "_kernel"
    kernel_begin(a, name)
    S_X, S_W, S_K, S_V, S_O = 40, 44, 48, 52, 56
    sWAVE, sBL, sHL, sBG, sH0, sB, sH = 60, 61, 62, 63, 64, 65, 66
    sKB, sKB2, sOB = 67, 68, 69
    sT0, sT1, sT2, sT3 = 70, 71, 72, 73
    sM0X, sM0W = 74, 75
    sXS, sWS = 76, 77
    sSCALE, sLOG2E = 78, 79
    sBLK, sHG, sHP = 80, 81, 39
    vACC = 0
    vKR = 64
    vVR = 96
    vA = [128, 144]
    vB = [160, 164]
    vXR = 168
    vWR = 174
    vVOFF = 187
    vXOFF = 188
    vWOFF = 189
    vT = 190
    vLANE = 200
    vTID = 201
    vJ = 204
    NV = 216
    L = vLANE
    t0, t1, t2, t3, t4 = vT, vT + 1, vT + 2, vT + 3, vT + 4
    NST = 16

    a("s_cmp_ge_u32 s2, 256")
    a("s_cbranch_scc1 F_DONE")
    stamp_init(a, vTID)
    stamp(a, 0)
    if "diag" in EXP:
        a("s_memrealtime s[98:99]")
        a("s_waitcnt lgkmcnt(0)")
        a("s_mov_b32 s96, s98")
    if STAMP:
        a("s_memrealtime s[98:99]")
        a("s_waitcnt lgkmcnt(0)")
        a("s_mov_b32 s96, s98")
    a("s_load_dwordx16 s[16:31], s[0:1], 0")
    a("s_load_dwordx8 s[32:39], s[0:1], 64")
    a("s_load_dwordx2 s[14:15], s[0:1], 96")
    a("v_lshrrev_b32 v%d, 6, v0" % vT)
    a("v_and_b32 v%d, 63, v0" % vLANE)
    a("s_nop 0")
    a("v_readfirstlane_b32 s%d, v%d" % (sWAVE, vT))
    if "staticid" not in EXP:
        a("s_load_dwordx2 s[10:11], s[0:1], 88")
        a("s_getreg_b32 s12, hwreg(HW_REG_XCC_ID)")
        a("s_and_b32 s12, s12, 7")
        a("s_cmp_lg_u32 s%d, 0" % sWAVE)
        a("s_cbranch_scc1 F_TK_WAIT")
        a("s_waitcnt lgkmcnt(0)")
        make_srd(a, 4, 10, 256)
        a("s_lshl_b32 s13, s12, 2")
        a("v_mov_b32 v%d, s13" % (vT + 1))
        a("v_mov_b32 v%d, 1" % (vT + 2))
        a("v_mov_b32 v%d, 0" % (vT + 3))
        a("v_cmp_eq_u32 vcc, 0, v%d" % vLANE)
        a("s_and_saveexec_b64 s[8:9], vcc")
        a("buffer_atomic_add v%d, v%d, s[4:7], 0 offen sc0" % (vT + 2, vT + 1))
        a("s_waitcnt vmcnt(0)")
        a("ds_write_b32 v%d, v%d" % (vT + 3, vT + 2))
        a("s_mov_b64 exec, s[8:9]")
        a("s_waitcnt lgkmcnt(0)")
        a.label("F_TK_WAIT")
        a("s_barrier")
        a("v_mov_b32 v%d, 0" % (vT + 3))
        a("ds_read_b32 v%d, v%d" % (vT + 2, vT + 3))
        a("s_waitcnt lgkmcnt(0)")
        a("v_readfirstlane_b32 s13, v%d" % (vT + 2))
        a("s_nop 3")
        a("s_barrier")
        a("s_cmp_ge_u32 s13, 32")
        a("s_cbranch_scc1 F_DONE")
        a("s_lshl_b32 s13, s13, 3")
        a("s_add_u32 s2, s13, s12")
    a("s_and_b32 s%d, s2, 7" % sT0)
    a("s_lshr_b32 s%d, s2, 3" % sT1)
    a("s_lshr_b32 s%d, s%d, 2" % (sBG, sT1))
    a("s_and_b32 s%d, s%d, 3" % (sT1, sT1))
    a("s_and_b32 s%d, s%d, 3" % (sHG, sT0))
    a("s_lshl_b32 s%d, s%d, 3" % (sH0, sHG))
    a("s_lshl_b32 s%d, s%d, 1" % (sT2, sT1))
    a("s_add_u32 s%d, s%d, s%d" % (sH0, sH0, sT2))
    a("s_lshr_b32 s%d, s%d, 2" % (sBLK, sT0))
    a("s_mov_b32 s13, s%d" % sT1)
    a("v_lshrrev_b32 v%d, 2, v%d" % (t0, L))
    a("v_and_b32 v%d, 3, v%d" % (t1, L))
    a("v_lshrrev_b32 v%d, 4, v%d" % (t2, L))
    a("v_xor_b32 v%d, v%d, v%d" % (t1, t1, t2))
    a("s_lshl_b32 s%d, s%d, 7" % (sT0, sBG))
    a("s_lshl_b32 s%d, s%d, 4" % (sT1, sWAVE))
    a("s_add_u32 s%d, s%d, s%d" % (sT0, sT0, sT1))
    a("v_add_u32 v%d, s%d, v%d" % (t0, sT0, t0))
    a("v_lshlrev_b32 v%d, 10, v%d" % (t0, t0))
    a("v_lshl_add_u32 v%d, v%d, 4, v%d" % (vXOFF, t1, t0))
    a("s_lshl_b32 s%d, s%d, 10" % (sM0X, sWAVE))
    a("v_lshrrev_b32 v%d, 4, v%d" % (t0, L))
    a("v_and_b32 v%d, 15, v%d" % (t1, L))
    a("v_lshlrev_b32 v%d, 2, v%d" % (t2, t0))
    a("v_xor_b32 v%d, v%d, v%d" % (t1, t1, t2))
    a("s_lshr_b32 s%d, s%d, 1" % (sT0, sWAVE))
    a("s_lshl_b32 s%d, s%d, 3" % (sT0, sT0))
    a("v_add_u32 v%d, s%d, v%d" % (t0, sT0, t0))
    a("v_lshlrev_b32 v%d, 13, v%d" % (t0, t0))
    a("v_lshl_add_u32 v%d, v%d, 4, v%d" % (t0, t1, t0))
    a("s_and_b32 s%d, s%d, 1" % (sT1, sWAVE))
    a("s_add_u32 s%d, s%d, s%d" % (sT2, sH0, sT1))
    a("s_lshl_b32 s%d, s%d, 8" % (sT2, sT2))
    a("v_add_u32 v%d, s%d, v%d" % (vWOFF, sT2, t0))
    a("s_lshl_b32 s%d, s%d, 13" % (sM0W, sT1))
    a("s_lshl_b32 s%d, s%d, 8" % (sT0, sT0))
    a("s_add_u32 s%d, s%d, s%d" % (sM0W, sM0W, sT0))
    a("s_add_u32 s%d, s%d, 8192" % (sM0W, sM0W))
    a("s_waitcnt lgkmcnt(0)")
    a("s_cmp_eq_u32 s%d, 0" % sBLK)
    for i in range(5):
        a("s_cselect_b32 s%d, s%d, s%d" % (16 + 2 * i, 16 + 2 * i, 26 + 2 * i))
        a("s_cselect_b32 s%d, s%d, s%d" % (17 + 2 * i, 17 + 2 * i, 27 + 2 * i))
    a("s_mov_b32 s26, s36")
    a("s_mov_b32 s27, s37")
    a("s_mov_b32 s28, s38")
    a("s_mov_b32 s29, s39")
    a("s_mov_b32 s30, s14")
    a("s_mov_b32 s31, s15")
    a("s_mov_b32 s%d, s13" % sHP)
    make_srd(a, S_X, 16, 1 << 20)
    make_srd(a, S_W, 22, 4 << 20)
    vNON = 212
    sNT = 8

    def dma_x(stage):
        buf = stage % K1_NB
        a("s_mov_b32 s%d, %d" % (sXS, stage * 64))
        a("s_add_u32 m0, s%d, %d" % (sM0X, buf * K1_BUF))
        a("s_nop 0")
        a("buffer_load_dwordx4 v%d, %s, s%d offen%s lds" % (vXOFF, sr(S_X, 4), sXS, DMOD))

    def dma_w(stage, j):
        buf = stage % K1_NB
        a("s_mov_b32 s%d, %d" % (sWS, stage * 262144 + j * 32768))
        a("s_add_u32 m0, s%d, %d" % (sM0W, buf * K1_BUF + j * 1024))
        a("s_nop 0")
        a("buffer_load_dwordx4 v%d, %s, s%d offen%s lds" % (vWOFF, sr(S_W, 4), sWS, DMOD))

    NINIT = 2
    for s in range(NINIT):
        dma_x(s)
        dma_w(s, 0)
        dma_w(s, 1)
    make_srd(a, S_K, 18, 8 << 20)
    make_srd(a, S_V, 20, 8 << 20)
    a("s_lshl_b32 s%d, s%d, 23" % (sT0, sBLK))
    a("s_add_u32 s36, s30, s%d" % sT0)
    a("s_addc_u32 s37, s31, 0")
    make_srd(a, S_O, 36, 8 << 20)
    a("s_lshr_b32 s%d, s%d, 1" % (sBL, sWAVE))
    a("s_and_b32 s%d, s%d, 1" % (sHL, sWAVE))
    a("s_lshl_b32 s%d, s%d, 2" % (sB, sBG))
    a("s_add_u32 s%d, s%d, s%d" % (sB, sB, sBL))
    a("s_add_u32 s%d, s%d, s%d" % (sH, sH0, sHL))
    a("s_mov_b32 s%d, 0x3db504f3" % sSCALE)
    a("s_mov_b32 s%d, 0x3fb8aa3b" % sLOG2E)
    a("v_and_b32 v%d, 31, v%d" % (t0, L))
    a("v_lshrrev_b32 v%d, 5, v%d" % (t1, L))
    a("v_lshlrev_b32 v%d, 4, v%d" % (vVOFF, L))
    a("s_lshl_b32 s%d, s%d, 5" % (sKB, sB))
    a("s_add_u32 s%d, s%d, s%d" % (sKB, sKB, sH))
    a("s_lshl_b32 s%d, s%d, 13" % (sKB, sKB))
    a("s_add_u32 s%d, s%d, 4096" % (sKB2, sKB))

    def kv_load(idx):
        if idx < 8:
            a("buffer_load_dwordx4 %s, v%d, %s, s%d offen %s" % (vr(vKR + 4 * idx, 4), vVOFF, sr(S_K, 4), sKB if idx < 4 else sKB2, buf_off(1024 * (idx & 3))) + KVMOD)
        else:
            j = idx - 8
            a("buffer_load_dwordx4 %s, v%d, %s, s%d offen %s" % (vr(vVR + 4 * j, 4), vVOFF, sr(S_V, 4), sKB if j < 4 else sKB2, buf_off(1024 * (j & 3))) + KVMOD)

    a("v_bfe_u32 v%d, v%d, 2, 2" % (t2, t0))
    a("s_lshl_b32 s%d, s%d, 5" % (sT0, sBL))
    a("v_add_u32 v%d, s%d, v%d" % (t3, sT0, t0))
    a("v_lshlrev_b32 v%d, 6, v%d" % (t3, t3))
    for c in range(2):
        a("v_add_u32 v%d, %d, v%d" % (t4, 2 * c, t1))
        a("v_xor_b32 v%d, v%d, v%d" % (t4, t4, t2))
        a("v_lshl_add_u32 v%d, v%d, 4, v%d" % (vXR + c, t4, t3))
        for k in (1, 2):
            a("v_add_u32 v%d, %d, v%d" % (vXR + 2 * k + c, 2 * k * K1_BUF, vXR + c))
    a("v_lshrrev_b32 v%d, 4, v%d" % (t0, L))
    a("v_and_b32 v%d, 1, v%d" % (t1, t0))
    a("v_lshrrev_b32 v%d, 1, v%d" % (t0, t0))
    a("v_bfe_u32 v%d, v%d, 2, 2" % (t2, L))
    a("v_and_b32 v%d, 1, v%d" % (t3, L))
    a("v_bfe_u32 v%d, v%d, 1, 1" % (t4, L))
    a("v_lshl_add_u32 v%d, v%d, 1, v%d" % (t3, t3, t4))
    a("v_lshlrev_b32 v%d, 3, v%d" % (t3, t3))
    a("v_lshl_add_u32 v%d, v%d, 5, v%d" % (t3, t1, t3))
    a("v_lshl_add_u32 v%d, v%d, 3, v%d" % (t4, t0, t2))
    a("v_lshl_add_u32 v%d, v%d, 8, v%d" % (t4, t4, t3))
    a("s_lshl_b32 s%d, s%d, 13" % (sT0, sHL))
    a("s_add_u32 s%d, s%d, 8192" % (sT0, sT0))
    a("v_add_u32 v%d, s%d, v%d" % (t4, sT0, t4))
    for T in range(4):
        a("v_xor_b32 v%d, %d, v%d" % (t1, T, t2))
        a("v_lshl_add_u32 v%d, v%d, 6, v%d" % (vWR + T, t1, t4))
        for k in (1, 2):
            a("v_add_u32 v%d, %d, v%d" % (vWR + 4 * k + T, 2 * k * K1_BUF, vWR + T))
    for i in range(64):
        a("v_mov_b32 v%d, 0" % (vACC + i))

    def reads(stage, c, st):
        buf = stage % K1_NB
        third, bo = buf >> 1, (buf & 1) * K1_BUF
        a("ds_read_b128 %s, v%d %s" % (vr(vB[st], 4), vXR + 2 * third + c, ds_off(bo)))
        for T in range(4):
            for p in range(2):
                a("ds_read_b64_tr_b16 %s, v%d %s" % (vr(vA[st] + 4 * T + 2 * p, 2), vWR + 4 * third + T, ds_off(bo + (16 * c + 4 * p) * 256)))

    def mfma1(st, T, w):
        if w is not None:
            a("s_waitcnt lgkmcnt(%d)" % w)
        a("v_mfma_f32_32x32x16_bf16 %s, %s, %s, %s" % (vr(vACC + 16 * T, 16), vr(vA[st] + 4 * T, 4), vr(vB[st], 4), vr(vACC + 16 * T, 16)))

    make_srd(a, 4, 24, 4 << 20)
    a("s_lshr_b32 s%d, s2, 3" % sT0)
    a("s_lshl_b32 s%d, s%d, 5" % (sT0, sT0))
    a("s_lshl_b32 s%d, s%d, 2" % (sT1, sWAVE))
    a("s_add_u32 s%d, s%d, s%d" % (sT0, sT0, sT1))
    a("s_lshl_b32 s%d, s%d, 10" % (sT1, sHG))
    a("s_add_u32 s%d, s%d, s%d" % (sT0, sT0, sT1))
    a("s_lshl_b32 s9, s%d, 10" % sT0)
    stamp(a, 1)
    log = []
    for s in range(NINIT):
        log += [("d", s)] * 3
    D = K1_NB - 1
    nxt = NINIT
    for s in range(NST):
        idx = max([i for i, t in enumerate(log) if t == ("d", s)], default=-1)
        n = len(log) - 1 - idx
        a("s_waitcnt vmcnt(%d)" % min(n, 63))
        a("s_barrier")
        if s in (0, 8):
            stamp(a, {0: 2, 8: 3}[s])
        reads(s, 0, 0)
        todo = []
        while nxt < NST and nxt <= s + D and len(todo) < 2:
            todo.append(nxt)
            nxt += 1
        ops = []
        for t in todo:
            ops += [(dma_x, (t,)), (dma_w, (t, 0)), (dma_w, (t, 1))]
            log += [("d", t)] * 3
        if s > 0:
            for T in range(4):
                mfma1(1, T, None)
                k = (len(ops) + 3 - T) // (4 - T) if T < 3 else len(ops)
                for f, args in ops[:k]:
                    f(*args)
                ops = ops[k:]
        else:
            for f, args in ops:
                f(*args)
        a("s_waitcnt lgkmcnt(6)")
        reads(s, 1, 1)
        mfma1(0, 0, 15)
        kv_load(s)
        log.append(("kv", s))
        if s == 10:
            a("s_cmp_lg_u32 s%d, 0" % sWAVE)
            a("s_cbranch_scc1 F_NON_SKIP")
            make_srd(a, 12, 28, 256)
            a("s_memrealtime s[10:11]")
            a("s_waitcnt lgkmcnt(0)")
            a("s_or_b32 s%d, s10, 1" % sNT)
            a("v_mov_b32 v%d, s%d" % (vNON, sNT))
            a("v_mov_b32 v%d, 0" % (vNON + 1))
            a("v_mov_b32 v%d, 128" % (vNON + 2))
            a("v_cmp_eq_u32 vcc, 0, v%d" % L)
            a("s_and_saveexec_b64 s[10:11], vcc")
            a("buffer_atomic_cmpswap v[%d:%d], v%d, s[12:15], 0 offen sc0 sc1" % (vNON, vNON + 1, vNON + 2))
            a("s_mov_b64 exec, s[10:11]")
            a.label("F_NON_SKIP")


        mfma1(0, 1, 13)
        if "nowopf" not in EXP and s in WOPF:
            i = WOPF.index(s)
            a("buffer_load_dwordx4 %s, v%d, s[4:7], s9 offen %s" % (vr(vJ + 4 * (i & 1), 4), vVOFF, buf_off(i * 1024)))
            log.append(("wo", s))
        mfma1(0, 2, 11)
        mfma1(0, 3, 9)
        a("s_waitcnt lgkmcnt(0)")
    for T in range(4):
        mfma1(1, T, None)
    stamp(a, 4)
    a("s_barrier")
    a("s_waitcnt vmcnt(0)")
    stamp(a, 5)
    S_WO = 44
    make_srd(a, S_WO, 24, 4 << 20)
    u0, u1, u2, u3, u4 = vT + 5, vT + 6, vT + 7, vT + 8, vT + 9
    a("v_lshrrev_b32 v%d, 4, v%d" % (u0, L))
    a("v_and_b32 v%d, 15, v%d" % (u1, L))
    a("v_lshlrev_b32 v%d, 2, v%d" % (u2, u0))
    a("v_xor_b32 v%d, v%d, v%d" % (u1, u1, u2))
    a("v_lshlrev_b32 v%d, 8, v%d" % (u0, u0))
    a("v_lshl_add_u32 v%d, v%d, 4, v%d" % (u0, u1, u0))
    a("s_lshl_b32 s%d, s%d, 13" % (sT0, sWAVE))
    a("v_add_u32 v%d, s%d, v%d" % (u0, sT0, u0))
    a("v_lshrrev_b32 v%d, 4, v%d" % (u3, L))
    a("v_and_b32 v%d, 15, v%d" % (u4, L))
    a("v_xor_b32 v%d, v%d, v%d" % (u4, u4, u3))
    a("v_lshlrev_b32 v%d, 8, v%d" % (u3, u3))
    a("v_lshl_add_u32 v%d, v%d, 4, v%d" % (u3, u4, u3))
    a("v_add_u32 v%d, s%d, v%d" % (u3, sT0, u3))
    a("v_add_u32 v%d, 0x10000, v%d" % (u3, u3))
    for j in range(8):
        a("v_xor_b32 v%d, %d, v%d" % (u4, 64 * (j & 3), u3))
        a("ds_write_b128 v%d, %s %s" % (u4, vr(vKR + 4 * j, 4), ds_off(1024 * j)))
    for j in range(8):
        a("ds_write_b128 v%d, %s %s" % (u0, vr(vVR + 4 * j, 4), ds_off(1024 * j)))
    a("v_and_b32 v%d, 31, v%d" % (u1, L))
    a("v_lshrrev_b32 v%d, 5, v%d" % (u2, L))
    a("v_and_b32 v%d, 15, v%d" % (u4, u1))
    a("v_xor_b32 v%d, v%d, v%d" % (u4, u4, u2))
    a("v_lshlrev_b32 v%d, 8, v%d" % (u1, u1))
    a("v_lshl_add_u32 v%d, v%d, 4, v%d" % (u1, u4, u1))
    a("v_add_u32 v%d, s%d, v%d" % (u1, sT0, u1))
    a("v_add_u32 v%d, 0x10000, v%d" % (u1, u1))
    a("s_waitcnt lgkmcnt(7)")
    for jj in range(8):
        a("v_xor_b32 v%d, %d, v%d" % (u4, 32 * jj, u1))
        a("ds_read_b128 %s, v%d" % (vr(vKR + 4 * jj, 4), u4))
    a("v_lshl_add_u32 v%d, v%d, 2, v%d" % (t4, t0, t2))
    a("v_lshl_add_u32 v%d, v%d, 8, v%d" % (t4, t4, t3))
    a("v_add_u32 v%d, s%d, v%d" % (t4, sT0, t4))
    for T in range(4):
        a("v_xor_b32 v%d, %d, v%d" % (t1, T, t2))
        a("v_lshl_add_u32 v%d, v%d, 6, v%d" % (vWR + T, t1, t4))
    vQ = 128
    for i in range(32):
        a("v_cvt_pk_bf16_f32 v%d, v%d, v%d" % (vQ + i, vACC + 2 * i, vACC + 2 * i + 1))
    vS = 0
    for j in range(8):
        a("s_waitcnt lgkmcnt(%d)" % (7 - j))
        a("v_mfma_f32_32x32x16_bf16 %s, %s, %s, %s" % (vr(vS, 16), vr(vKR + 4 * j, 4), vr(vQ + 4 * j, 4), "0" if j == 0 else vr(vS, 16)))
    vVF = 32
    for T in range(4):
        for c2 in range(2):
            for p in range(2):
                a("ds_read_b64_tr_b16 %s, v%d %s" % (vr(vVF + 8 * T + 4 * c2 + 2 * p, 2), vWR + T, ds_off((16 * c2 + 8 * p) * 256)))
    vP = 16
    vE = 96
    for i in range(8):
        a("v_cvt_pk_bf16_f32 v%d, v%d, v%d" % (vP + i, vS + 2 * i, vS + 2 * i + 1))
    for i in range(8):
        a("v_lshlrev_b32 v%d, 16, v%d" % (vE + 2 * i, vP + i))
        a("v_and_b32 v%d, 0xffff0000, v%d" % (vE + 2 * i + 1, vP + i))
    for i in range(16):
        a("v_mul_f32 v%d, s%d, v%d" % (vE + i, sSCALE, vE + i))
    for i in range(8):
        a("v_cvt_pk_bf16_f32 v%d, v%d, v%d" % (vP + i, vE + 2 * i, vE + 2 * i + 1))
    for i in range(8):
        a("v_lshlrev_b32 v%d, 16, v%d" % (vE + 2 * i, vP + i))
        a("v_and_b32 v%d, 0xffff0000, v%d" % (vE + 2 * i + 1, vP + i))
    m0_, m1_ = t0, t1
    a("v_max3_f32 v%d, v%d, v%d, v%d" % (m0_, vE, vE + 1, vE + 2))
    for i in range(3, 15, 2):
        a("v_max3_f32 v%d, v%d, v%d, v%d" % (m0_, m0_, vE + i, vE + i + 1))
    a("v_max_f32 v%d, v%d, v%d" % (m0_, m0_, vE + 15))
    a("v_mov_b32 v%d, v%d" % (m1_, m0_))
    a("s_nop 1")
    a("v_permlane32_swap_b32 v%d, v%d" % (m0_, m1_))
    a("s_nop 1")
    a("v_max_f32 v%d, v%d, v%d" % (m0_, m0_, m1_))
    a("v_mul_f32 v%d, s%d, v%d" % (m0_, sLOG2E, m0_))
    for i in range(16):
        a("v_fma_f32 v%d, v%d, s%d, -v%d" % (vE + i, vE + i, sLOG2E, m0_))
    for i in range(16):
        a("v_exp_f32 v%d, v%d" % (vE + i, vE + i))
    a("s_nop 0")
    s0_, s1_ = t2, t3
    a("v_add_f32 v%d, v%d, v%d" % (s0_, vE, vE + 1))
    a("v_add_f32 v%d, v%d, v%d" % (s1_, vE + 2, vE + 3))
    for i in range(4, 16, 2):
        a("v_add_f32 v%d, v%d, v%d" % (s0_, s0_, vE + i))
        a("v_add_f32 v%d, v%d, v%d" % (s1_, s1_, vE + i + 1))
    a("v_add_f32 v%d, v%d, v%d" % (s0_, s0_, s1_))
    a("v_mov_b32 v%d, v%d" % (s1_, s0_))
    a("s_nop 1")
    a("v_permlane32_swap_b32 v%d, v%d" % (s0_, s1_))
    a("s_nop 1")
    a("v_add_f32 v%d, v%d, v%d" % (s0_, s0_, s1_))
    a("v_rcp_f32 v%d, v%d" % (s0_, s0_))
    a("s_nop 0")
    for i in range(16):
        a("v_mul_f32 v%d, v%d, v%d" % (vE + i, vE + i, s0_))
    for i in range(8):
        a("v_cvt_pk_bf16_f32 v%d, v%d, v%d" % (vP + i, vE + 2 * i, vE + 2 * i + 1))
    vO = 64
    a("s_waitcnt lgkmcnt(0)")
    a("s_nop 1")
    for T in range(4):
        for c2 in range(2):
            a("v_mfma_f32_32x32x16_bf16 %s, %s, %s, %s" % (vr(vO + 16 * T, 16), vr(vVF + 8 * T + 4 * c2, 4), vr(vP + 4 * c2, 4), "0" if c2 == 0 else vr(vO + 16 * T, 16)))
    a("v_lshrrev_b32 v%d, 4, v%d" % (t0, L))
    a("v_and_b32 v%d, 15, v%d" % (t1, L))
    a("v_lshlrev_b32 v%d, 13, v%d" % (t0, t0))
    a("v_lshl_add_u32 v%d, v%d, 4, v%d" % (t0, t1, t0))
    a("s_lshl_b32 s%d, s%d, 18" % (sOB, sB))
    a("s_lshl_b32 s%d, s%d, 8" % (sT0, sH))
    a("s_add_u32 s%d, s%d, s%d" % (sOB, sOB, sT0))
    a("s_nop 7")
    a("s_nop 3")
    vOP = 128
    for T in range(4):
        for jj in range(2):
            for i in range(4):
                a("v_cvt_pk_bf16_f32 v%d, v%d, v%d" % (vOP + 8 * T + 4 * jj + i, vO + 16 * T + 8 * jj + 2 * i, vO + 16 * T + 8 * jj + 2 * i + 1))
            a("v_xor_b32 v%d, %d, v%d" % (u4, 32 * (2 * T + jj), u1))
            a("ds_write_b128 v%d, %s" % (u4, vr(vOP + 8 * T + 4 * jj, 4)))
    a("s_waitcnt lgkmcnt(0)")
    for j in range(8):
        a("v_xor_b32 v%d, %d, v%d" % (u4, 64 * (j & 3), u3))
        a("ds_read_b128 %s, v%d %s" % (vr(vO + 4 * j, 4), u4, ds_off(1024 * j)))
    for j in range(8):
        a("s_add_u32 s%d, s%d, %d" % (sT0, sOB, j * 32768))
        a("s_waitcnt lgkmcnt(%d)" % (7 - j))
        a("buffer_store_dwordx4 %s, v%d, %s, s%d offen" % (vr(vO + 4 * j, 4), t0, sr(S_O, 4), sT0))
    stamp(a, 6)
    a("s_waitcnt vmcnt(0)")
    a("s_barrier")
    stamp(a, 7)

    S_A, S_B, S_P = S_O, S_WO, 52
    sG, sWM, sWN = 61, 62, 65
    sM0A, sM0B = 74, 75
    sAS, sBS = 76, 77
    sABASE, sBBASE = 78, 79
    sPB, sROT = 66, 64
    wA = [64, 72]
    wB = [80, 88]
    wAR = 96
    wBR = 108
    wAOFF = 114
    wBOFF = 116
    a("s_lshl_b32 s%d, s%d, 23" % (sT0, sBLK))
    a("s_add_u32 s%d, s%d, 0x%x" % (sT0, sT0, P_WS_OFF))
    a("s_add_u32 s36, s30, s%d" % sT0)
    a("s_addc_u32 s37, s31, 0")
    make_srd(a, S_P, 36, 8 << 20)
    a("s_lshr_b32 s%d, s%d, 2" % (sG, sWAVE))
    a("s_bfe_u32 s%d, s%d, 0x10001" % (sWM, sWAVE))
    a("s_and_b32 s%d, s%d, 1" % (sWN, sWAVE))
    a("s_lshl_b32 s%d, s%d, 2" % (sROT, sHP))
    a("s_lshl_b32 s%d, s%d, 11" % (sABASE, sHG))
    a("s_lshl_b32 s%d, s%d, 20" % (sBBASE, sHG))
    a("v_lshrrev_b32 v%d, 3, v%d" % (t0, L))
    a("v_and_b32 v%d, 7, v%d" % (t1, L))
    a("v_lshrrev_b32 v%d, 1, v%d" % (t2, t0))
    a("s_lshl_b32 s%d, s%d, 7" % (sT0, sBG))
    a("s_lshl_b32 s%d, s%d, 4" % (sT1, sWAVE))
    a("s_add_u32 s%d, s%d, s%d" % (sT0, sT0, sT1))
    for i in range(2):
        a("v_add_u32 v%d, %d, v%d" % (t3, 4 * i, t2))
        a("v_xor_b32 v%d, v%d, v%d" % (t3, t3, t1))
        a("v_add_u32 v%d, s%d, v%d" % (t4, sT0, t0))
        a("v_add_u32 v%d, %d, v%d" % (t4, 8 * i, t4))
        a("v_lshlrev_b32 v%d, 13, v%d" % (t4, t4))
        a("v_lshl_add_u32 v%d, v%d, 4, v%d" % (wAOFF + i, t3, t4))
    a("v_lshrrev_b32 v%d, 4, v%d" % (t0, L))
    a("v_and_b32 v%d, 15, v%d" % (t1, L))
    a("v_lshlrev_b32 v%d, 2, v%d" % (t2, t0))
    a("v_xor_b32 v%d, v%d, v%d" % (t1, t1, t2))
    a("s_lshl_b32 s%d, s%d, 3" % (sT0, sWAVE))
    a("v_add_u32 v%d, s%d, v%d" % (t0, sT0, t0))
    a("v_lshlrev_b32 v%d, 10, v%d" % (t0, t0))
    a("v_lshl_add_u32 v%d, v%d, 4, v%d" % (t0, t1, t0))
    a("s_lshl_b32 s%d, s%d, 8" % (sT1, sHP))
    a("v_add_u32 v%d, s%d, v%d" % (wBOFF, sT1, t0))
    a("s_lshl_b32 s%d, s%d, 11" % (sM0A, sWAVE))
    a("s_add_u32 s%d, s%d, 16384" % (sM0B, sM0A))

    def dma2_setup(stage):
        a("s_add_u32 s%d, s%d, %d" % (sT3, sROT, stage))
        a("s_and_b32 s%d, s%d, 15" % (sT3, sT3))
        a("s_lshl_b32 s%d, s%d, 7" % (sAS, sT3))
        a("s_add_u32 s%d, s%d, s%d" % (sAS, sAS, sABASE))
        a("s_lshl_b32 s%d, s%d, 16" % (sT3, sT3))
        a("s_add_u32 s%d, s%d, s%d" % (sT3, sT3, sBBASE))

    def dma2_a(stage, i):
        buf = stage % K2_NB
        a("s_add_u32 m0, s%d, %d" % (sM0A, buf * K2_BUF + i * 1024))
        a("s_nop 0")
        a("buffer_load_dwordx4 v%d, %s, s%d offen lds" % (wAOFF + i, sr(S_A, 4), sAS))

    def dma2_b(stage, j):
        buf = stage % K2_NB
        a("s_add_u32 s%d, s%d, %d" % (sBS, sT3, j * 4096))
        a("s_add_u32 m0, s%d, %d" % (sM0B, buf * K2_BUF + j * 1024))
        a("s_nop 0")
        a("buffer_load_dwordx4 v%d, %s, s%d offen lds" % (wBOFF, sr(S_B, 4), sBS))

    def dma2(stage):
        dma2_setup(stage)
        dma2_a(stage, 0)
        dma2_a(stage, 1)
        dma2_b(stage, 0)
        dma2_b(stage, 1)

    D2 = K2_NB - 1
    log2 = []
    S_D = 48
    a("s_add_u32 s36, s30, 0x%x" % F_WS_OFF)
    a("s_addc_u32 s37, s31, 0")
    make_srd(a, S_D, 36, 16384)
    sG1, sCNT, sNON = 67, 69, 68
    sXCC = 12
    a("s_cmp_lg_u32 s%d, 0" % sWAVE)
    a("s_cbranch_scc1 F_S1_SKIP")
    a("v_readfirstlane_b32 s%d, v%d" % (sNON, vNON))
    a("s_and_b32 s%d, s2, 7" % sT0)
    a("s_lshl_b32 s%d, s%d, 3" % (sG1, sT0))
    a("s_add_u32 s%d, s%d, s%d" % (sG1, sG1, sBG))
    a("s_lshl_b32 s%d, s%d, 7" % (sG1, sG1))
    a("s_cmp_eq_u32 s%d, 0" % sNON)
    a("s_cselect_b32 s%d, s%d, s%d" % (sNON, sNT, sNON))
    a("s_getreg_b32 s%d, hwreg(HW_REG_XCC_ID)" % sXCC)
    a("s_and_b32 s%d, s%d, 7" % (sXCC, sXCC))

    def publish(base):
        a("s_lshl_b32 s%d, s%d, 3" % (sT0, sHP))
        a("s_add_u32 s%d, s%d, s%d" % (sT0, sT0, sG1))
        a("v_mov_b32 v%d, s%d" % (t0, sT0))
        a("v_mov_b32 v%d, s%d" % (t2, sNON))
        a("v_mov_b32 v%d, s%d" % (t3, sXCC))
        a("v_cmp_eq_u32 vcc, 0, v%d" % L)
        a("s_and_saveexec_b64 s[10:11], vcc")
        a("buffer_store_dwordx2 v[%d:%d], v%d, %s, 0 offen offset:%d sc0 sc1" % (t2, t3, t0, sr(S_D, 4), base))
        a("s_mov_b64 exec, s[10:11]")

    def waitall(tag, base):
        a("v_and_b32 v%d, 3, v%d" % (t0, L))
        a("v_lshlrev_b32 v%d, 3, v%d" % (t0, t0))
        a("v_add_u32 v%d, s%d, v%d" % (t0, sG1, t0))
        a("s_mov_b32 s%d, 0" % sCNT)
        a.label("%s_POLL" % tag)
        a("buffer_load_dwordx2 v[%d:%d], v%d, %s, 0 offen offset:%d sc0 sc1" % (t2, t3, t0, sr(S_D, 4), base))
        a("s_waitcnt vmcnt(0)")
        a("v_cmp_ne_u32 vcc, s%d, v%d" % (sNON, t2))
        a("s_nop 3")
        a("s_cmp_eq_u64 vcc, 0")
        a("s_cbranch_scc1 %s_OK" % tag)
        a("s_sleep 2")
        a("s_add_u32 s%d, s%d, 1" % (sCNT, sCNT))
        a("s_cmp_lt_u32 s%d, %d" % (sCNT, SPIN_MAX))
        a("s_cbranch_scc1 %s_POLL" % tag)
        a.label("%s_OK" % tag)

    publish(0)
    a.label("F_S1_SKIP")

    def peer_wait():
        a("s_cmp_lg_u32 s%d, 0" % sWAVE)
        a("s_cbranch_scc1 F_S1_DONE")
        waitall("F_S1A", 0)
        a("v_cmp_ne_u32 vcc, s%d, v%d" % (sXCC, t3))
        a("s_nop 3")
        if "forceslow" not in EXP:
            a("s_cmp_eq_u64 vcc, 0")
            a("s_cbranch_scc1 F_S1_DONE")
        a("buffer_wbl2 sc1")
        a("s_waitcnt vmcnt(0)")
        publish(64)
        waitall("F_S1B", 64)
        a("buffer_inv sc1")
        a("s_waitcnt vmcnt(0)")
        a.label("F_S1_DONE")

    stamp(a, 8)
    NINIT2 = 2
    for s in range(NINIT2):
        dma2(s)
        log2 += [("a", s)] * 2 + [("b", s)] * 2
    if STAMP and "p2diag" in EXP:
        stamp(a, 13)
        a("s_waitcnt vmcnt(14)")
        stamp(a, 2)
        a("s_waitcnt vmcnt(12)")
        stamp(a, 3)
    a("v_and_b32 v%d, 31, v%d" % (t0, L))
    a("v_lshrrev_b32 v%d, 5, v%d" % (t1, L))
    a("v_bfe_u32 v%d, v%d, 1, 3" % (t2, t0))
    a("s_lshl_b32 s%d, s%d, 6" % (sT0, sWM))
    a("v_add_u32 v%d, s%d, v%d" % (t3, sT0, t0))
    a("v_lshlrev_b32 v%d, 7, v%d" % (t3, t3))
    a("s_lshl_b32 s%d, s%d, 2" % (sT1, sG))
    for cc in range(2):
        a("v_add_u32 v%d, s%d, v%d" % (t4, sT1, t1))
        a("v_add_u32 v%d, %d, v%d" % (t4, 2 * cc, t4))
        a("v_xor_b32 v%d, v%d, v%d" % (t4, t4, t2))
        a("v_lshl_add_u32 v%d, v%d, 4, v%d" % (wAR + 2 * cc, t4, t3))
        a("v_add_u32 v%d, 4096, v%d" % (wAR + 2 * cc + 1, wAR + 2 * cc))
    a("v_lshrrev_b32 v%d, 4, v%d" % (t0, L))
    a("v_and_b32 v%d, 1, v%d" % (t1, t0))
    a("v_lshrrev_b32 v%d, 1, v%d" % (t0, t0))
    a("v_bfe_u32 v%d, v%d, 2, 2" % (t2, L))
    a("v_and_b32 v%d, 1, v%d" % (t3, L))
    a("v_bfe_u32 v%d, v%d, 1, 1" % (t4, L))
    a("v_lshl_add_u32 v%d, v%d, 1, v%d" % (t3, t3, t4))
    a("v_lshlrev_b32 v%d, 3, v%d" % (t3, t3))
    a("v_lshl_add_u32 v%d, v%d, 5, v%d" % (t3, t1, t3))
    a("v_lshl_add_u32 v%d, v%d, 3, v%d" % (t4, t0, t2))
    a("s_lshl_b32 s%d, s%d, 5" % (sT0, sG))
    a("v_add_u32 v%d, s%d, v%d" % (t4, sT0, t4))
    a("v_lshl_add_u32 v%d, v%d, 8, v%d" % (t4, t4, t3))
    a("v_add_u32 v%d, 16384, v%d" % (t4, t4))
    a("s_lshl_b32 s%d, s%d, 1" % (sT1, sWN))
    for nt in range(2):
        a("s_add_u32 s%d, s%d, %d" % (sT2, sT1, nt))
        a("v_xor_b32 v%d, s%d, v%d" % (t1, sT2, t2))
        a("v_lshl_add_u32 v%d, v%d, 6, v%d" % (wBR + nt, t1, t4))
    for k in (1, 2):
        for i in range(4):
            a("v_add_u32 v%d, 0x%x, v%d" % (wAR + 4 * k + i, k * 65536, wAR + i))
        for i in range(2):
            a("v_add_u32 v%d, 0x%x, v%d" % (wBR + 2 * k + i, k * 65536, wBR + i))
    for i in range(64):
        a("v_mov_b32 v%d, 0" % (vACC + i))

    def reads2(stage, cc, st):
        buf = stage % K2_NB
        k, bo = buf >> 1, (buf & 1) * K2_BUF
        for mt in range(2):
            a("ds_read_b128 %s, v%d %s" % (vr(wA[st] + 4 * mt, 4), wAR + 4 * k + 2 * cc + mt, ds_off(bo)))
        for nt in range(2):
            for p in range(2):
                a("ds_read_b64_tr_b16 %s, v%d %s" % (vr(wB[st] + 4 * nt + 2 * p, 2), wBR + 2 * k + nt, ds_off(bo + (16 * cc + 4 * p) * 256)))

    def mf(st, mt, nt, w):
        if w is not None:
            a("s_waitcnt lgkmcnt(%d)" % w)
        acc = vACC + 32 * mt + 16 * nt
        a("v_mfma_f32_32x32x16_bf16 %s, %s, %s, %s" % (vr(acc, 16), vr(wB[st] + 4 * nt, 4), vr(wA[st] + 4 * mt, 4), vr(acc, 16)))

    WAITS = int(os.environ.get("WAITS", "2"))
    nx2 = NINIT2
    for s in range(NST):
        if s == WAITS:
            peer_wait()
        idx = max(i for i, t in enumerate(log2) if t in (("a", s), ("b", s)))
        a("s_waitcnt vmcnt(%d)" % (len(log2) - 1 - idx))
        a("s_barrier")
        if s == 0:
            stamp(a, 9)
        reads2(s, 0, 0)
        todo = []
        while (s >= WAITS or nx2 < 4) and nx2 < NST and nx2 <= s + D2 and len(todo) < 2:
            todo.append(nx2)
            nx2 += 1
        ops = []
        for t in todo:
            ops += [[(dma2_setup, (t,)), (dma2_a, (t, 0))], [(dma2_a, (t, 1))], [(dma2_b, (t, 0))], [(dma2_b, (t, 1))]]
            log2 += [("a", t)] * 2 + [("b", t)] * 2
        order = ((0, 0), (1, 0), (0, 1), (1, 1))
        for q in range(4):
            if s > 0:
                mf(1, order[q][0], order[q][1], None)
            k = (len(ops) + 3 - q) // (4 - q) if q < 3 else len(ops)
            for grp in ops[:k]:
                for fn, args in grp:
                    fn(*args)
            ops = ops[k:]
        reads2(s, 1, 1)
        mf(0, 0, 0, 8)
        mf(0, 1, 0, None)
        mf(0, 0, 1, 6)
        mf(0, 1, 1, None)
        a("s_waitcnt lgkmcnt(0)")
    for mt, nt in ((0, 0), (1, 0), (0, 1), (1, 1)):
        mf(1, mt, nt, None)
    stamp(a, 10)
    a("s_barrier")
    RS = 528
    GS = 128 * RS
    a("v_and_b32 v%d, 31, v%d" % (t0, L))
    a("v_lshrrev_b32 v%d, 5, v%d" % (t1, L))
    a("s_lshl_b32 s%d, s%d, 6" % (sT0, sWM))
    a("v_add_u32 v%d, s%d, v%d" % (t0, sT0, t0))
    a("s_movk_i32 s%d, %d" % (sT1, RS))
    a("v_mul_lo_u32 v%d, v%d, s%d" % (t0, t0, sT1))
    a("v_lshl_add_u32 v%d, v%d, 5, v%d" % (t0, t1, t0))
    a("s_mul_i32 s%d, s%d, %d" % (sT0, sG, GS))
    a("s_lshl_b32 s%d, s%d, 8" % (sT1, sWN))
    a("s_add_u32 s%d, s%d, s%d" % (sT0, sT0, sT1))
    a("v_add_u32 v%d, s%d, v%d" % (t0, sT0, t0))
    a("s_nop 3")
    for mt in range(2):
        for nt in range(2):
            for jj in range(2):
                for qq in range(2):
                    a("ds_write_b128 v%d, %s %s" % (t0, vr(vACC + 32 * mt + 16 * nt + 8 * jj + 4 * qq, 4), ds_off(mt * 32 * RS + (nt * 32 + 16 * jj + 4 * qq) * 4)))
        a("s_waitcnt lgkmcnt(4)")
    a("s_waitcnt lgkmcnt(0)")
    a("s_barrier")
    a("v_lshrrev_b32 v%d, 5, v%d" % (t1, L))
    a("v_and_b32 v%d, 31, v%d" % (t2, L))
    a("s_lshl_b32 s%d, s%d, 4" % (sT0, sWAVE))
    a("v_add_u32 v%d, s%d, v%d" % (t3, sT0, t1))
    a("s_movk_i32 s%d, %d" % (sT1, RS))
    a("v_mul_lo_u32 v%d, v%d, s%d" % (t3, t3, sT1))
    a("v_lshl_add_u32 v%d, v%d, 4, v%d" % (t3, t2, t3))
    a("v_add_u32 v%d, 0x%x, v%d" % (t4, GS, t3))

    def rd(i):
        a("ds_read_b128 %s, v%d %s" % (vr(vACC + 4 * i, 4), t3, ds_off(2 * RS * i)))
        a("ds_read_b128 %s, v%d %s" % (vr(vACC + 32 + 4 * i, 4), t4, ds_off(2 * RS * i)))
    a("v_lshlrev_b32 v%d, 11, v%d" % (t1, t1))
    a("v_lshl_add_u32 v%d, v%d, 4, v%d" % (t1, t2, t1))
    a("s_lshl_b32 s%d, s%d, 7" % (sPB, sBG))
    a("s_lshl_b32 s%d, s%d, 11" % (sPB, sPB))
    a("s_lshl_b32 s%d, s%d, 9" % (sT1, sHP))
    a("s_add_u32 s%d, s%d, s%d" % (sPB, sPB, sT1))
    a("s_lshr_b32 s%d, s%d, 1" % (sT1, sWAVE))
    a("s_cmp_eq_u32 s%d, s%d" % (sT1, sHG))
    a("s_cbranch_scc1 F_P_SKIP")
    for i in range(6):
        rd(i)
    a("s_lshl_b32 s%d, s%d, 11" % (sT0, sT0))
    a("s_add_u32 s%d, s%d, s%d" % (sT0, sT0, sPB))
    a("s_lshl_b32 s%d, s%d, 21" % (sT1, sHG))
    a("s_add_u32 s%d, s%d, s%d" % (sT0, sT0, sT1))
    for i in range(8):
        a("s_waitcnt lgkmcnt(%d)" % (10 if i < 2 else 2 * (7 - i)))
        if i < 2:
            rd(6 + i)
        for q in range(4):
            a("v_add_f32 v%d, v%d, v%d" % (vACC + 4 * i + q, vACC + 4 * i + q, vACC + 32 + 4 * i + q))
        a("s_add_u32 s%d, s%d, %d" % (sT1, sT0, i * 4096))
        a("buffer_store_dwordx4 %s, v%d, %s, s%d offen sc1" % (vr(vACC + 4 * i, 4), t1, sr(S_P, 4), sT1))
    a.label("F_P_SKIP")
    stamp(a, 11)
    a("s_waitcnt vmcnt(0)")
    a("s_barrier")
    stamp(a, 12)
    a("s_cmp_lg_u32 s%d, 0" % sWAVE)
    a("s_cbranch_scc1 F_S2_DONE")
    a("s_lshl_b32 s%d, s%d, 5" % (sG1, sBLK))
    a("s_lshl_b32 s%d, s%d, 2" % (sT0, sBG))
    a("s_add_u32 s%d, s%d, s%d" % (sG1, sG1, sT0))
    a("s_add_u32 s%d, s%d, s%d" % (sG1, sG1, sHP))
    a("s_add_u32 s%d, s%d, 64" % (sG1, sG1))
    a("s_lshl_b32 s%d, s%d, 7" % (sG1, sG1))
    a("s_lshl_b32 s%d, s%d, 3" % (sT0, sHG))
    a("s_add_u32 s%d, s%d, s%d" % (sT0, sT0, sG1))
    a("v_mov_b32 v%d, s%d" % (t0, sT0))
    a("v_mov_b32 v%d, s%d" % (t2, sNON))
    a("v_mov_b32 v%d, s%d" % (t3, sXCC))
    a("v_cmp_eq_u32 vcc, 0, v%d" % L)
    a("s_and_saveexec_b64 s[10:11], vcc")
    a("buffer_store_dwordx2 v[%d:%d], v%d, %s, 0 offen sc0 sc1" % (t2, t3, t0, sr(S_D, 4)))
    a("s_mov_b64 exec, s[10:11]")
    waitall("F_S2A", 0)
    a.label("F_S2_DONE")
    a("s_barrier")
    stamp(a, 13)
    S_OUT = 40
    make_srd(a, S_OUT, 26, 2 << 20)
    a("s_lshl_b32 s%d, s%d, 5" % (sT0, sHG))
    a("s_lshl_b32 s%d, s%d, 2" % (sT1, sWAVE))
    a("s_add_u32 s%d, s%d, s%d" % (sT0, sT0, sT1))
    a("v_lshrrev_b32 v%d, 5, v%d" % (t2, L))
    a("v_and_b32 v%d, 31, v%d" % (t3, L))
    a("v_add_u32 v%d, s%d, v%d" % (t4, sT0, t2))
    a("s_movk_i32 s%d, %d" % (sT1, RS))
    a("v_mul_lo_u32 v%d, v%d, s%d" % (t4, t4, sT1))
    a("v_lshl_add_u32 v%d, v%d, 4, v%d" % (t4, t3, t4))
    a("v_add_u32 v%d, 0x%x, v%d" % (t0, GS, t4))
    a("s_lshl_b32 s%d, s%d, 11" % (sT1, sT0))
    a("s_add_u32 s%d, s%d, s%d" % (sT1, sT1, sPB))
    for d in range(1, 4):
        a("s_add_u32 s%d, s%d, %d" % (sT2, sHG, d))
        a("s_and_b32 s%d, s%d, 3" % (sT2, sT2))
        a("s_lshl_b32 s%d, s%d, 21" % (sT2, sT2))
        a("s_add_u32 s%d, s%d, s%d" % (sT2, sT2, sT1))
        a("s_add_u32 s%d, s%d, 4096" % (sT3, sT2))
        a("buffer_load_dwordx4 %s, v%d, %s, s%d offen sc1" % (vr(16 + 8 * (d - 1), 4), t1, sr(S_P, 4), sT2))
        a("buffer_load_dwordx4 %s, v%d, %s, s%d offen sc1" % (vr(16 + 8 * (d - 1) + 4, 4), t1, sr(S_P, 4), sT3))
    for i in range(2):
        a("ds_read_b128 %s, v%d %s" % (vr(4 * i, 4), t4, ds_off(2 * RS * i)))
        a("ds_read_b128 %s, v%d %s" % (vr(8 + 4 * i, 4), t0, ds_off(2 * RS * i)))
    a("v_lshlrev_b32 v%d, 11, v%d" % (t2, t2))
    a("v_lshl_add_u32 v%d, v%d, 3, v%d" % (t2, t3, t2))
    a("s_lshl_b32 s%d, s%d, 7" % (sT1, sBG))
    a("s_add_u32 s%d, s%d, s%d" % (sT1, sT1, sT0))
    a("s_lshl_b32 s%d, s%d, 11" % (sT1, sT1))
    a("s_lshl_b32 s%d, s%d, 10" % (sT2, sBLK))
    a("s_add_u32 s%d, s%d, s%d" % (sT1, sT1, sT2))
    a("s_lshl_b32 s%d, s%d, 8" % (sT2, sHP))
    a("s_add_u32 s%d, s%d, s%d" % (sT1, sT1, sT2))
    a("s_add_u32 s%d, s%d, 4096" % (sT2, sT1))
    a("s_waitcnt lgkmcnt(0)")
    for q in range(8):
        a("v_add_f32 v%d, v%d, v%d" % (q, q, 8 + q))
    a("s_waitcnt vmcnt(0)")
    for q in range(8):
        a("v_add_f32 v%d, v%d, v%d" % (16 + q, 16 + q, 24 + q))
        a("v_add_f32 v%d, v%d, v%d" % (q, q, 32 + q))
    for q in range(8):
        a("v_add_f32 v%d, v%d, v%d" % (q, q, 16 + q))
    for q in range(4):
        a("v_cvt_pk_bf16_f32 v%d, v%d, v%d" % (40 + q, 2 * q, 2 * q + 1))
    a("buffer_store_dwordx2 v[40:41], v%d, %s, s%d offen" % (t2, sr(S_OUT, 4), sT1))
    a("buffer_store_dwordx2 v[42:43], v%d, %s, s%d offen" % (t2, sr(S_OUT, 4), sT2))
    if STAMP:
        a("s_waitcnt vmcnt(0)")
        stamp(a, 2)
        a("s_memrealtime s[98:99]")
        a("s_waitcnt lgkmcnt(0)")
        a("s_mov_b32 s97, s98")
        stamp_dump(a, 0, 40, vTID)
    if "diag" in EXP:
        a("s_waitcnt vmcnt(0)")
        a("s_memrealtime s[98:99]")
        a("s_waitcnt lgkmcnt(0)")
        a("s_add_u32 s36, s30, 0x%x" % (60 << 20))
        a("s_addc_u32 s37, s31, 0")
        make_srd(a, 40, 36, 65536)
        a("s_lshl_b32 s3, s2, 3")
        a("v_mov_b32 v0, s3")
        a("v_mov_b32 v2, s96")
        a("v_mov_b32 v3, s98")
        a("s_cmp_lg_u32 s%d, 0" % sWAVE)
        a("s_cbranch_scc1 F_DONE")
        a("buffer_store_dwordx2 v[2:3], v0, s[40:43], 0 offen")
    a.label("F_DONE")
    a("s_endpgm")
    return kernel_desc(name, NV, 100)


def gen_k3(a):
    name = "k3_kernel"
    kernel_begin(a, name)
    a("s_cmp_ge_u32 s2, %d" % (0 if "k3empty" in EXP else 256))
    a("s_cbranch_scc1 K3_DONE")
    if "diag" in EXP:
        a("s_memrealtime s[36:37]")
    a("s_load_dwordx2 s[4:5], s[0:1], 80")
    a("s_load_dwordx2 s[6:7], s[0:1], 96")
    a("s_lshl_b32 s3, s2, 8")
    a("v_add_u32 v1, s3, v0")
    a("s_waitcnt lgkmcnt(0)")
    a("s_add_u32 s6, s6, 0x%x" % P_WS_OFF)
    a("s_addc_u32 s7, s7, 0")
    make_srd(a, 8, 6, 16 << 20)
    make_srd(a, 12, 4, 2 << 20)
    a("v_lshlrev_b32 v2, 4, v1")
    for i in range(4):
        blk = i >> 1
        for ks in range(4):
            a("s_mov_b32 s%d, 0x%x" % (16 + 4 * i + ks, blk * (8 << 20) + ks * (2 << 20) + (i & 1) * (1 << 20)))
    for i in range(4):
        for ks in range(4):
            a("buffer_load_dwordx4 %s, v2, s[8:11], s%d offen" % (vr(8 + 16 * i + 4 * ks, 4), 16 + 4 * i + ks))
    a("v_lshrrev_b32 v3, 7, v1")
    a("v_lshlrev_b32 v3, 11, v3")
    a("v_and_b32 v4, 127, v1")
    a("v_lshl_add_u32 v3, v4, 3, v3")
    for i in range(4):
        a("s_waitcnt vmcnt(%d)" % (12 - 4 * i))
        b = 8 + 16 * i
        for q in range(4):
            a("v_add_f32 v%d, v%d, v%d" % (b + q, b + q, b + 4 + q))
            a("v_add_f32 v%d, v%d, v%d" % (b + 8 + q, b + 8 + q, b + 12 + q))
        for q in range(4):
            a("v_add_f32 v%d, v%d, v%d" % (b + q, b + q, b + 8 + q))
        a("v_cvt_pk_bf16_f32 v%d, v%d, v%d" % (b, b, b + 1))
        a("v_cvt_pk_bf16_f32 v%d, v%d, v%d" % (b + 1, b + 2, b + 3))
        a("s_mov_b32 s16, 0x%x" % ((i >> 1) * 1024 + (i & 1) * 512 * 2048))
        a("buffer_store_dwordx2 %s, v3, s[12:15], s16 offen" % vr(b, 2))
    if "diag" in EXP:
        a("s_cmp_lg_u32 s2, 0")
        a("s_cbranch_scc1 K3_DONE")
        a("s_waitcnt vmcnt(0)")
        a("s_memrealtime s[38:39]")
        a("s_load_dwordx2 s[4:5], s[0:1], 88")
        a("s_load_dwordx2 s[6:7], s[0:1], 96")
        a("s_waitcnt lgkmcnt(0)")
        a("s_add_u32 s6, s6, 0x%x" % (60 << 20))
        a("s_addc_u32 s7, s7, 0")
        make_srd(a, 8, 6, 65536)
        make_srd(a, 12, 4, 256)
        a("v_lshlrev_b32 v1, 3, v0")
        a("buffer_load_dwordx2 v[4:5], v1, s[8:11], 0 offen")
        a("s_waitcnt vmcnt(0)")
        a("v_cmp_gt_u32 vcc, 6, v0")
        a("s_and_saveexec_b64 s[20:21], vcc")
        a("buffer_store_dwordx2 v[4:5], v1, s[12:15], 0 offen")
        a("s_mov_b64 exec, s[20:21]")
        a("v_mov_b32 v6, s36")
        a("v_mov_b32 v7, s38")
        a("v_mov_b32 v1, 48")
        a("v_cmp_eq_u32 vcc, 0, v0")
        a("s_and_saveexec_b64 s[20:21], vcc")
        a("buffer_store_dwordx2 v[6:7], v1, s[12:15], 0 offen")
    a.label("K3_DONE")
    a("s_endpgm")
    return kernel_desc(name, 80, 40)


def main():
    a = Asm()
    hdr = HEADER + "; @launch grid=(256,1,1) block=(512,1,1) lds=%d\n" % F_LDS
    a.raw('.amdgcn_target "amdgcn-amd-amdhsa--gfx950"')
    a.raw(".text")
    descs = [gen_fused(a)]
    a.raw('.section .rodata,"a"')
    for d in descs:
        a.raw(".p2align 6")
        a.raw(d)
    open(OUT, "w").write(hdr + a.text())


if __name__ == "__main__":
    main()
```

```python
import sys, os
EXP = os.environ.get("EXP", "")

NAME = "concat_heads__gqa_block_cached__mha_block_cached__near_ridge"
OUT = os.environ.get("OUT", "cdna_kernels/%s.s" % NAME)

HEADER = """; Kernarg layout for this problem (104 bytes, ptrs only, base s[0:1]):
"""


class Asm:
    def __init__(self):
        self.lines = []

    def __call__(self, s):
        self.lines.append("    " + s)

    def label(self, s):
        self.lines.append(s + ":")

    def raw(self, s):
        self.lines.append(s)

    def text(self):
        return "\n".join(self.lines) + "\n"


def vr(base, n):
    return "v[%d:%d]" % (base, base + n - 1)


def sr(base, n):
    return "s[%d:%d]" % (base, base + n - 1)


def buf_off(o):
    assert 0 <= o < 4096, o
    return "offset:%d" % o


def ds_off(o):
    assert 0 <= o < 65536, o
    return "offset:%d" % o


def kernel_begin(a, name):
    a.raw(".globl %s" % name)
    a.raw(".p2align 8")
    a.raw(".type %s,@function" % name)
    a.label(name)


def kernel_desc(name, vgpr, sgpr, accum=None):
    if accum is None:
        accum = (vgpr + 3) // 4 * 4
    return """.amdhsa_kernel %s
  .amdhsa_next_free_vgpr %d
  .amdhsa_next_free_sgpr %d
  .amdhsa_accum_offset %d
  .amdhsa_group_segment_fixed_size 0
  .amdhsa_kernarg_size 104
  .amdhsa_user_sgpr_count 2
  .amdhsa_user_sgpr_kernarg_segment_ptr 1
  .amdhsa_system_sgpr_workgroup_id_x 1
.end_amdhsa_kernel
""" % (name, vgpr, sgpr, accum)


def make_srd(a, d, base_lo, size):
    a("s_mov_b32 s%d, s%d" % (d, base_lo))
    a("s_and_b32 s%d, s%d, 0xffff" % (d + 1, base_lo + 1))
    a("s_mov_b32 s%d, 0x%x" % (d + 2, size))
    a("s_mov_b32 s%d, 0x00020000" % (d + 3))


STAMP = "stamp" in EXP
KVMOD = " sc0 sc1 nt" if "kvnt" in EXP else ""
WMOD = " nt" if "wnt" in EXP else ""
DMOD = " nt" if "dnt" in EXP else ""
NSTAMP = 16


def rt(a, idx):
    if "diag2" in EXP:
        a("s_memrealtime s[98:99]")
        a("s_waitcnt lgkmcnt(0)")
        a("s_mov_b32 s%d, s98" % (88 + idx))


def stamp(a, idx):
    m = {0: 0, 2: 1, 4: 2, 7: 3, 10: 4, 13: 5}
    if "diag2" in EXP and idx in m:
        rt(a, m[idx])
    if STAMP:
        assert idx < NSTAMP
        a("s_memtime s[98:99]")
        a("s_waitcnt lgkmcnt(0)")
        a("s_mov_b32 s%d, s98" % (82 + idx))


def stamp_init(a, vtid):
    if STAMP:
        a("v_mov_b32 v%d, v0" % vtid)
        for i in range(NSTAMP):
            a("s_mov_b32 s%d, 0" % (82 + i))


def stamp_dump(a, kidx, vtmp, vtid):
    if not STAMP:
        return
    a("s_load_dwordx2 s[4:5], s[0:1], 96")
    a("s_waitcnt lgkmcnt(0)")
    a("s_add_u32 s4, s4, 0x%x" % ((64 << 20) + kidx * 262144))
    a("s_addc_u32 s5, s5, 0")
    a("s_and_b32 s5, s5, 0xffff")
    a("s_mov_b32 s6, 262144")
    a("s_mov_b32 s7, 0x00020000")
    a("s_lshl_b32 s3, s2, 10")
    a("v_lshrrev_b32 v%d, 6, v%d" % (vtmp, vtid))
    a("v_lshlrev_b32 v%d, 6, v%d" % (vtmp, vtmp))
    a("v_add_u32 v%d, s3, v%d" % (vtmp, vtmp))
    a("v_and_b32 v%d, 63, v%d" % (vtid, vtid))
    a("v_cmp_eq_u32 vcc, 0, v%d" % vtid)
    a("s_and_saveexec_b64 s[8:9], vcc")
    for i in range(NSTAMP):
        a("v_mov_b32 v%d, s%d" % (vtmp + 1, 82 + i))
        a("buffer_store_dword v%d, v%d, s[4:7], 0 offen offset:%d" % (vtmp + 1, vtmp, 4 * i))
        a("s_nop 1")
    a("s_mov_b64 exec, s[8:9]")


O_WS_OFF = 0
P_WS_OFF = 16 << 20

K1_BUF = 24576
K1_NB = 6
K2_BUF = 32768
K2_NB = 5
F_LDS = 163840
SPIN_MAX = 200000
F_WS_OFF = 48 << 20
WOPF = [5, 7, 9, 11]


def gen_fused(a):
    name = NAME + "_kernel"
    kernel_begin(a, name)
    S_X, S_W, S_K, S_V, S_O = 40, 44, 48, 52, 56
    sWAVE, sBL, sHL, sBG, sH0, sB, sH = 60, 61, 62, 63, 64, 65, 66
    sKB, sKB2, sOB = 67, 68, 69
    sT0, sT1, sT2, sT3 = 70, 71, 72, 73
    sM0X, sM0W = 74, 75
    sXS, sWS = 76, 77
    sSCALE, sLOG2E = 78, 79
    sBLK, sHG, sHP = 80, 81, 39
    vACC = 0
    vKR = 64
    vVR = 96
    vA = [128, 144]
    vB = [160, 164]
    vXR = 168
    vWR = 174
    vVOFF = 187
    vXOFF = 188
    vWOFF = 189
    vT = 190
    vLANE = 200
    vTID = 201
    vJ = 204
    NV = 216
    L = vLANE
    t0, t1, t2, t3, t4 = vT, vT + 1, vT + 2, vT + 3, vT + 4
    NST = 16

    a("s_cmp_ge_u32 s2, 256")
    a("s_cbranch_scc1 F_DONE")
    stamp_init(a, vTID)
    stamp(a, 0)
    if "diag" in EXP:
        a("s_memrealtime s[98:99]")
        a("s_waitcnt lgkmcnt(0)")
        a("s_mov_b32 s96, s98")
    if STAMP:
        a("s_memrealtime s[98:99]")
        a("s_waitcnt lgkmcnt(0)")
        a("s_mov_b32 s96, s98")
    a("s_load_dwordx16 s[16:31], s[0:1], 0")
    a("s_load_dwordx8 s[32:39], s[0:1], 64")
    a("s_load_dwordx2 s[14:15], s[0:1], 96")
    a("v_lshrrev_b32 v%d, 6, v0" % vT)
    a("v_and_b32 v%d, 63, v0" % vLANE)
    a("s_nop 0")
    a("v_readfirstlane_b32 s%d, v%d" % (sWAVE, vT))
    if "staticid" not in EXP:
        a("s_load_dwordx2 s[10:11], s[0:1], 88")
        a("s_getreg_b32 s12, hwreg(HW_REG_XCC_ID)")
        a("s_and_b32 s12, s12, 7")
        a("s_cmp_lg_u32 s%d, 0" % sWAVE)
        a("s_cbranch_scc1 F_TK_WAIT")
        a("s_waitcnt lgkmcnt(0)")
        make_srd(a, 4, 10, 256)
        a("s_lshl_b32 s13, s12, 2")
        a("v_mov_b32 v%d, s13" % (vT + 1))
        a("v_mov_b32 v%d, 1" % (vT + 2))
        a("v_mov_b32 v%d, 0" % (vT + 3))
        a("v_cmp_eq_u32 vcc, 0, v%d" % vLANE)
        a("s_and_saveexec_b64 s[8:9], vcc")
        a("buffer_atomic_add v%d, v%d, s[4:7], 0 offen sc0" % (vT + 2, vT + 1))
        a("s_waitcnt vmcnt(0)")
        a("ds_write_b32 v%d, v%d" % (vT + 3, vT + 2))
        a("s_mov_b64 exec, s[8:9]")
        a("s_waitcnt lgkmcnt(0)")
        a.label("F_TK_WAIT")
        a("s_barrier")
        a("v_mov_b32 v%d, 0" % (vT + 3))
        a("ds_read_b32 v%d, v%d" % (vT + 2, vT + 3))
        a("s_waitcnt lgkmcnt(0)")
        a("v_readfirstlane_b32 s13, v%d" % (vT + 2))
        a("s_nop 3")
        a("s_barrier")
        a("s_cmp_ge_u32 s13, 32")
        a("s_cbranch_scc1 F_DONE")
        a("s_lshl_b32 s13, s13, 3")
        a("s_add_u32 s2, s13, s12")
    a("s_and_b32 s%d, s2, 7" % sT0)
    a("s_lshr_b32 s%d, s2, 3" % sT1)
    a("s_lshr_b32 s%d, s%d, 2" % (sBG, sT1))
    a("s_and_b32 s%d, s%d, 3" % (sT1, sT1))
    a("s_and_b32 s%d, s%d, 3" % (sHG, sT0))
    a("s_lshl_b32 s%d, s%d, 3" % (sH0, sHG))
    a("s_lshl_b32 s%d, s%d, 1" % (sT2, sT1))
    a("s_add_u32 s%d, s%d, s%d" % (sH0, sH0, sT2))
    a("s_lshr_b32 s%d, s%d, 2" % (sBLK, sT0))
    a("s_mov_b32 s13, s%d" % sT1)
    a("v_lshrrev_b32 v%d, 2, v%d" % (t0, L))
    a("v_and_b32 v%d, 3, v%d" % (t1, L))
    a("v_lshrrev_b32 v%d, 4, v%d" % (t2, L))
    a("v_xor_b32 v%d, v%d, v%d" % (t1, t1, t2))
    a("s_lshl_b32 s%d, s%d, 7" % (sT0, sBG))
    a("s_lshl_b32 s%d, s%d, 4" % (sT1, sWAVE))
    a("s_add_u32 s%d, s%d, s%d" % (sT0, sT0, sT1))
    a("v_add_u32 v%d, s%d, v%d" % (t0, sT0, t0))
    a("v_lshlrev_b32 v%d, 10, v%d" % (t0, t0))
    a("v_lshl_add_u32 v%d, v%d, 4, v%d" % (vXOFF, t1, t0))
    a("s_lshl_b32 s%d, s%d, 10" % (sM0X, sWAVE))
    a("v_lshrrev_b32 v%d, 4, v%d" % (t0, L))
    a("v_and_b32 v%d, 15, v%d" % (t1, L))
    a("v_lshlrev_b32 v%d, 2, v%d" % (t2, t0))
    a("v_xor_b32 v%d, v%d, v%d" % (t1, t1, t2))
    a("s_lshr_b32 s%d, s%d, 1" % (sT0, sWAVE))
    a("s_lshl_b32 s%d, s%d, 3" % (sT0, sT0))
    a("v_add_u32 v%d, s%d, v%d" % (t0, sT0, t0))
    a("v_lshlrev_b32 v%d, 13, v%d" % (t0, t0))
    a("v_lshl_add_u32 v%d, v%d, 4, v%d" % (t0, t1, t0))
    a("s_and_b32 s%d, s%d, 1" % (sT1, sWAVE))
    a("s_add_u32 s%d, s%d, s%d" % (sT2, sH0, sT1))
    a("s_lshl_b32 s%d, s%d, 8" % (sT2, sT2))
    a("v_add_u32 v%d, s%d, v%d" % (vWOFF, sT2, t0))
    a("s_lshl_b32 s%d, s%d, 13" % (sM0W, sT1))
    a("s_lshl_b32 s%d, s%d, 8" % (sT0, sT0))
    a("s_add_u32 s%d, s%d, s%d" % (sM0W, sM0W, sT0))
    a("s_add_u32 s%d, s%d, 8192" % (sM0W, sM0W))
    a("s_waitcnt lgkmcnt(0)")
    a("s_cmp_eq_u32 s%d, 0" % sBLK)
    for i in range(5):
        a("s_cselect_b32 s%d, s%d, s%d" % (16 + 2 * i, 16 + 2 * i, 26 + 2 * i))
        a("s_cselect_b32 s%d, s%d, s%d" % (17 + 2 * i, 17 + 2 * i, 27 + 2 * i))
    a("s_mov_b32 s26, s36")
    a("s_mov_b32 s27, s37")
    a("s_mov_b32 s28, s38")
    a("s_mov_b32 s29, s39")
    a("s_mov_b32 s30, s14")
    a("s_mov_b32 s31, s15")
    a("s_mov_b32 s%d, s13" % sHP)
    make_srd(a, S_X, 16, 1 << 20)
    make_srd(a, S_W, 22, 4 << 20)
    vNON = 212
    sNT = 8

    def dma_x(stage):
        buf = stage % K1_NB
        a("s_mov_b32 s%d, %d" % (sXS, stage * 64))
        a("s_add_u32 m0, s%d, %d" % (sM0X, buf * K1_BUF))
        a("s_nop 0")
        a("buffer_load_dwordx4 v%d, %s, s%d offen%s lds" % (vXOFF, sr(S_X, 4), sXS, DMOD))

    def dma_w(stage, j):
        buf = stage % K1_NB
        a("s_mov_b32 s%d, %d" % (sWS, stage * 262144 + j * 32768))
        a("s_add_u32 m0, s%d, %d" % (sM0W, buf * K1_BUF + j * 1024))
        a("s_nop 0")
        a("buffer_load_dwordx4 v%d, %s, s%d offen%s lds" % (vWOFF, sr(S_W, 4), sWS, DMOD))

    NINIT = 2
    for s in range(NINIT):
        dma_x(s)
        dma_w(s, 0)
        dma_w(s, 1)
    make_srd(a, S_K, 18, 8 << 20)
    make_srd(a, S_V, 20, 8 << 20)
    a("s_lshl_b32 s%d, s%d, 23" % (sT0, sBLK))
    a("s_add_u32 s36, s30, s%d" % sT0)
    a("s_addc_u32 s37, s31, 0")
    make_srd(a, S_O, 36, 8 << 20)
    a("s_lshr_b32 s%d, s%d, 1" % (sBL, sWAVE))
    a("s_and_b32 s%d, s%d, 1" % (sHL, sWAVE))
    a("s_lshl_b32 s%d, s%d, 2" % (sB, sBG))
    a("s_add_u32 s%d, s%d, s%d" % (sB, sB, sBL))
    a("s_add_u32 s%d, s%d, s%d" % (sH, sH0, sHL))
    a("s_mov_b32 s%d, 0x3db504f3" % sSCALE)
    a("s_mov_b32 s%d, 0x3fb8aa3b" % sLOG2E)
    a("v_and_b32 v%d, 31, v%d" % (t0, L))
    a("v_lshrrev_b32 v%d, 5, v%d" % (t1, L))
    a("v_lshlrev_b32 v%d, 4, v%d" % (vVOFF, L))
    a("s_lshl_b32 s%d, s%d, 5" % (sKB, sB))
    a("s_add_u32 s%d, s%d, s%d" % (sKB, sKB, sH))
    a("s_lshl_b32 s%d, s%d, 13" % (sKB, sKB))
    a("s_add_u32 s%d, s%d, 4096" % (sKB2, sKB))

    def kv_load(idx):
        if idx < 8:
            a("buffer_load_dwordx4 %s, v%d, %s, s%d offen %s" % (vr(vKR + 4 * idx, 4), vVOFF, sr(S_K, 4), sKB if idx < 4 else sKB2, buf_off(1024 * (idx & 3))) + KVMOD)
        else:
            j = idx - 8
            a("buffer_load_dwordx4 %s, v%d, %s, s%d offen %s" % (vr(vVR + 4 * j, 4), vVOFF, sr(S_V, 4), sKB if j < 4 else sKB2, buf_off(1024 * (j & 3))) + KVMOD)

    a("v_bfe_u32 v%d, v%d, 2, 2" % (t2, t0))
    a("s_lshl_b32 s%d, s%d, 5" % (sT0, sBL))
    a("v_add_u32 v%d, s%d, v%d" % (t3, sT0, t0))
    a("v_lshlrev_b32 v%d, 6, v%d" % (t3, t3))
    for c in range(2):
        a("v_add_u32 v%d, %d, v%d" % (t4, 2 * c, t1))
        a("v_xor_b32 v%d, v%d, v%d" % (t4, t4, t2))
        a("v_lshl_add_u32 v%d, v%d, 4, v%d" % (vXR + c, t4, t3))
        for k in (1, 2):
            a("v_add_u32 v%d, %d, v%d" % (vXR + 2 * k + c, 2 * k * K1_BUF, vXR + c))
    a("v_lshrrev_b32 v%d, 4, v%d" % (t0, L))
    a("v_and_b32 v%d, 1, v%d" % (t1, t0))
    a("v_lshrrev_b32 v%d, 1, v%d" % (t0, t0))
    a("v_bfe_u32 v%d, v%d, 2, 2" % (t2, L))
    a("v_and_b32 v%d, 1, v%d" % (t3, L))
    a("v_bfe_u32 v%d, v%d, 1, 1" % (t4, L))
    a("v_lshl_add_u32 v%d, v%d, 1, v%d" % (t3, t3, t4))
    a("v_lshlrev_b32 v%d, 3, v%d" % (t3, t3))
    a("v_lshl_add_u32 v%d, v%d, 5, v%d" % (t3, t1, t3))
    a("v_lshl_add_u32 v%d, v%d, 3, v%d" % (t4, t0, t2))
    a("v_lshl_add_u32 v%d, v%d, 8, v%d" % (t4, t4, t3))
    a("s_lshl_b32 s%d, s%d, 13" % (sT0, sHL))
    a("s_add_u32 s%d, s%d, 8192" % (sT0, sT0))
    a("v_add_u32 v%d, s%d, v%d" % (t4, sT0, t4))
    for T in range(4):
        a("v_xor_b32 v%d, %d, v%d" % (t1, T, t2))
        a("v_lshl_add_u32 v%d, v%d, 6, v%d" % (vWR + T, t1, t4))
        for k in (1, 2):
            a("v_add_u32 v%d, %d, v%d" % (vWR + 4 * k + T, 2 * k * K1_BUF, vWR + T))
    for i in range(64):
        a("v_mov_b32 v%d, 0" % (vACC + i))

    def reads(stage, c, st):
        buf = stage % K1_NB
        third, bo = buf >> 1, (buf & 1) * K1_BUF
        a("ds_read_b128 %s, v%d %s" % (vr(vB[st], 4), vXR + 2 * third + c, ds_off(bo)))
        for T in range(4):
            for p in range(2):
                a("ds_read_b64_tr_b16 %s, v%d %s" % (vr(vA[st] + 4 * T + 2 * p, 2), vWR + 4 * third + T, ds_off(bo + (16 * c + 4 * p) * 256)))

    def mfma1(st, T, w):
        if w is not None:
            a("s_waitcnt lgkmcnt(%d)" % w)
        a("v_mfma_f32_32x32x16_bf16 %s, %s, %s, %s" % (vr(vACC + 16 * T, 16), vr(vA[st] + 4 * T, 4), vr(vB[st], 4), vr(vACC + 16 * T, 16)))

    make_srd(a, 4, 24, 4 << 20)
    a("s_lshr_b32 s%d, s2, 3" % sT0)
    a("s_lshl_b32 s%d, s%d, 5" % (sT0, sT0))
    a("s_lshl_b32 s%d, s%d, 2" % (sT1, sWAVE))
    a("s_add_u32 s%d, s%d, s%d" % (sT0, sT0, sT1))
    a("s_lshl_b32 s%d, s%d, 10" % (sT1, sHG))
    a("s_add_u32 s%d, s%d, s%d" % (sT0, sT0, sT1))
    a("s_lshl_b32 s9, s%d, 10" % sT0)
    stamp(a, 1)
    log = []
    for s in range(NINIT):
        log += [("d", s)] * 3
    D = K1_NB - 1
    nxt = NINIT
    for s in range(NST):
        idx = max([i for i, t in enumerate(log) if t == ("d", s)], default=-1)
        n = len(log) - 1 - idx
        a("s_waitcnt vmcnt(%d)" % min(n, 63))
        a("s_barrier")
        if s in (0, 8):
            stamp(a, {0: 2, 8: 3}[s])
        reads(s, 0, 0)
        todo = []
        while nxt < NST and nxt <= s + D and len(todo) < 2:
            todo.append(nxt)
            nxt += 1
        ops = []
        for t in todo:
            ops += [(dma_x, (t,)), (dma_w, (t, 0)), (dma_w, (t, 1))]
            log += [("d", t)] * 3
        if s > 0:
            for T in range(4):
                mfma1(1, T, None)
                k = (len(ops) + 3 - T) // (4 - T) if T < 3 else len(ops)
                for f, args in ops[:k]:
                    f(*args)
                ops = ops[k:]
        else:
            for f, args in ops:
                f(*args)
        a("s_waitcnt lgkmcnt(6)")
        reads(s, 1, 1)
        mfma1(0, 0, 15)
        kv_load(s)
        log.append(("kv", s))
        if s == 10:
            a("s_cmp_lg_u32 s%d, 0" % sWAVE)
            a("s_cbranch_scc1 F_NON_SKIP")
            make_srd(a, 12, 28, 256)
            a("s_memrealtime s[10:11]")
            a("s_waitcnt lgkmcnt(0)")
            a("s_or_b32 s%d, s10, 1" % sNT)
            a("v_mov_b32 v%d, s%d" % (vNON, sNT))
            a("v_mov_b32 v%d, 0" % (vNON + 1))
            a("v_mov_b32 v%d, 128" % (vNON + 2))
            a("v_cmp_eq_u32 vcc, 0, v%d" % L)
            a("s_and_saveexec_b64 s[10:11], vcc")
            a("buffer_atomic_cmpswap v[%d:%d], v%d, s[12:15], 0 offen sc0 sc1" % (vNON, vNON + 1, vNON + 2))
            a("s_mov_b64 exec, s[10:11]")
            a.label("F_NON_SKIP")


        mfma1(0, 1, 13)
        if "nowopf" not in EXP and s in WOPF:
            i = WOPF.index(s)
            a("buffer_load_dwordx4 %s, v%d, s[4:7], s9 offen %s" % (vr(vJ + 4 * (i & 1), 4), vVOFF, buf_off(i * 1024)))
            log.append(("wo", s))
        mfma1(0, 2, 11)
        mfma1(0, 3, 9)
        a("s_waitcnt lgkmcnt(0)")
    for T in range(4):
        mfma1(1, T, None)
    stamp(a, 4)
    a("s_barrier")
    a("s_waitcnt vmcnt(0)")
    stamp(a, 5)
    S_WO = 44
    make_srd(a, S_WO, 24, 4 << 20)
    u0, u1, u2, u3, u4 = vT + 5, vT + 6, vT + 7, vT + 8, vT + 9
    a("v_lshrrev_b32 v%d, 4, v%d" % (u0, L))
    a("v_and_b32 v%d, 15, v%d" % (u1, L))
    a("v_lshlrev_b32 v%d, 2, v%d" % (u2, u0))
    a("v_xor_b32 v%d, v%d, v%d" % (u1, u1, u2))
    a("v_lshlrev_b32 v%d, 8, v%d" % (u0, u0))
    a("v_lshl_add_u32 v%d, v%d, 4, v%d" % (u0, u1, u0))
    a("s_lshl_b32 s%d, s%d, 13" % (sT0, sWAVE))
    a("v_add_u32 v%d, s%d, v%d" % (u0, sT0, u0))
    a("v_lshrrev_b32 v%d, 4, v%d" % (u3, L))
    a("v_and_b32 v%d, 15, v%d" % (u4, L))
    a("v_xor_b32 v%d, v%d, v%d" % (u4, u4, u3))
    a("v_lshlrev_b32 v%d, 8, v%d" % (u3, u3))
    a("v_lshl_add_u32 v%d, v%d, 4, v%d" % (u3, u4, u3))
    a("v_add_u32 v%d, s%d, v%d" % (u3, sT0, u3))
    a("v_add_u32 v%d, 0x10000, v%d" % (u3, u3))
    for j in range(8):
        a("v_xor_b32 v%d, %d, v%d" % (u4, 64 * (j & 3), u3))
        a("ds_write_b128 v%d, %s %s" % (u4, vr(vKR + 4 * j, 4), ds_off(1024 * j)))
    for j in range(8):
        a("ds_write_b128 v%d, %s %s" % (u0, vr(vVR + 4 * j, 4), ds_off(1024 * j)))
    a("v_and_b32 v%d, 31, v%d" % (u1, L))
    a("v_lshrrev_b32 v%d, 5, v%d" % (u2, L))
    a("v_and_b32 v%d, 15, v%d" % (u4, u1))
    a("v_xor_b32 v%d, v%d, v%d" % (u4, u4, u2))
    a("v_lshlrev_b32 v%d, 8, v%d" % (u1, u1))
    a("v_lshl_add_u32 v%d, v%d, 4, v%d" % (u1, u4, u1))
    a("v_add_u32 v%d, s%d, v%d" % (u1, sT0, u1))
    a("v_add_u32 v%d, 0x10000, v%d" % (u1, u1))
    a("s_waitcnt lgkmcnt(7)")
    for jj in range(8):
        a("v_xor_b32 v%d, %d, v%d" % (u4, 32 * jj, u1))
        a("ds_read_b128 %s, v%d" % (vr(vKR + 4 * jj, 4), u4))
    a("v_lshl_add_u32 v%d, v%d, 2, v%d" % (t4, t0, t2))
    a("v_lshl_add_u32 v%d, v%d, 8, v%d" % (t4, t4, t3))
    a("v_add_u32 v%d, s%d, v%d" % (t4, sT0, t4))
    for T in range(4):
        a("v_xor_b32 v%d, %d, v%d" % (t1, T, t2))
        a("v_lshl_add_u32 v%d, v%d, 6, v%d" % (vWR + T, t1, t4))
    vQ = 128
    for i in range(32):
        a("v_cvt_pk_bf16_f32 v%d, v%d, v%d" % (vQ + i, vACC + 2 * i, vACC + 2 * i + 1))
    vS = 0
    for j in range(8):
        a("s_waitcnt lgkmcnt(%d)" % (7 - j))
        a("v_mfma_f32_32x32x16_bf16 %s, %s, %s, %s" % (vr(vS, 16), vr(vKR + 4 * j, 4), vr(vQ + 4 * j, 4), "0" if j == 0 else vr(vS, 16)))
    vVF = 32
    for T in range(4):
        for c2 in range(2):
            for p in range(2):
                a("ds_read_b64_tr_b16 %s, v%d %s" % (vr(vVF + 8 * T + 4 * c2 + 2 * p, 2), vWR + T, ds_off((16 * c2 + 8 * p) * 256)))
    vP = 16
    vE = 96
    for i in range(8):
        a("v_cvt_pk_bf16_f32 v%d, v%d, v%d" % (vP + i, vS + 2 * i, vS + 2 * i + 1))
    for i in range(8):
        a("v_lshlrev_b32 v%d, 16, v%d" % (vE + 2 * i, vP + i))
        a("v_and_b32 v%d, 0xffff0000, v%d" % (vE + 2 * i + 1, vP + i))
    for i in range(16):
        a("v_mul_f32 v%d, s%d, v%d" % (vE + i, sSCALE, vE + i))
    for i in range(8):
        a("v_cvt_pk_bf16_f32 v%d, v%d, v%d" % (vP + i, vE + 2 * i, vE + 2 * i + 1))
    for i in range(8):
        a("v_lshlrev_b32 v%d, 16, v%d" % (vE + 2 * i, vP + i))
        a("v_and_b32 v%d, 0xffff0000, v%d" % (vE + 2 * i + 1, vP + i))
    m0_, m1_ = t0, t1
    a("v_max3_f32 v%d, v%d, v%d, v%d" % (m0_, vE, vE + 1, vE + 2))
    for i in range(3, 15, 2):
        a("v_max3_f32 v%d, v%d, v%d, v%d" % (m0_, m0_, vE + i, vE + i + 1))
    a("v_max_f32 v%d, v%d, v%d" % (m0_, m0_, vE + 15))
    a("v_mov_b32 v%d, v%d" % (m1_, m0_))
    a("s_nop 1")
    a("v_permlane32_swap_b32 v%d, v%d" % (m0_, m1_))
    a("s_nop 1")
    a("v_max_f32 v%d, v%d, v%d" % (m0_, m0_, m1_))
    a("v_mul_f32 v%d, s%d, v%d" % (m0_, sLOG2E, m0_))
    for i in range(16):
        a("v_fma_f32 v%d, v%d, s%d, -v%d" % (vE + i, vE + i, sLOG2E, m0_))
    for i in range(16):
        a("v_exp_f32 v%d, v%d" % (vE + i, vE + i))
    a("s_nop 0")
    s0_, s1_ = t2, t3
    a("v_add_f32 v%d, v%d, v%d" % (s0_, vE, vE + 1))
    a("v_add_f32 v%d, v%d, v%d" % (s1_, vE + 2, vE + 3))
    for i in range(4, 16, 2):
        a("v_add_f32 v%d, v%d, v%d" % (s0_, s0_, vE + i))
        a("v_add_f32 v%d, v%d, v%d" % (s1_, s1_, vE + i + 1))
    a("v_add_f32 v%d, v%d, v%d" % (s0_, s0_, s1_))
    a("v_mov_b32 v%d, v%d" % (s1_, s0_))
    a("s_nop 1")
    a("v_permlane32_swap_b32 v%d, v%d" % (s0_, s1_))
    a("s_nop 1")
    a("v_add_f32 v%d, v%d, v%d" % (s0_, s0_, s1_))
    a("v_rcp_f32 v%d, v%d" % (s0_, s0_))
    a("s_nop 0")
    for i in range(16):
        a("v_mul_f32 v%d, v%d, v%d" % (vE + i, vE + i, s0_))
    for i in range(8):
        a("v_cvt_pk_bf16_f32 v%d, v%d, v%d" % (vP + i, vE + 2 * i, vE + 2 * i + 1))
    vO = 64
    a("s_waitcnt lgkmcnt(0)")
    a("s_nop 1")
    for T in range(4):
        for c2 in range(2):
            a("v_mfma_f32_32x32x16_bf16 %s, %s, %s, %s" % (vr(vO + 16 * T, 16), vr(vVF + 8 * T + 4 * c2, 4), vr(vP + 4 * c2, 4), "0" if c2 == 0 else vr(vO + 16 * T, 16)))
    a("v_lshrrev_b32 v%d, 4, v%d" % (t0, L))
    a("v_and_b32 v%d, 15, v%d" % (t1, L))
    a("v_lshlrev_b32 v%d, 13, v%d" % (t0, t0))
    a("v_lshl_add_u32 v%d, v%d, 4, v%d" % (t0, t1, t0))
    a("s_lshl_b32 s%d, s%d, 18" % (sOB, sB))
    a("s_lshl_b32 s%d, s%d, 8" % (sT0, sH))
    a("s_add_u32 s%d, s%d, s%d" % (sOB, sOB, sT0))
    a("s_nop 7")
    a("s_nop 3")
    vOP = 128
    for T in range(4):
        for jj in range(2):
            for i in range(4):
                a("v_cvt_pk_bf16_f32 v%d, v%d, v%d" % (vOP + 8 * T + 4 * jj + i, vO + 16 * T + 8 * jj + 2 * i, vO + 16 * T + 8 * jj + 2 * i + 1))
            a("v_xor_b32 v%d, %d, v%d" % (u4, 32 * (2 * T + jj), u1))
            a("ds_write_b128 v%d, %s" % (u4, vr(vOP + 8 * T + 4 * jj, 4)))
    a("s_waitcnt lgkmcnt(0)")
    for j in range(8):
        a("v_xor_b32 v%d, %d, v%d" % (u4, 64 * (j & 3), u3))
        a("ds_read_b128 %s, v%d %s" % (vr(vO + 4 * j, 4), u4, ds_off(1024 * j)))
    for j in range(8):
        a("s_add_u32 s%d, s%d, %d" % (sT0, sOB, j * 32768))
        a("s_waitcnt lgkmcnt(%d)" % (7 - j))
        a("buffer_store_dwordx4 %s, v%d, %s, s%d offen" % (vr(vO + 4 * j, 4), t0, sr(S_O, 4), sT0))
    stamp(a, 6)
    a("s_waitcnt vmcnt(0)")
    a("s_barrier")
    stamp(a, 7)

    S_A, S_B, S_P = S_O, S_WO, 52
    sG, sWM, sWN = 61, 62, 65
    sM0A, sM0B = 74, 75
    sAS, sBS = 76, 77
    sABASE, sBBASE = 78, 79
    sPB, sROT = 66, 64
    wA = [64, 72]
    wB = [80, 88]
    wAR = 96
    wBR = 108
    wAOFF = 114
    wBOFF = 116
    a("s_lshl_b32 s%d, s%d, 23" % (sT0, sBLK))
    a("s_add_u32 s%d, s%d, 0x%x" % (sT0, sT0, P_WS_OFF))
    a("s_add_u32 s36, s30, s%d" % sT0)
    a("s_addc_u32 s37, s31, 0")
    make_srd(a, S_P, 36, 8 << 20)
    a("s_lshr_b32 s%d, s%d, 2" % (sG, sWAVE))
    a("s_bfe_u32 s%d, s%d, 0x10001" % (sWM, sWAVE))
    a("s_and_b32 s%d, s%d, 1" % (sWN, sWAVE))
    a("s_lshl_b32 s%d, s%d, 2" % (sROT, sHP))
    a("s_lshl_b32 s%d, s%d, 11" % (sABASE, sHG))
    a("s_lshl_b32 s%d, s%d, 20" % (sBBASE, sHG))
    a("v_lshrrev_b32 v%d, 3, v%d" % (t0, L))
    a("v_and_b32 v%d, 7, v%d" % (t1, L))
    a("v_lshrrev_b32 v%d, 1, v%d" % (t2, t0))
    a("s_lshl_b32 s%d, s%d, 7" % (sT0, sBG))
    a("s_lshl_b32 s%d, s%d, 4" % (sT1, sWAVE))
    a("s_add_u32 s%d, s%d, s%d" % (sT0, sT0, sT1))
    for i in range(2):
        a("v_add_u32 v%d, %d, v%d" % (t3, 4 * i, t2))
        a("v_xor_b32 v%d, v%d, v%d" % (t3, t3, t1))
        a("v_add_u32 v%d, s%d, v%d" % (t4, sT0, t0))
        a("v_add_u32 v%d, %d, v%d" % (t4, 8 * i, t4))
        a("v_lshlrev_b32 v%d, 13, v%d" % (t4, t4))
        a("v_lshl_add_u32 v%d, v%d, 4, v%d" % (wAOFF + i, t3, t4))
    a("v_lshrrev_b32 v%d, 4, v%d" % (t0, L))
    a("v_and_b32 v%d, 15, v%d" % (t1, L))
    a("v_lshlrev_b32 v%d, 2, v%d" % (t2, t0))
    a("v_xor_b32 v%d, v%d, v%d" % (t1, t1, t2))
    a("s_lshl_b32 s%d, s%d, 3" % (sT0, sWAVE))
    a("v_add_u32 v%d, s%d, v%d" % (t0, sT0, t0))
    a("v_lshlrev_b32 v%d, 10, v%d" % (t0, t0))
    a("v_lshl_add_u32 v%d, v%d, 4, v%d" % (t0, t1, t0))
    a("s_lshl_b32 s%d, s%d, 8" % (sT1, sHP))
    a("v_add_u32 v%d, s%d, v%d" % (wBOFF, sT1, t0))
    a("s_lshl_b32 s%d, s%d, 11" % (sM0A, sWAVE))
    a("s_add_u32 s%d, s%d, 16384" % (sM0B, sM0A))

    def dma2_setup(stage):
        a("s_add_u32 s%d, s%d, %d" % (sT3, sROT, stage))
        a("s_and_b32 s%d, s%d, 15" % (sT3, sT3))
        a("s_lshl_b32 s%d, s%d, 7" % (sAS, sT3))
        a("s_add_u32 s%d, s%d, s%d" % (sAS, sAS, sABASE))
        a("s_lshl_b32 s%d, s%d, 16" % (sT3, sT3))
        a("s_add_u32 s%d, s%d, s%d" % (sT3, sT3, sBBASE))

    def dma2_a(stage, i):
        buf = stage % K2_NB
        a("s_add_u32 m0, s%d, %d" % (sM0A, buf * K2_BUF + i * 1024))
        a("s_nop 0")
        a("buffer_load_dwordx4 v%d, %s, s%d offen lds" % (wAOFF + i, sr(S_A, 4), sAS))

    def dma2_b(stage, j):
        buf = stage % K2_NB
        a("s_add_u32 s%d, s%d, %d" % (sBS, sT3, j * 4096))
        a("s_add_u32 m0, s%d, %d" % (sM0B, buf * K2_BUF + j * 1024))
        a("s_nop 0")
        a("buffer_load_dwordx4 v%d, %s, s%d offen lds" % (wBOFF, sr(S_B, 4), sBS))

    def dma2(stage):
        dma2_setup(stage)
        dma2_a(stage, 0)
        dma2_a(stage, 1)
        dma2_b(stage, 0)
        dma2_b(stage, 1)

    D2 = K2_NB - 1
    log2 = []
    S_D = 48
    a("s_add_u32 s36, s30, 0x%x" % F_WS_OFF)
    a("s_addc_u32 s37, s31, 0")
    make_srd(a, S_D, 36, 16384)
    sG1, sCNT, sNON = 67, 69, 68
    sXCC = 12
    a("s_cmp_lg_u32 s%d, 0" % sWAVE)
    a("s_cbranch_scc1 F_S1_SKIP")
    a("v_readfirstlane_b32 s%d, v%d" % (sNON, vNON))
    a("s_and_b32 s%d, s2, 7" % sT0)
    a("s_lshl_b32 s%d, s%d, 3" % (sG1, sT0))
    a("s_add_u32 s%d, s%d, s%d" % (sG1, sG1, sBG))
    a("s_lshl_b32 s%d, s%d, 7" % (sG1, sG1))
    a("s_cmp_eq_u32 s%d, 0" % sNON)
    a("s_cselect_b32 s%d, s%d, s%d" % (sNON, sNT, sNON))
    a("s_getreg_b32 s%d, hwreg(HW_REG_XCC_ID)" % sXCC)
    a("s_and_b32 s%d, s%d, 7" % (sXCC, sXCC))

    def publish(base):
        a("s_lshl_b32 s%d, s%d, 3" % (sT0, sHP))
        a("s_add_u32 s%d, s%d, s%d" % (sT0, sT0, sG1))
        a("v_mov_b32 v%d, s%d" % (t0, sT0))
        a("v_mov_b32 v%d, s%d" % (t2, sNON))
        a("v_mov_b32 v%d, s%d" % (t3, sXCC))
        a("v_cmp_eq_u32 vcc, 0, v%d" % L)
        a("s_and_saveexec_b64 s[10:11], vcc")
        a("buffer_store_dwordx2 v[%d:%d], v%d, %s, 0 offen offset:%d sc0 sc1" % (t2, t3, t0, sr(S_D, 4), base))
        a("s_mov_b64 exec, s[10:11]")

    def waitall(tag, base):
        a("v_and_b32 v%d, 3, v%d" % (t0, L))
        a("v_lshlrev_b32 v%d, 3, v%d" % (t0, t0))
        a("v_add_u32 v%d, s%d, v%d" % (t0, sG1, t0))
        a("s_mov_b32 s%d, 0" % sCNT)
        a.label("%s_POLL" % tag)
        a("buffer_load_dwordx2 v[%d:%d], v%d, %s, 0 offen offset:%d sc0 sc1" % (t2, t3, t0, sr(S_D, 4), base))
        a("s_waitcnt vmcnt(0)")
        a("v_cmp_ne_u32 vcc, s%d, v%d" % (sNON, t2))
        a("s_nop 3")
        a("s_cmp_eq_u64 vcc, 0")
        a("s_cbranch_scc1 %s_OK" % tag)
        a("s_sleep 2")
        a("s_add_u32 s%d, s%d, 1" % (sCNT, sCNT))
        a("s_cmp_lt_u32 s%d, %d" % (sCNT, SPIN_MAX))
        a("s_cbranch_scc1 %s_POLL" % tag)
        a.label("%s_OK" % tag)

    publish(0)
    a.label("F_S1_SKIP")

    def peer_wait():
        a("s_cmp_lg_u32 s%d, 0" % sWAVE)
        a("s_cbranch_scc1 F_S1_DONE")
        waitall("F_S1A", 0)
        a("v_cmp_ne_u32 vcc, s%d, v%d" % (sXCC, t3))
        a("s_nop 3")
        if "forceslow" not in EXP:
            a("s_cmp_eq_u64 vcc, 0")
            a("s_cbranch_scc1 F_S1_DONE")
        a("buffer_wbl2 sc1")
        a("s_waitcnt vmcnt(0)")
        publish(64)
        waitall("F_S1B", 64)
        a("buffer_inv sc1")
        a("s_waitcnt vmcnt(0)")
        a.label("F_S1_DONE")

    stamp(a, 8)
    NINIT2 = 2
    for s in range(NINIT2):
        dma2(s)
        log2 += [("a", s)] * 2 + [("b", s)] * 2
    if STAMP and "p2diag" in EXP:
        stamp(a, 13)
        a("s_waitcnt vmcnt(14)")
        stamp(a, 2)
        a("s_waitcnt vmcnt(12)")
        stamp(a, 3)
    a("v_and_b32 v%d, 31, v%d" % (t0, L))
    a("v_lshrrev_b32 v%d, 5, v%d" % (t1, L))
    a("v_bfe_u32 v%d, v%d, 1, 3" % (t2, t0))
    a("s_lshl_b32 s%d, s%d, 6" % (sT0, sWM))
    a("v_add_u32 v%d, s%d, v%d" % (t3, sT0, t0))
    a("v_lshlrev_b32 v%d, 7, v%d" % (t3, t3))
    a("s_lshl_b32 s%d, s%d, 2" % (sT1, sG))
    for cc in range(2):
        a("v_add_u32 v%d, s%d, v%d" % (t4, sT1, t1))
        a("v_add_u32 v%d, %d, v%d" % (t4, 2 * cc, t4))
        a("v_xor_b32 v%d, v%d, v%d" % (t4, t4, t2))
        a("v_lshl_add_u32 v%d, v%d, 4, v%d" % (wAR + 2 * cc, t4, t3))
        a("v_add_u32 v%d, 4096, v%d" % (wAR + 2 * cc + 1, wAR + 2 * cc))
    a("v_lshrrev_b32 v%d, 4, v%d" % (t0, L))
    a("v_and_b32 v%d, 1, v%d" % (t1, t0))
    a("v_lshrrev_b32 v%d, 1, v%d" % (t0, t0))
    a("v_bfe_u32 v%d, v%d, 2, 2" % (t2, L))
    a("v_and_b32 v%d, 1, v%d" % (t3, L))
    a("v_bfe_u32 v%d, v%d, 1, 1" % (t4, L))
    a("v_lshl_add_u32 v%d, v%d, 1, v%d" % (t3, t3, t4))
    a("v_lshlrev_b32 v%d, 3, v%d" % (t3, t3))
    a("v_lshl_add_u32 v%d, v%d, 5, v%d" % (t3, t1, t3))
    a("v_lshl_add_u32 v%d, v%d, 3, v%d" % (t4, t0, t2))
    a("s_lshl_b32 s%d, s%d, 5" % (sT0, sG))
    a("v_add_u32 v%d, s%d, v%d" % (t4, sT0, t4))
    a("v_lshl_add_u32 v%d, v%d, 8, v%d" % (t4, t4, t3))
    a("v_add_u32 v%d, 16384, v%d" % (t4, t4))
    a("s_lshl_b32 s%d, s%d, 1" % (sT1, sWN))
    for nt in range(2):
        a("s_add_u32 s%d, s%d, %d" % (sT2, sT1, nt))
        a("v_xor_b32 v%d, s%d, v%d" % (t1, sT2, t2))
        a("v_lshl_add_u32 v%d, v%d, 6, v%d" % (wBR + nt, t1, t4))
    for k in (1, 2):
        for i in range(4):
            a("v_add_u32 v%d, 0x%x, v%d" % (wAR + 4 * k + i, k * 65536, wAR + i))
        for i in range(2):
            a("v_add_u32 v%d, 0x%x, v%d" % (wBR + 2 * k + i, k * 65536, wBR + i))
    for i in range(64):
        a("v_mov_b32 v%d, 0" % (vACC + i))

    def reads2(stage, cc, st):
        buf = stage % K2_NB
        k, bo = buf >> 1, (buf & 1) * K2_BUF
        for mt in range(2):
            a("ds_read_b128 %s, v%d %s" % (vr(wA[st] + 4 * mt, 4), wAR + 4 * k + 2 * cc + mt, ds_off(bo)))
        for nt in range(2):
            for p in range(2):
                a("ds_read_b64_tr_b16 %s, v%d %s" % (vr(wB[st] + 4 * nt + 2 * p, 2), wBR + 2 * k + nt, ds_off(bo + (16 * cc + 4 * p) * 256)))

    def mf(st, mt, nt, w):
        if w is not None:
            a("s_waitcnt lgkmcnt(%d)" % w)
        acc = vACC + 32 * mt + 16 * nt
        a("v_mfma_f32_32x32x16_bf16 %s, %s, %s, %s" % (vr(acc, 16), vr(wB[st] + 4 * nt, 4), vr(wA[st] + 4 * mt, 4), vr(acc, 16)))

    WAITS = int(os.environ.get("WAITS", "2"))
    nx2 = NINIT2
    for s in range(NST):
        if s == WAITS:
            peer_wait()
        idx = max(i for i, t in enumerate(log2) if t in (("a", s), ("b", s)))
        a("s_waitcnt vmcnt(%d)" % (len(log2) - 1 - idx))
        a("s_barrier")
        if s == 0:
            stamp(a, 9)
        reads2(s, 0, 0)
        todo = []
        while (s >= WAITS or nx2 < 4) and nx2 < NST and nx2 <= s + D2 and len(todo) < 2:
            todo.append(nx2)
            nx2 += 1
        ops = []
        for t in todo:
            ops += [[(dma2_setup, (t,)), (dma2_a, (t, 0))], [(dma2_a, (t, 1))], [(dma2_b, (t, 0))], [(dma2_b, (t, 1))]]
            log2 += [("a", t)] * 2 + [("b", t)] * 2
        order = ((0, 0), (1, 0), (0, 1), (1, 1))
        for q in range(4):
            if s > 0:
                mf(1, order[q][0], order[q][1], None)
            k = (len(ops) + 3 - q) // (4 - q) if q < 3 else len(ops)
            for grp in ops[:k]:
                for fn, args in grp:
                    fn(*args)
            ops = ops[k:]
        reads2(s, 1, 1)
        mf(0, 0, 0, 8)
        mf(0, 1, 0, None)
        mf(0, 0, 1, 6)
        mf(0, 1, 1, None)
        a("s_waitcnt lgkmcnt(0)")
    for mt, nt in ((0, 0), (1, 0), (0, 1), (1, 1)):
        mf(1, mt, nt, None)
    stamp(a, 10)
    a("s_barrier")
    RS = 528
    GS = 128 * RS
    a("v_and_b32 v%d, 31, v%d" % (t0, L))
    a("v_lshrrev_b32 v%d, 5, v%d" % (t1, L))
    a("s_lshl_b32 s%d, s%d, 6" % (sT0, sWM))
    a("v_add_u32 v%d, s%d, v%d" % (t0, sT0, t0))
    a("s_movk_i32 s%d, %d" % (sT1, RS))
    a("v_mul_lo_u32 v%d, v%d, s%d" % (t0, t0, sT1))
    a("v_lshl_add_u32 v%d, v%d, 5, v%d" % (t0, t1, t0))
    a("s_mul_i32 s%d, s%d, %d" % (sT0, sG, GS))
    a("s_lshl_b32 s%d, s%d, 8" % (sT1, sWN))
    a("s_add_u32 s%d, s%d, s%d" % (sT0, sT0, sT1))
    a("v_add_u32 v%d, s%d, v%d" % (t0, sT0, t0))
    a("s_nop 3")
    for mt in range(2):
        for nt in range(2):
            for jj in range(2):
                for qq in range(2):
                    a("ds_write_b128 v%d, %s %s" % (t0, vr(vACC + 32 * mt + 16 * nt + 8 * jj + 4 * qq, 4), ds_off(mt * 32 * RS + (nt * 32 + 16 * jj + 4 * qq) * 4)))
        a("s_waitcnt lgkmcnt(4)")
    a("s_waitcnt lgkmcnt(0)")
    a("s_barrier")
    a("v_lshrrev_b32 v%d, 5, v%d" % (t1, L))
    a("v_and_b32 v%d, 31, v%d" % (t2, L))
    a("s_lshl_b32 s%d, s%d, 4" % (sT0, sWAVE))
    a("v_add_u32 v%d, s%d, v%d" % (t3, sT0, t1))
    a("s_movk_i32 s%d, %d" % (sT1, RS))
    a("v_mul_lo_u32 v%d, v%d, s%d" % (t3, t3, sT1))
    a("v_lshl_add_u32 v%d, v%d, 4, v%d" % (t3, t2, t3))
    a("v_add_u32 v%d, 0x%x, v%d" % (t4, GS, t3))

    def rd(i):
        a("ds_read_b128 %s, v%d %s" % (vr(vACC + 4 * i, 4), t3, ds_off(2 * RS * i)))
        a("ds_read_b128 %s, v%d %s" % (vr(vACC + 32 + 4 * i, 4), t4, ds_off(2 * RS * i)))
    a("v_lshlrev_b32 v%d, 11, v%d" % (t1, t1))
    a("v_lshl_add_u32 v%d, v%d, 4, v%d" % (t1, t2, t1))
    a("s_lshl_b32 s%d, s%d, 7" % (sPB, sBG))
    a("s_lshl_b32 s%d, s%d, 11" % (sPB, sPB))
    a("s_lshl_b32 s%d, s%d, 9" % (sT1, sHP))
    a("s_add_u32 s%d, s%d, s%d" % (sPB, sPB, sT1))
    a("s_lshr_b32 s%d, s%d, 1" % (sT1, sWAVE))
    a("s_cmp_eq_u32 s%d, s%d" % (sT1, sHG))
    a("s_cbranch_scc1 F_P_SKIP")
    for i in range(6):
        rd(i)
    a("s_lshl_b32 s%d, s%d, 11" % (sT0, sT0))
    a("s_add_u32 s%d, s%d, s%d" % (sT0, sT0, sPB))
    a("s_lshl_b32 s%d, s%d, 21" % (sT1, sHG))
    a("s_add_u32 s%d, s%d, s%d" % (sT0, sT0, sT1))
    for i in range(8):
        a("s_waitcnt lgkmcnt(%d)" % (10 if i < 2 else 2 * (7 - i)))
        if i < 2:
            rd(6 + i)
        for q in range(4):
            a("v_add_f32 v%d, v%d, v%d" % (vACC + 4 * i + q, vACC + 4 * i + q, vACC + 32 + 4 * i + q))
        a("s_add_u32 s%d, s%d, %d" % (sT1, sT0, i * 4096))
        a("buffer_store_dwordx4 %s, v%d, %s, s%d offen sc1" % (vr(vACC + 4 * i, 4), t1, sr(S_P, 4), sT1))
    a.label("F_P_SKIP")
    stamp(a, 11)
    a("s_waitcnt vmcnt(0)")
    a("s_barrier")
    stamp(a, 12)
    a("s_cmp_lg_u32 s%d, 0" % sWAVE)
    a("s_cbranch_scc1 F_S2_DONE")
    a("s_lshl_b32 s%d, s%d, 5" % (sG1, sBLK))
    a("s_lshl_b32 s%d, s%d, 2" % (sT0, sBG))
    a("s_add_u32 s%d, s%d, s%d" % (sG1, sG1, sT0))
    a("s_add_u32 s%d, s%d, s%d" % (sG1, sG1, sHP))
    a("s_add_u32 s%d, s%d, 64" % (sG1, sG1))
    a("s_lshl_b32 s%d, s%d, 7" % (sG1, sG1))
    a("s_lshl_b32 s%d, s%d, 3" % (sT0, sHG))
    a("s_add_u32 s%d, s%d, s%d" % (sT0, sT0, sG1))
    a("v_mov_b32 v%d, s%d" % (t0, sT0))
    a("v_mov_b32 v%d, s%d" % (t2, sNON))
    a("v_mov_b32 v%d, s%d" % (t3, sXCC))
    a("v_cmp_eq_u32 vcc, 0, v%d" % L)
    a("s_and_saveexec_b64 s[10:11], vcc")
    a("buffer_store_dwordx2 v[%d:%d], v%d, %s, 0 offen sc0 sc1" % (t2, t3, t0, sr(S_D, 4)))
    a("s_mov_b64 exec, s[10:11]")
    waitall("F_S2A", 0)
    a.label("F_S2_DONE")
    a("s_barrier")
    stamp(a, 13)
    S_OUT = 40
    make_srd(a, S_OUT, 26, 2 << 20)
    a("s_lshl_b32 s%d, s%d, 5" % (sT0, sHG))
    a("s_lshl_b32 s%d, s%d, 2" % (sT1, sWAVE))
    a("s_add_u32 s%d, s%d, s%d" % (sT0, sT0, sT1))
    a("v_lshrrev_b32 v%d, 5, v%d" % (t2, L))
    a("v_and_b32 v%d, 31, v%d" % (t3, L))
    a("v_add_u32 v%d, s%d, v%d" % (t4, sT0, t2))
    a("s_movk_i32 s%d, %d" % (sT1, RS))
    a("v_mul_lo_u32 v%d, v%d, s%d" % (t4, t4, sT1))
    a("v_lshl_add_u32 v%d, v%d, 4, v%d" % (t4, t3, t4))
    a("v_add_u32 v%d, 0x%x, v%d" % (t0, GS, t4))
    a("s_lshl_b32 s%d, s%d, 11" % (sT1, sT0))
    a("s_add_u32 s%d, s%d, s%d" % (sT1, sT1, sPB))
    for d in range(1, 4):
        a("s_add_u32 s%d, s%d, %d" % (sT2, sHG, d))
        a("s_and_b32 s%d, s%d, 3" % (sT2, sT2))
        a("s_lshl_b32 s%d, s%d, 21" % (sT2, sT2))
        a("s_add_u32 s%d, s%d, s%d" % (sT2, sT2, sT1))
        a("s_add_u32 s%d, s%d, 4096" % (sT3, sT2))
        a("buffer_load_dwordx4 %s, v%d, %s, s%d offen sc1" % (vr(16 + 8 * (d - 1), 4), t1, sr(S_P, 4), sT2))
        a("buffer_load_dwordx4 %s, v%d, %s, s%d offen sc1" % (vr(16 + 8 * (d - 1) + 4, 4), t1, sr(S_P, 4), sT3))
    for i in range(2):
        a("ds_read_b128 %s, v%d %s" % (vr(4 * i, 4), t4, ds_off(2 * RS * i)))
        a("ds_read_b128 %s, v%d %s" % (vr(8 + 4 * i, 4), t0, ds_off(2 * RS * i)))
    a("v_lshlrev_b32 v%d, 11, v%d" % (t2, t2))
    a("v_lshl_add_u32 v%d, v%d, 3, v%d" % (t2, t3, t2))
    a("s_lshl_b32 s%d, s%d, 7" % (sT1, sBG))
    a("s_add_u32 s%d, s%d, s%d" % (sT1, sT1, sT0))
    a("s_lshl_b32 s%d, s%d, 11" % (sT1, sT1))
    a("s_lshl_b32 s%d, s%d, 10" % (sT2, sBLK))
    a("s_add_u32 s%d, s%d, s%d" % (sT1, sT1, sT2))
    a("s_lshl_b32 s%d, s%d, 8" % (sT2, sHP))
    a("s_add_u32 s%d, s%d, s%d" % (sT1, sT1, sT2))
    a("s_add_u32 s%d, s%d, 4096" % (sT2, sT1))
    a("s_waitcnt lgkmcnt(0)")
    for q in range(8):
        a("v_add_f32 v%d, v%d, v%d" % (q, q, 8 + q))
    a("s_waitcnt vmcnt(0)")
    for q in range(8):
        a("v_add_f32 v%d, v%d, v%d" % (16 + q, 16 + q, 24 + q))
        a("v_add_f32 v%d, v%d, v%d" % (q, q, 32 + q))
    for q in range(8):
        a("v_add_f32 v%d, v%d, v%d" % (q, q, 16 + q))
    for q in range(4):
        a("v_cvt_pk_bf16_f32 v%d, v%d, v%d" % (40 + q, 2 * q, 2 * q + 1))
    a("buffer_store_dwordx2 v[40:41], v%d, %s, s%d offen" % (t2, sr(S_OUT, 4), sT1))
    a("buffer_store_dwordx2 v[42:43], v%d, %s, s%d offen" % (t2, sr(S_OUT, 4), sT2))
    if STAMP:
        a("s_waitcnt vmcnt(0)")
        stamp(a, 2)
        a("s_memrealtime s[98:99]")
        a("s_waitcnt lgkmcnt(0)")
        a("s_mov_b32 s97, s98")
        stamp_dump(a, 0, 40, vTID)
    if "diag" in EXP:
        a("s_waitcnt vmcnt(0)")
        a("s_memrealtime s[98:99]")
        a("s_waitcnt lgkmcnt(0)")
        a("s_add_u32 s36, s30, 0x%x" % (60 << 20))
        a("s_addc_u32 s37, s31, 0")
        make_srd(a, 40, 36, 65536)
        a("s_lshl_b32 s3, s2, 3")
        a("v_mov_b32 v0, s3")
        a("v_mov_b32 v2, s96")
        a("v_mov_b32 v3, s98")
        a("s_cmp_lg_u32 s%d, 0" % sWAVE)
        a("s_cbranch_scc1 F_DONE")
        a("buffer_store_dwordx2 v[2:3], v0, s[40:43], 0 offen")
    if "diag2" in EXP:
        a("s_waitcnt vmcnt(0)")
        rt(a, 6)
        a("s_cmp_lg_u32 s%d, 0" % sWAVE)
        a("s_cbranch_scc1 F_DONE")
        a("s_cmp_lg_u32 s2, 0")
        a("s_cbranch_scc1 F_DONE")
        make_srd(a, 40, 28, 256)
        a("v_mov_b32 v0, 32")
        for i in range(7):
            a("v_mov_b32 v%d, s%d" % (2 + i, 88 + i))
        a("v_cmp_eq_u32 vcc, 0, v%d" % L)
        a("s_and_saveexec_b64 s[10:11], vcc")
        a("buffer_store_dwordx4 v[2:5], v0, s[40:43], 0 offen")
        a("buffer_store_dwordx4 v[6:9], v0, s[40:43], 0 offen offset:16")
    a.label("F_DONE")
    a("s_endpgm")
    return kernel_desc(name, NV, 100)


def gen_k3(a):
    name = "k3_kernel"
    kernel_begin(a, name)
    a("s_cmp_ge_u32 s2, %d" % (0 if "k3empty" in EXP else 256))
    a("s_cbranch_scc1 K3_DONE")
    if "diag" in EXP:
        a("s_memrealtime s[36:37]")
    a("s_load_dwordx2 s[4:5], s[0:1], 80")
    a("s_load_dwordx2 s[6:7], s[0:1], 96")
    a("s_lshl_b32 s3, s2, 8")
    a("v_add_u32 v1, s3, v0")
    a("s_waitcnt lgkmcnt(0)")
    a("s_add_u32 s6, s6, 0x%x" % P_WS_OFF)
    a("s_addc_u32 s7, s7, 0")
    make_srd(a, 8, 6, 16 << 20)
    make_srd(a, 12, 4, 2 << 20)
    a("v_lshlrev_b32 v2, 4, v1")
    for i in range(4):
        blk = i >> 1
        for ks in range(4):
            a("s_mov_b32 s%d, 0x%x" % (16 + 4 * i + ks, blk * (8 << 20) + ks * (2 << 20) + (i & 1) * (1 << 20)))
    for i in range(4):
        for ks in range(4):
            a("buffer_load_dwordx4 %s, v2, s[8:11], s%d offen" % (vr(8 + 16 * i + 4 * ks, 4), 16 + 4 * i + ks))
    a("v_lshrrev_b32 v3, 7, v1")
    a("v_lshlrev_b32 v3, 11, v3")
    a("v_and_b32 v4, 127, v1")
    a("v_lshl_add_u32 v3, v4, 3, v3")
    for i in range(4):
        a("s_waitcnt vmcnt(%d)" % (12 - 4 * i))
        b = 8 + 16 * i
        for q in range(4):
            a("v_add_f32 v%d, v%d, v%d" % (b + q, b + q, b + 4 + q))
            a("v_add_f32 v%d, v%d, v%d" % (b + 8 + q, b + 8 + q, b + 12 + q))
        for q in range(4):
            a("v_add_f32 v%d, v%d, v%d" % (b + q, b + q, b + 8 + q))
        a("v_cvt_pk_bf16_f32 v%d, v%d, v%d" % (b, b, b + 1))
        a("v_cvt_pk_bf16_f32 v%d, v%d, v%d" % (b + 1, b + 2, b + 3))
        a("s_mov_b32 s16, 0x%x" % ((i >> 1) * 1024 + (i & 1) * 512 * 2048))
        a("buffer_store_dwordx2 %s, v3, s[12:15], s16 offen" % vr(b, 2))
    if "diag" in EXP:
        a("s_cmp_lg_u32 s2, 0")
        a("s_cbranch_scc1 K3_DONE")
        a("s_waitcnt vmcnt(0)")
        a("s_memrealtime s[38:39]")
        a("s_load_dwordx2 s[4:5], s[0:1], 88")
        a("s_load_dwordx2 s[6:7], s[0:1], 96")
        a("s_waitcnt lgkmcnt(0)")
        a("s_add_u32 s6, s6, 0x%x" % (60 << 20))
        a("s_addc_u32 s7, s7, 0")
        make_srd(a, 8, 6, 65536)
        make_srd(a, 12, 4, 256)
        a("v_lshlrev_b32 v1, 3, v0")
        a("buffer_load_dwordx2 v[4:5], v1, s[8:11], 0 offen")
        a("s_waitcnt vmcnt(0)")
        a("v_cmp_gt_u32 vcc, 6, v0")
        a("s_and_saveexec_b64 s[20:21], vcc")
        a("buffer_store_dwordx2 v[4:5], v1, s[12:15], 0 offen")
        a("s_mov_b64 exec, s[20:21]")
        a("v_mov_b32 v6, s36")
        a("v_mov_b32 v7, s38")
        a("v_mov_b32 v1, 48")
        a("v_cmp_eq_u32 vcc, 0, v0")
        a("s_and_saveexec_b64 s[20:21], vcc")
        a("buffer_store_dwordx2 v[6:7], v1, s[12:15], 0 offen")
    a.label("K3_DONE")
    a("s_endpgm")
    return kernel_desc(name, 80, 40)


def main():
    a = Asm()
    hdr = HEADER + "; @launch grid=(256,1,1) block=(512,1,1) lds=%d\n" % F_LDS
    a.raw('.amdgcn_target "amdgcn-amd-amdhsa--gfx950"')
    a.raw(".text")
    descs = [gen_fused(a)]
    a.raw('.section .rodata,"a"')
    for d in descs:
        a.raw(".p2align 6")
        a.raw(d)
    open(OUT, "w").write(hdr + a.text())


if __name__ == "__main__":
    main()
```

```python
import sys, os
EXP = os.environ.get("EXP", "")

NAME = "concat_heads__gqa_block_cached__mha_block_cached__near_ridge"
OUT = os.environ.get("OUT", "cdna_kernels/%s.s" % NAME)

HEADER = """; Kernarg layout for this problem (104 bytes, ptrs only, base s[0:1]):
"""


class Asm:
    def __init__(self):
        self.lines = []

    def __call__(self, s):
        self.lines.append("    " + s)

    def label(self, s):
        self.lines.append(s + ":")

    def raw(self, s):
        self.lines.append(s)

    def text(self):
        return "\n".join(self.lines) + "\n"


def vr(base, n):
    return "v[%d:%d]" % (base, base + n - 1)


def sr(base, n):
    return "s[%d:%d]" % (base, base + n - 1)


def buf_off(o):
    assert 0 <= o < 4096, o
    return "offset:%d" % o


def ds_off(o):
    assert 0 <= o < 65536, o
    return "offset:%d" % o


def kernel_begin(a, name):
    a.raw(".globl %s" % name)
    a.raw(".p2align 8")
    a.raw(".type %s,@function" % name)
    a.label(name)


def kernel_desc(name, vgpr, sgpr, accum=None):
    if accum is None:
        accum = (vgpr + 3) // 4 * 4
    return """.amdhsa_kernel %s
  .amdhsa_next_free_vgpr %d
  .amdhsa_next_free_sgpr %d
  .amdhsa_accum_offset %d
  .amdhsa_group_segment_fixed_size 0
  .amdhsa_kernarg_size 104
  .amdhsa_user_sgpr_count 2
  .amdhsa_user_sgpr_kernarg_segment_ptr 1
  .amdhsa_system_sgpr_workgroup_id_x 1
.end_amdhsa_kernel
""" % (name, vgpr, sgpr, accum)


def make_srd(a, d, base_lo, size):
    a("s_mov_b32 s%d, s%d" % (d, base_lo))
    a("s_and_b32 s%d, s%d, 0xffff" % (d + 1, base_lo + 1))
    a("s_mov_b32 s%d, 0x%x" % (d + 2, size))
    a("s_mov_b32 s%d, 0x00020000" % (d + 3))


STAMP = "stamp" in EXP
KVMOD = " sc0 sc1 nt" if "kvnt" in EXP else ""
WMOD = " nt" if "wnt" in EXP else ""
DMOD = " nt" if "dnt" in EXP else ""
NSTAMP = 16


def rt(a, idx):
    if "diag2" in EXP:
        a("s_memrealtime s[98:99]")
        a("s_waitcnt lgkmcnt(0)")
        a("s_mov_b32 s%d, s98" % (88 + idx))


def stamp(a, idx):
    m = {0: 0, 2: 1, 4: 2, 7: 3, 10: 4, 13: 5}
    if "diag2" in EXP and idx in m:
        rt(a, m[idx])
    if STAMP:
        assert idx < NSTAMP
        a("s_memtime s[98:99]")
        a("s_waitcnt lgkmcnt(0)")
        a("s_mov_b32 s%d, s98" % (82 + idx))


def stamp_init(a, vtid):
    if STAMP:
        a("v_mov_b32 v%d, v0" % vtid)
        for i in range(NSTAMP):
            a("s_mov_b32 s%d, 0" % (82 + i))


def stamp_dump(a, kidx, vtmp, vtid):
    if not STAMP:
        return
    a("s_load_dwordx2 s[4:5], s[0:1], 96")
    a("s_waitcnt lgkmcnt(0)")
    a("s_add_u32 s4, s4, 0x%x" % ((64 << 20) + kidx * 262144))
    a("s_addc_u32 s5, s5, 0")
    a("s_and_b32 s5, s5, 0xffff")
    a("s_mov_b32 s6, 262144")
    a("s_mov_b32 s7, 0x00020000")
    a("s_lshl_b32 s3, s2, 10")
    a("v_lshrrev_b32 v%d, 6, v%d" % (vtmp, vtid))
    a("v_lshlrev_b32 v%d, 6, v%d" % (vtmp, vtmp))
    a("v_add_u32 v%d, s3, v%d" % (vtmp, vtmp))
    a("v_and_b32 v%d, 63, v%d" % (vtid, vtid))
    a("v_cmp_eq_u32 vcc, 0, v%d" % vtid)
    a("s_and_saveexec_b64 s[8:9], vcc")
    for i in range(NSTAMP):
        a("v_mov_b32 v%d, s%d" % (vtmp + 1, 82 + i))
        a("buffer_store_dword v%d, v%d, s[4:7], 0 offen offset:%d" % (vtmp + 1, vtmp, 4 * i))
        a("s_nop 1")
    a("s_mov_b64 exec, s[8:9]")


O_WS_OFF = 0
P_WS_OFF = 16 << 20

K1_BUF = 24576
K1_NB = 6
K2_BUF = 32768
K2_NB = 5
F_LDS = 163840
SPIN_MAX = 200000
F_WS_OFF = 48 << 20
WOPF = [5, 7, 9, 11]


def gen_fused(a):
    name = NAME + "_kernel"
    kernel_begin(a, name)
    S_X, S_W, S_K, S_V, S_O = 40, 44, 48, 52, 56
    sWAVE, sBL, sHL, sBG, sH0, sB, sH = 60, 61, 62, 63, 64, 65, 66
    sKB, sKB2, sOB = 67, 68, 69
    sT0, sT1, sT2, sT3 = 70, 71, 72, 73
    sM0X, sM0W = 74, 75
    sXS, sWS = 76, 77
    sSCALE, sLOG2E = 78, 79
    sBLK, sHG, sHP = 80, 81, 39
    vACC = 0
    vKR = 64
    vVR = 96
    vA = [128, 144]
    vB = [160, 164]
    vXR = 168
    vWR = 174
    vVOFF = 187
    vXOFF = 188
    vWOFF = 189
    vT = 190
    vLANE = 200
    vTID = 201
    vJ = 204
    NV = 216
    L = vLANE
    t0, t1, t2, t3, t4 = vT, vT + 1, vT + 2, vT + 3, vT + 4
    NST = 16

    a("s_cmp_ge_u32 s2, 256")
    a("s_cbranch_scc1 F_DONE")
    stamp_init(a, vTID)
    stamp(a, 0)
    if "diag" in EXP:
        a("s_memrealtime s[98:99]")
        a("s_waitcnt lgkmcnt(0)")
        a("s_mov_b32 s96, s98")
    if STAMP:
        a("s_memrealtime s[98:99]")
        a("s_waitcnt lgkmcnt(0)")
        a("s_mov_b32 s96, s98")
    a("s_load_dwordx16 s[16:31], s[0:1], 0")
    a("s_load_dwordx8 s[32:39], s[0:1], 64")
    a("s_load_dwordx2 s[14:15], s[0:1], 96")
    a("v_lshrrev_b32 v%d, 6, v0" % vT)
    a("v_and_b32 v%d, 63, v0" % vLANE)
    a("s_nop 0")
    a("v_readfirstlane_b32 s%d, v%d" % (sWAVE, vT))
    if "staticid" not in EXP:
        a("s_load_dwordx2 s[10:11], s[0:1], 88")
        a("s_getreg_b32 s12, hwreg(HW_REG_XCC_ID)")
        a("s_and_b32 s12, s12, 7")
        a("s_cmp_lg_u32 s%d, 0" % sWAVE)
        a("s_cbranch_scc1 F_TK_WAIT")
        a("s_waitcnt lgkmcnt(0)")
        make_srd(a, 4, 10, 256)
        a("s_lshl_b32 s13, s12, 2")
        a("v_mov_b32 v%d, s13" % (vT + 1))
        a("v_mov_b32 v%d, 1" % (vT + 2))
        a("v_mov_b32 v%d, 0" % (vT + 3))
        a("v_cmp_eq_u32 vcc, 0, v%d" % vLANE)
        a("s_and_saveexec_b64 s[8:9], vcc")
        a("buffer_atomic_add v%d, v%d, s[4:7], 0 offen sc0" % (vT + 2, vT + 1))
        a("s_waitcnt vmcnt(0)")
        a("ds_write_b32 v%d, v%d" % (vT + 3, vT + 2))
        a("s_mov_b64 exec, s[8:9]")
        a("s_waitcnt lgkmcnt(0)")
        a("s_branch F_TK_JOIN")
        a.label("F_TK_WAIT")
        if "nopf0" not in EXP:
            a("s_waitcnt lgkmcnt(0)")
            a("s_cmp_lt_u32 s12, 4")
            a("s_cselect_b32 s4, s16, s26")
            a("s_cselect_b32 s5, s17, s27")
            a("s_cselect_b32 s8, s22, s32")
            a("s_cselect_b32 s9, s23, s33")
            a("s_and_b32 s5, s5, 0xffff")
            a("s_mov_b32 s6, 0x%x" % (1 << 20))
            a("s_mov_b32 s7, 0x00020000")
            a("s_and_b32 s9, s9, 0xffff")
            a("s_mov_b32 s10, 0x%x" % (4 << 20))
            a("s_mov_b32 s11, 0x00020000")
            a("s_lshr_b32 s13, s2, 3")
            a("v_lshlrev_b32 v%d, 4, v%d" % (vT + 1, vLANE))
            a("s_lshl_b32 s%d, s13, 5" % sT0)
            a("s_lshl_b32 s%d, s%d, 2" % (sT1, sWAVE))
            a("s_add_u32 s%d, s%d, s%d" % (sT0, sT0, sT1))
            a("s_lshl_b32 s%d, s%d, 10" % (sT0, sT0))
            for i in range(4):
                a("buffer_load_dwordx4 %s, v%d, s[4:7], s%d offen %s" % (vr(vJ + 4 * (i & 1), 4), vT + 1, sT0, buf_off(i * 1024)))
            a("s_lshl_b32 s%d, s13, 4" % sT0)
            a("s_lshl_b32 s%d, s%d, 1" % (sT1, sWAVE))
            a("s_add_u32 s%d, s%d, s%d" % (sT0, sT0, sT1))
            a("s_lshl_b32 s%d, s%d, 13" % (sT0, sT0))
            a("s_and_b32 s%d, s12, 3" % sT1)
            a("s_lshl_b32 s%d, s%d, 11" % (sT1, sT1))
            a("s_add_u32 s%d, s%d, s%d" % (sT0, sT0, sT1))
            a("s_add_u32 s%d, s%d, 8192" % (sT1, sT0))
            for i in range(4):
                a("buffer_load_dwordx4 %s, v%d, s[8:11], s%d offen %s" % (vr(vJ + 4 * (i & 1), 4), vT + 1, sT0 if i < 2 else sT1, buf_off((i & 1) * 1024)))
        a.label("F_TK_JOIN")
        a("s_barrier")
        a("v_mov_b32 v%d, 0" % (vT + 3))
        a("ds_read_b32 v%d, v%d" % (vT + 2, vT + 3))
        a("s_waitcnt lgkmcnt(0)")
        a("v_readfirstlane_b32 s13, v%d" % (vT + 2))
        a("s_nop 3")
        a("s_barrier")
        a("s_cmp_ge_u32 s13, 32")
        a("s_cbranch_scc1 F_DONE")
        a("s_lshl_b32 s13, s13, 3")
        a("s_add_u32 s2, s13, s12")
    a("s_and_b32 s%d, s2, 7" % sT0)
    a("s_lshr_b32 s%d, s2, 3" % sT1)
    a("s_lshr_b32 s%d, s%d, 2" % (sBG, sT1))
    a("s_and_b32 s%d, s%d, 3" % (sT1, sT1))
    a("s_and_b32 s%d, s%d, 3" % (sHG, sT0))
    a("s_lshl_b32 s%d, s%d, 3" % (sH0, sHG))
    a("s_lshl_b32 s%d, s%d, 1" % (sT2, sT1))
    a("s_add_u32 s%d, s%d, s%d" % (sH0, sH0, sT2))
    a("s_lshr_b32 s%d, s%d, 2" % (sBLK, sT0))
    a("s_mov_b32 s13, s%d" % sT1)
    a("v_lshrrev_b32 v%d, 2, v%d" % (t0, L))
    a("v_and_b32 v%d, 3, v%d" % (t1, L))
    a("v_lshrrev_b32 v%d, 4, v%d" % (t2, L))
    a("v_xor_b32 v%d, v%d, v%d" % (t1, t1, t2))
    a("s_lshl_b32 s%d, s%d, 7" % (sT0, sBG))
    a("s_lshl_b32 s%d, s%d, 4" % (sT1, sWAVE))
    a("s_add_u32 s%d, s%d, s%d" % (sT0, sT0, sT1))
    a("v_add_u32 v%d, s%d, v%d" % (t0, sT0, t0))
    a("v_lshlrev_b32 v%d, 10, v%d" % (t0, t0))
    a("v_lshl_add_u32 v%d, v%d, 4, v%d" % (vXOFF, t1, t0))
    a("s_lshl_b32 s%d, s%d, 10" % (sM0X, sWAVE))
    a("v_lshrrev_b32 v%d, 4, v%d" % (t0, L))
    a("v_and_b32 v%d, 15, v%d" % (t1, L))
    a("v_lshlrev_b32 v%d, 2, v%d" % (t2, t0))
    a("v_xor_b32 v%d, v%d, v%d" % (t1, t1, t2))
    a("s_lshr_b32 s%d, s%d, 1" % (sT0, sWAVE))
    a("s_lshl_b32 s%d, s%d, 3" % (sT0, sT0))
    a("v_add_u32 v%d, s%d, v%d" % (t0, sT0, t0))
    a("v_lshlrev_b32 v%d, 13, v%d" % (t0, t0))
    a("v_lshl_add_u32 v%d, v%d, 4, v%d" % (t0, t1, t0))
    a("s_and_b32 s%d, s%d, 1" % (sT1, sWAVE))
    a("s_add_u32 s%d, s%d, s%d" % (sT2, sH0, sT1))
    a("s_lshl_b32 s%d, s%d, 8" % (sT2, sT2))
    a("v_add_u32 v%d, s%d, v%d" % (vWOFF, sT2, t0))
    a("s_lshl_b32 s%d, s%d, 13" % (sM0W, sT1))
    a("s_lshl_b32 s%d, s%d, 8" % (sT0, sT0))
    a("s_add_u32 s%d, s%d, s%d" % (sM0W, sM0W, sT0))
    a("s_add_u32 s%d, s%d, 8192" % (sM0W, sM0W))
    a("s_waitcnt lgkmcnt(0)")
    a("s_cmp_eq_u32 s%d, 0" % sBLK)
    for i in range(5):
        a("s_cselect_b32 s%d, s%d, s%d" % (16 + 2 * i, 16 + 2 * i, 26 + 2 * i))
        a("s_cselect_b32 s%d, s%d, s%d" % (17 + 2 * i, 17 + 2 * i, 27 + 2 * i))
    a("s_mov_b32 s26, s36")
    a("s_mov_b32 s27, s37")
    a("s_mov_b32 s28, s38")
    a("s_mov_b32 s29, s39")
    a("s_mov_b32 s30, s14")
    a("s_mov_b32 s31, s15")
    a("s_mov_b32 s%d, s13" % sHP)
    make_srd(a, S_X, 16, 1 << 20)
    make_srd(a, S_W, 22, 4 << 20)
    vNON = 212
    sNT = 8

    def dma_x(stage):
        buf = stage % K1_NB
        a("s_mov_b32 s%d, %d" % (sXS, stage * 64))
        a("s_add_u32 m0, s%d, %d" % (sM0X, buf * K1_BUF))
        a("s_nop 0")
        a("buffer_load_dwordx4 v%d, %s, s%d offen%s lds" % (vXOFF, sr(S_X, 4), sXS, DMOD))

    def dma_w(stage, j):
        buf = stage % K1_NB
        a("s_mov_b32 s%d, %d" % (sWS, stage * 262144 + j * 32768))
        a("s_add_u32 m0, s%d, %d" % (sM0W, buf * K1_BUF + j * 1024))
        a("s_nop 0")
        a("buffer_load_dwordx4 v%d, %s, s%d offen%s lds" % (vWOFF, sr(S_W, 4), sWS, DMOD))

    NINIT = 2
    for s in range(NINIT):
        dma_x(s)
        dma_w(s, 0)
        dma_w(s, 1)
    make_srd(a, S_K, 18, 8 << 20)
    make_srd(a, S_V, 20, 8 << 20)
    a("s_lshl_b32 s%d, s%d, 23" % (sT0, sBLK))
    a("s_add_u32 s36, s30, s%d" % sT0)
    a("s_addc_u32 s37, s31, 0")
    make_srd(a, S_O, 36, 8 << 20)
    a("s_lshr_b32 s%d, s%d, 1" % (sBL, sWAVE))
    a("s_and_b32 s%d, s%d, 1" % (sHL, sWAVE))
    a("s_lshl_b32 s%d, s%d, 2" % (sB, sBG))
    a("s_add_u32 s%d, s%d, s%d" % (sB, sB, sBL))
    a("s_add_u32 s%d, s%d, s%d" % (sH, sH0, sHL))
    a("s_mov_b32 s%d, 0x3db504f3" % sSCALE)
    a("s_mov_b32 s%d, 0x3fb8aa3b" % sLOG2E)
    a("v_and_b32 v%d, 31, v%d" % (t0, L))
    a("v_lshrrev_b32 v%d, 5, v%d" % (t1, L))
    a("v_lshlrev_b32 v%d, 4, v%d" % (vVOFF, L))
    a("s_lshl_b32 s%d, s%d, 5" % (sKB, sB))
    a("s_add_u32 s%d, s%d, s%d" % (sKB, sKB, sH))
    a("s_lshl_b32 s%d, s%d, 13" % (sKB, sKB))
    a("s_add_u32 s%d, s%d, 4096" % (sKB2, sKB))

    def kv_load(idx):
        if idx < 8:
            a("buffer_load_dwordx4 %s, v%d, %s, s%d offen %s" % (vr(vKR + 4 * idx, 4), vVOFF, sr(S_K, 4), sKB if idx < 4 else sKB2, buf_off(1024 * (idx & 3))) + KVMOD)
        else:
            j = idx - 8
            a("buffer_load_dwordx4 %s, v%d, %s, s%d offen %s" % (vr(vVR + 4 * j, 4), vVOFF, sr(S_V, 4), sKB if j < 4 else sKB2, buf_off(1024 * (j & 3))) + KVMOD)

    a("v_bfe_u32 v%d, v%d, 2, 2" % (t2, t0))
    a("s_lshl_b32 s%d, s%d, 5" % (sT0, sBL))
    a("v_add_u32 v%d, s%d, v%d" % (t3, sT0, t0))
    a("v_lshlrev_b32 v%d, 6, v%d" % (t3, t3))
    for c in range(2):
        a("v_add_u32 v%d, %d, v%d" % (t4, 2 * c, t1))
        a("v_xor_b32 v%d, v%d, v%d" % (t4, t4, t2))
        a("v_lshl_add_u32 v%d, v%d, 4, v%d" % (vXR + c, t4, t3))
        for k in (1, 2):
            a("v_add_u32 v%d, %d, v%d" % (vXR + 2 * k + c, 2 * k * K1_BUF, vXR + c))
    a("v_lshrrev_b32 v%d, 4, v%d" % (t0, L))
    a("v_and_b32 v%d, 1, v%d" % (t1, t0))
    a("v_lshrrev_b32 v%d, 1, v%d" % (t0, t0))
    a("v_bfe_u32 v%d, v%d, 2, 2" % (t2, L))
    a("v_and_b32 v%d, 1, v%d" % (t3, L))
    a("v_bfe_u32 v%d, v%d, 1, 1" % (t4, L))
    a("v_lshl_add_u32 v%d, v%d, 1, v%d" % (t3, t3, t4))
    a("v_lshlrev_b32 v%d, 3, v%d" % (t3, t3))
    a("v_lshl_add_u32 v%d, v%d, 5, v%d" % (t3, t1, t3))
    a("v_lshl_add_u32 v%d, v%d, 3, v%d" % (t4, t0, t2))
    a("v_lshl_add_u32 v%d, v%d, 8, v%d" % (t4, t4, t3))
    a("s_lshl_b32 s%d, s%d, 13" % (sT0, sHL))
    a("s_add_u32 s%d, s%d, 8192" % (sT0, sT0))
    a("v_add_u32 v%d, s%d, v%d" % (t4, sT0, t4))
    for T in range(4):
        a("v_xor_b32 v%d, %d, v%d" % (t1, T, t2))
        a("v_lshl_add_u32 v%d, v%d, 6, v%d" % (vWR + T, t1, t4))
        for k in (1, 2):
            a("v_add_u32 v%d, %d, v%d" % (vWR + 4 * k + T, 2 * k * K1_BUF, vWR + T))
    for i in range(64):
        a("v_mov_b32 v%d, 0" % (vACC + i))

    def reads(stage, c, st):
        buf = stage % K1_NB
        third, bo = buf >> 1, (buf & 1) * K1_BUF
        a("ds_read_b128 %s, v%d %s" % (vr(vB[st], 4), vXR + 2 * third + c, ds_off(bo)))
        for T in range(4):
            for p in range(2):
                a("ds_read_b64_tr_b16 %s, v%d %s" % (vr(vA[st] + 4 * T + 2 * p, 2), vWR + 4 * third + T, ds_off(bo + (16 * c + 4 * p) * 256)))

    def mfma1(st, T, w):
        if w is not None:
            a("s_waitcnt lgkmcnt(%d)" % w)
        a("v_mfma_f32_32x32x16_bf16 %s, %s, %s, %s" % (vr(vACC + 16 * T, 16), vr(vA[st] + 4 * T, 4), vr(vB[st], 4), vr(vACC + 16 * T, 16)))

    make_srd(a, 4, 24, 4 << 20)
    a("s_lshr_b32 s%d, s2, 3" % sT0)
    a("s_lshl_b32 s%d, s%d, 5" % (sT0, sT0))
    a("s_lshl_b32 s%d, s%d, 2" % (sT1, sWAVE))
    a("s_add_u32 s%d, s%d, s%d" % (sT0, sT0, sT1))
    a("s_lshl_b32 s%d, s%d, 10" % (sT1, sHG))
    a("s_add_u32 s%d, s%d, s%d" % (sT0, sT0, sT1))
    a("s_lshl_b32 s9, s%d, 10" % sT0)
    stamp(a, 1)
    log = []
    for s in range(NINIT):
        log += [("d", s)] * 3
    D = K1_NB - 1
    nxt = NINIT
    for s in range(NST):
        idx = max([i for i, t in enumerate(log) if t == ("d", s)], default=-1)
        n = len(log) - 1 - idx
        a("s_waitcnt vmcnt(%d)" % min(n, 63))
        a("s_barrier")
        if s in (0, 8):
            stamp(a, {0: 2, 8: 3}[s])
        reads(s, 0, 0)
        todo = []
        while nxt < NST and nxt <= s + D and len(todo) < 2:
            todo.append(nxt)
            nxt += 1
        ops = []
        for t in todo:
            ops += [(dma_x, (t,)), (dma_w, (t, 0)), (dma_w, (t, 1))]
            log += [("d", t)] * 3
        if s > 0:
            for T in range(4):
                mfma1(1, T, None)
                k = (len(ops) + 3 - T) // (4 - T) if T < 3 else len(ops)
                for f, args in ops[:k]:
                    f(*args)
                ops = ops[k:]
        else:
            for f, args in ops:
                f(*args)
        a("s_waitcnt lgkmcnt(6)")
        reads(s, 1, 1)
        mfma1(0, 0, 15)
        kv_load(s)
        log.append(("kv", s))
        if s == 10:
            a("s_cmp_lg_u32 s%d, 0" % sWAVE)
            a("s_cbranch_scc1 F_NON_SKIP")
            make_srd(a, 12, 28, 256)
            a("s_memrealtime s[10:11]")
            a("s_waitcnt lgkmcnt(0)")
            a("s_or_b32 s%d, s10, 1" % sNT)
            a("v_mov_b32 v%d, s%d" % (vNON, sNT))
            a("v_mov_b32 v%d, 0" % (vNON + 1))
            a("v_mov_b32 v%d, 128" % (vNON + 2))
            a("v_cmp_eq_u32 vcc, 0, v%d" % L)
            a("s_and_saveexec_b64 s[10:11], vcc")
            a("buffer_atomic_cmpswap v[%d:%d], v%d, s[12:15], 0 offen sc0 sc1" % (vNON, vNON + 1, vNON + 2))
            a("s_mov_b64 exec, s[10:11]")
            a.label("F_NON_SKIP")


        mfma1(0, 1, 13)
        if "nowopf" not in EXP and "wolate" not in EXP and s in WOPF:
            i = WOPF.index(s)
            a("buffer_load_dwordx4 %s, v%d, s[4:7], s9 offen %s" % (vr(vJ + 4 * (i & 1), 4), vVOFF, buf_off(i * 1024)))
            log.append(("wo", s))
        mfma1(0, 2, 11)
        mfma1(0, 3, 9)
        a("s_waitcnt lgkmcnt(0)")
    for T in range(4):
        mfma1(1, T, None)
    stamp(a, 4)
    a("s_barrier")
    a("s_waitcnt vmcnt(0)")
    stamp(a, 5)
    if "wolate" in EXP:
        for i in range(4):
            a("buffer_load_dwordx4 %s, v%d, s[4:7], s9 offen %s" % (vr(vJ + 4 * (i & 1), 4), vVOFF, buf_off(i * 1024)))
    S_WO = 44
    make_srd(a, S_WO, 24, 4 << 20)
    u0, u1, u2, u3, u4 = vT + 5, vT + 6, vT + 7, vT + 8, vT + 9
    a("v_lshrrev_b32 v%d, 4, v%d" % (u0, L))
    a("v_and_b32 v%d, 15, v%d" % (u1, L))
    a("v_lshlrev_b32 v%d, 2, v%d" % (u2, u0))
    a("v_xor_b32 v%d, v%d, v%d" % (u1, u1, u2))
    a("v_lshlrev_b32 v%d, 8, v%d" % (u0, u0))
    a("v_lshl_add_u32 v%d, v%d, 4, v%d" % (u0, u1, u0))
    a("s_lshl_b32 s%d, s%d, 13" % (sT0, sWAVE))
    a("v_add_u32 v%d, s%d, v%d" % (u0, sT0, u0))
    a("v_lshrrev_b32 v%d, 4, v%d" % (u3, L))
    a("v_and_b32 v%d, 15, v%d" % (u4, L))
    a("v_xor_b32 v%d, v%d, v%d" % (u4, u4, u3))
    a("v_lshlrev_b32 v%d, 8, v%d" % (u3, u3))
    a("v_lshl_add_u32 v%d, v%d, 4, v%d" % (u3, u4, u3))
    a("v_add_u32 v%d, s%d, v%d" % (u3, sT0, u3))
    a("v_add_u32 v%d, 0x10000, v%d" % (u3, u3))
    for j in range(8):
        a("v_xor_b32 v%d, %d, v%d" % (u4, 64 * (j & 3), u3))
        a("ds_write_b128 v%d, %s %s" % (u4, vr(vKR + 4 * j, 4), ds_off(1024 * j)))
    for j in range(8):
        a("ds_write_b128 v%d, %s %s" % (u0, vr(vVR + 4 * j, 4), ds_off(1024 * j)))
    a("v_and_b32 v%d, 31, v%d" % (u1, L))
    a("v_lshrrev_b32 v%d, 5, v%d" % (u2, L))
    a("v_and_b32 v%d, 15, v%d" % (u4, u1))
    a("v_xor_b32 v%d, v%d, v%d" % (u4, u4, u2))
    a("v_lshlrev_b32 v%d, 8, v%d" % (u1, u1))
    a("v_lshl_add_u32 v%d, v%d, 4, v%d" % (u1, u4, u1))
    a("v_add_u32 v%d, s%d, v%d" % (u1, sT0, u1))
    a("v_add_u32 v%d, 0x10000, v%d" % (u1, u1))
    a("s_waitcnt lgkmcnt(7)")
    for jj in range(8):
        a("v_xor_b32 v%d, %d, v%d" % (u4, 32 * jj, u1))
        a("ds_read_b128 %s, v%d" % (vr(vKR + 4 * jj, 4), u4))
    a("v_lshl_add_u32 v%d, v%d, 2, v%d" % (t4, t0, t2))
    a("v_lshl_add_u32 v%d, v%d, 8, v%d" % (t4, t4, t3))
    a("v_add_u32 v%d, s%d, v%d" % (t4, sT0, t4))
    for T in range(4):
        a("v_xor_b32 v%d, %d, v%d" % (t1, T, t2))
        a("v_lshl_add_u32 v%d, v%d, 6, v%d" % (vWR + T, t1, t4))
    vQ = 128
    for i in range(32):
        a("v_cvt_pk_bf16_f32 v%d, v%d, v%d" % (vQ + i, vACC + 2 * i, vACC + 2 * i + 1))
    vS = 0
    for j in range(8):
        a("s_waitcnt lgkmcnt(%d)" % (7 - j))
        a("v_mfma_f32_32x32x16_bf16 %s, %s, %s, %s" % (vr(vS, 16), vr(vKR + 4 * j, 4), vr(vQ + 4 * j, 4), "0" if j == 0 else vr(vS, 16)))
    vVF = 32
    for T in range(4):
        for c2 in range(2):
            for p in range(2):
                a("ds_read_b64_tr_b16 %s, v%d %s" % (vr(vVF + 8 * T + 4 * c2 + 2 * p, 2), vWR + T, ds_off((16 * c2 + 8 * p) * 256)))
    vP = 16
    vE = 96
    for i in range(8):
        a("v_cvt_pk_bf16_f32 v%d, v%d, v%d" % (vP + i, vS + 2 * i, vS + 2 * i + 1))
    for i in range(8):
        a("v_lshlrev_b32 v%d, 16, v%d" % (vE + 2 * i, vP + i))
        a("v_and_b32 v%d, 0xffff0000, v%d" % (vE + 2 * i + 1, vP + i))
    for i in range(16):
        a("v_mul_f32 v%d, s%d, v%d" % (vE + i, sSCALE, vE + i))
    for i in range(8):
        a("v_cvt_pk_bf16_f32 v%d, v%d, v%d" % (vP + i, vE + 2 * i, vE + 2 * i + 1))
    for i in range(8):
        a("v_lshlrev_b32 v%d, 16, v%d" % (vE + 2 * i, vP + i))
        a("v_and_b32 v%d, 0xffff0000, v%d" % (vE + 2 * i + 1, vP + i))
    m0_, m1_ = t0, t1
    a("v_max3_f32 v%d, v%d, v%d, v%d" % (m0_, vE, vE + 1, vE + 2))
    for i in range(3, 15, 2):
        a("v_max3_f32 v%d, v%d, v%d, v%d" % (m0_, m0_, vE + i, vE + i + 1))
    a("v_max_f32 v%d, v%d, v%d" % (m0_, m0_, vE + 15))
    a("v_mov_b32 v%d, v%d" % (m1_, m0_))
    a("s_nop 1")
    a("v_permlane32_swap_b32 v%d, v%d" % (m0_, m1_))
    a("s_nop 1")
    a("v_max_f32 v%d, v%d, v%d" % (m0_, m0_, m1_))
    a("v_mul_f32 v%d, s%d, v%d" % (m0_, sLOG2E, m0_))
    for i in range(16):
        a("v_fma_f32 v%d, v%d, s%d, -v%d" % (vE + i, vE + i, sLOG2E, m0_))
    for i in range(16):
        a("v_exp_f32 v%d, v%d" % (vE + i, vE + i))
    a("s_nop 0")
    s0_, s1_ = t2, t3
    a("v_add_f32 v%d, v%d, v%d" % (s0_, vE, vE + 1))
    a("v_add_f32 v%d, v%d, v%d" % (s1_, vE + 2, vE + 3))
    for i in range(4, 16, 2):
        a("v_add_f32 v%d, v%d, v%d" % (s0_, s0_, vE + i))
        a("v_add_f32 v%d, v%d, v%d" % (s1_, s1_, vE + i + 1))
    a("v_add_f32 v%d, v%d, v%d" % (s0_, s0_, s1_))
    a("v_mov_b32 v%d, v%d" % (s1_, s0_))
    a("s_nop 1")
    a("v_permlane32_swap_b32 v%d, v%d" % (s0_, s1_))
    a("s_nop 1")
    a("v_add_f32 v%d, v%d, v%d" % (s0_, s0_, s1_))
    a("v_rcp_f32 v%d, v%d" % (s0_, s0_))
    a("s_nop 0")
    for i in range(16):
        a("v_mul_f32 v%d, v%d, v%d" % (vE + i, vE + i, s0_))
    for i in range(8):
        a("v_cvt_pk_bf16_f32 v%d, v%d, v%d" % (vP + i, vE + 2 * i, vE + 2 * i + 1))
    vO = 64
    a("s_waitcnt lgkmcnt(0)")
    a("s_nop 1")
    for T in range(4):
        for c2 in range(2):
            a("v_mfma_f32_32x32x16_bf16 %s, %s, %s, %s" % (vr(vO + 16 * T, 16), vr(vVF + 8 * T + 4 * c2, 4), vr(vP + 4 * c2, 4), "0" if c2 == 0 else vr(vO + 16 * T, 16)))
    a("v_lshrrev_b32 v%d, 4, v%d" % (t0, L))
    a("v_and_b32 v%d, 15, v%d" % (t1, L))
    a("v_lshlrev_b32 v%d, 13, v%d" % (t0, t0))
    a("v_lshl_add_u32 v%d, v%d, 4, v%d" % (t0, t1, t0))
    a("s_lshl_b32 s%d, s%d, 18" % (sOB, sB))
    a("s_lshl_b32 s%d, s%d, 8" % (sT0, sH))
    a("s_add_u32 s%d, s%d, s%d" % (sOB, sOB, sT0))
    a("s_nop 7")
    a("s_nop 3")
    vOP = 128
    for T in range(4):
        for jj in range(2):
            for i in range(4):
                a("v_cvt_pk_bf16_f32 v%d, v%d, v%d" % (vOP + 8 * T + 4 * jj + i, vO + 16 * T + 8 * jj + 2 * i, vO + 16 * T + 8 * jj + 2 * i + 1))
            a("v_xor_b32 v%d, %d, v%d" % (u4, 32 * (2 * T + jj), u1))
            a("ds_write_b128 v%d, %s" % (u4, vr(vOP + 8 * T + 4 * jj, 4)))
    a("s_waitcnt lgkmcnt(0)")
    for j in range(8):
        a("v_xor_b32 v%d, %d, v%d" % (u4, 64 * (j & 3), u3))
        a("ds_read_b128 %s, v%d %s" % (vr(vO + 4 * j, 4), u4, ds_off(1024 * j)))
    for j in range(8):
        a("s_add_u32 s%d, s%d, %d" % (sT0, sOB, j * 32768))
        a("s_waitcnt lgkmcnt(%d)" % (7 - j))
        a("buffer_store_dwordx4 %s, v%d, %s, s%d offen" % (vr(vO + 4 * j, 4), t0, sr(S_O, 4), sT0))
    stamp(a, 6)
    a("s_waitcnt vmcnt(0)")
    a("s_barrier")
    stamp(a, 7)

    S_A, S_B, S_P = S_O, S_WO, 52
    sG, sWM, sWN = 61, 62, 65
    sM0A, sM0B = 74, 75
    sAS, sBS = 76, 77
    sABASE, sBBASE = 78, 79
    sPB, sROT = 66, 64
    wA = [64, 72]
    wB = [80, 88]
    wAR = 96
    wBR = 108
    wAOFF = 114
    wBOFF = 116
    a("s_lshl_b32 s%d, s%d, 23" % (sT0, sBLK))
    a("s_add_u32 s%d, s%d, 0x%x" % (sT0, sT0, P_WS_OFF))
    a("s_add_u32 s36, s30, s%d" % sT0)
    a("s_addc_u32 s37, s31, 0")
    make_srd(a, S_P, 36, 8 << 20)
    a("s_lshr_b32 s%d, s%d, 2" % (sG, sWAVE))
    a("s_bfe_u32 s%d, s%d, 0x10001" % (sWM, sWAVE))
    a("s_and_b32 s%d, s%d, 1" % (sWN, sWAVE))
    a("s_lshl_b32 s%d, s%d, 2" % (sROT, sHP))
    a("s_lshl_b32 s%d, s%d, 11" % (sABASE, sHG))
    a("s_lshl_b32 s%d, s%d, 20" % (sBBASE, sHG))
    a("v_lshrrev_b32 v%d, 3, v%d" % (t0, L))
    a("v_and_b32 v%d, 7, v%d" % (t1, L))
    a("v_lshrrev_b32 v%d, 1, v%d" % (t2, t0))
    a("s_lshl_b32 s%d, s%d, 7" % (sT0, sBG))
    a("s_lshl_b32 s%d, s%d, 4" % (sT1, sWAVE))
    a("s_add_u32 s%d, s%d, s%d" % (sT0, sT0, sT1))
    for i in range(2):
        a("v_add_u32 v%d, %d, v%d" % (t3, 4 * i, t2))
        a("v_xor_b32 v%d, v%d, v%d" % (t3, t3, t1))
        a("v_add_u32 v%d, s%d, v%d" % (t4, sT0, t0))
        a("v_add_u32 v%d, %d, v%d" % (t4, 8 * i, t4))
        a("v_lshlrev_b32 v%d, 13, v%d" % (t4, t4))
        a("v_lshl_add_u32 v%d, v%d, 4, v%d" % (wAOFF + i, t3, t4))
    a("v_lshrrev_b32 v%d, 4, v%d" % (t0, L))
    a("v_and_b32 v%d, 15, v%d" % (t1, L))
    a("v_lshlrev_b32 v%d, 2, v%d" % (t2, t0))
    a("v_xor_b32 v%d, v%d, v%d" % (t1, t1, t2))
    a("s_lshl_b32 s%d, s%d, 3" % (sT0, sWAVE))
    a("v_add_u32 v%d, s%d, v%d" % (t0, sT0, t0))
    a("v_lshlrev_b32 v%d, 10, v%d" % (t0, t0))
    a("v_lshl_add_u32 v%d, v%d, 4, v%d" % (t0, t1, t0))
    a("s_lshl_b32 s%d, s%d, 8" % (sT1, sHP))
    a("v_add_u32 v%d, s%d, v%d" % (wBOFF, sT1, t0))
    a("s_lshl_b32 s%d, s%d, 11" % (sM0A, sWAVE))
    a("s_add_u32 s%d, s%d, 16384" % (sM0B, sM0A))

    def dma2_setup(stage):
        a("s_add_u32 s%d, s%d, %d" % (sT3, sROT, stage))
        a("s_and_b32 s%d, s%d, 15" % (sT3, sT3))
        a("s_lshl_b32 s%d, s%d, 7" % (sAS, sT3))
        a("s_add_u32 s%d, s%d, s%d" % (sAS, sAS, sABASE))
        a("s_lshl_b32 s%d, s%d, 16" % (sT3, sT3))
        a("s_add_u32 s%d, s%d, s%d" % (sT3, sT3, sBBASE))

    def dma2_a(stage, i):
        buf = stage % K2_NB
        a("s_add_u32 m0, s%d, %d" % (sM0A, buf * K2_BUF + i * 1024))
        a("s_nop 0")
        a("buffer_load_dwordx4 v%d, %s, s%d offen lds" % (wAOFF + i, sr(S_A, 4), sAS))

    def dma2_b(stage, j):
        buf = stage % K2_NB
        a("s_add_u32 s%d, s%d, %d" % (sBS, sT3, j * 4096))
        a("s_add_u32 m0, s%d, %d" % (sM0B, buf * K2_BUF + j * 1024))
        a("s_nop 0")
        a("buffer_load_dwordx4 v%d, %s, s%d offen lds" % (wBOFF, sr(S_B, 4), sBS))

    def dma2(stage):
        dma2_setup(stage)
        dma2_a(stage, 0)
        dma2_a(stage, 1)
        dma2_b(stage, 0)
        dma2_b(stage, 1)

    D2 = K2_NB - 1
    log2 = []
    S_D = 48
    a("s_add_u32 s36, s30, 0x%x" % F_WS_OFF)
    a("s_addc_u32 s37, s31, 0")
    make_srd(a, S_D, 36, 16384)
    sG1, sCNT, sNON = 67, 69, 68
    sXCC = 12
    a("s_cmp_lg_u32 s%d, 0" % sWAVE)
    a("s_cbranch_scc1 F_S1_SKIP")
    a("v_readfirstlane_b32 s%d, v%d" % (sNON, vNON))
    a("s_and_b32 s%d, s2, 7" % sT0)
    a("s_lshl_b32 s%d, s%d, 3" % (sG1, sT0))
    a("s_add_u32 s%d, s%d, s%d" % (sG1, sG1, sBG))
    a("s_lshl_b32 s%d, s%d, 7" % (sG1, sG1))
    a("s_cmp_eq_u32 s%d, 0" % sNON)
    a("s_cselect_b32 s%d, s%d, s%d" % (sNON, sNT, sNON))
    a("s_getreg_b32 s%d, hwreg(HW_REG_XCC_ID)" % sXCC)
    a("s_and_b32 s%d, s%d, 7" % (sXCC, sXCC))

    def publish(base):
        a("s_lshl_b32 s%d, s%d, 3" % (sT0, sHP))
        a("s_add_u32 s%d, s%d, s%d" % (sT0, sT0, sG1))
        a("v_mov_b32 v%d, s%d" % (t0, sT0))
        a("v_mov_b32 v%d, s%d" % (t2, sNON))
        a("v_mov_b32 v%d, s%d" % (t3, sXCC))
        a("v_cmp_eq_u32 vcc, 0, v%d" % L)
        a("s_and_saveexec_b64 s[10:11], vcc")
        a("buffer_store_dwordx2 v[%d:%d], v%d, %s, 0 offen offset:%d sc0 sc1" % (t2, t3, t0, sr(S_D, 4), base))
        a("s_mov_b64 exec, s[10:11]")

    def waitall(tag, base):
        a("v_and_b32 v%d, 3, v%d" % (t0, L))
        a("v_lshlrev_b32 v%d, 3, v%d" % (t0, t0))
        a("v_add_u32 v%d, s%d, v%d" % (t0, sG1, t0))
        a("s_mov_b32 s%d, 0" % sCNT)
        a.label("%s_POLL" % tag)
        a("buffer_load_dwordx2 v[%d:%d], v%d, %s, 0 offen offset:%d sc0 sc1" % (t2, t3, t0, sr(S_D, 4), base))
        a("s_waitcnt vmcnt(0)")
        a("v_cmp_ne_u32 vcc, s%d, v%d" % (sNON, t2))
        a("s_nop 3")
        a("s_cmp_eq_u64 vcc, 0")
        a("s_cbranch_scc1 %s_OK" % tag)
        a("s_sleep 2")
        a("s_add_u32 s%d, s%d, 1" % (sCNT, sCNT))
        a("s_cmp_lt_u32 s%d, %d" % (sCNT, SPIN_MAX))
        a("s_cbranch_scc1 %s_POLL" % tag)
        a.label("%s_OK" % tag)

    publish(0)
    a.label("F_S1_SKIP")

    def peer_wait():
        a("s_cmp_lg_u32 s%d, 0" % sWAVE)
        a("s_cbranch_scc1 F_S1_DONE")
        waitall("F_S1A", 0)
        a("v_cmp_ne_u32 vcc, s%d, v%d" % (sXCC, t3))
        a("s_nop 3")
        if "forceslow" not in EXP:
            a("s_cmp_eq_u64 vcc, 0")
            a("s_cbranch_scc1 F_S1_DONE")
        a("buffer_wbl2 sc1")
        a("s_waitcnt vmcnt(0)")
        publish(64)
        waitall("F_S1B", 64)
        a("buffer_inv sc1")
        a("s_waitcnt vmcnt(0)")
        a.label("F_S1_DONE")

    stamp(a, 8)
    NINIT2 = 2
    for s in range(NINIT2):
        dma2(s)
        log2 += [("a", s)] * 2 + [("b", s)] * 2
    if STAMP and "p2diag" in EXP:
        stamp(a, 13)
        a("s_waitcnt vmcnt(14)")
        stamp(a, 2)
        a("s_waitcnt vmcnt(12)")
        stamp(a, 3)
    a("v_and_b32 v%d, 31, v%d" % (t0, L))
    a("v_lshrrev_b32 v%d, 5, v%d" % (t1, L))
    a("v_bfe_u32 v%d, v%d, 1, 3" % (t2, t0))
    a("s_lshl_b32 s%d, s%d, 6" % (sT0, sWM))
    a("v_add_u32 v%d, s%d, v%d" % (t3, sT0, t0))
    a("v_lshlrev_b32 v%d, 7, v%d" % (t3, t3))
    a("s_lshl_b32 s%d, s%d, 2" % (sT1, sG))
    for cc in range(2):
        a("v_add_u32 v%d, s%d, v%d" % (t4, sT1, t1))
        a("v_add_u32 v%d, %d, v%d" % (t4, 2 * cc, t4))
        a("v_xor_b32 v%d, v%d, v%d" % (t4, t4, t2))
        a("v_lshl_add_u32 v%d, v%d, 4, v%d" % (wAR + 2 * cc, t4, t3))
        a("v_add_u32 v%d, 4096, v%d" % (wAR + 2 * cc + 1, wAR + 2 * cc))
    a("v_lshrrev_b32 v%d, 4, v%d" % (t0, L))
    a("v_and_b32 v%d, 1, v%d" % (t1, t0))
    a("v_lshrrev_b32 v%d, 1, v%d" % (t0, t0))
    a("v_bfe_u32 v%d, v%d, 2, 2" % (t2, L))
    a("v_and_b32 v%d, 1, v%d" % (t3, L))
    a("v_bfe_u32 v%d, v%d, 1, 1" % (t4, L))
    a("v_lshl_add_u32 v%d, v%d, 1, v%d" % (t3, t3, t4))
    a("v_lshlrev_b32 v%d, 3, v%d" % (t3, t3))
    a("v_lshl_add_u32 v%d, v%d, 5, v%d" % (t3, t1, t3))
    a("v_lshl_add_u32 v%d, v%d, 3, v%d" % (t4, t0, t2))
    a("s_lshl_b32 s%d, s%d, 5" % (sT0, sG))
    a("v_add_u32 v%d, s%d, v%d" % (t4, sT0, t4))
    a("v_lshl_add_u32 v%d, v%d, 8, v%d" % (t4, t4, t3))
    a("v_add_u32 v%d, 16384, v%d" % (t4, t4))
    a("s_lshl_b32 s%d, s%d, 1" % (sT1, sWN))
    for nt in range(2):
        a("s_add_u32 s%d, s%d, %d" % (sT2, sT1, nt))
        a("v_xor_b32 v%d, s%d, v%d" % (t1, sT2, t2))
        a("v_lshl_add_u32 v%d, v%d, 6, v%d" % (wBR + nt, t1, t4))
    for k in (1, 2):
        for i in range(4):
            a("v_add_u32 v%d, 0x%x, v%d" % (wAR + 4 * k + i, k * 65536, wAR + i))
        for i in range(2):
            a("v_add_u32 v%d, 0x%x, v%d" % (wBR + 2 * k + i, k * 65536, wBR + i))
    for i in range(64):
        a("v_mov_b32 v%d, 0" % (vACC + i))

    def reads2(stage, cc, st):
        buf = stage % K2_NB
        k, bo = buf >> 1, (buf & 1) * K2_BUF
        for mt in range(2):
            a("ds_read_b128 %s, v%d %s" % (vr(wA[st] + 4 * mt, 4), wAR + 4 * k + 2 * cc + mt, ds_off(bo)))
        for nt in range(2):
            for p in range(2):
                a("ds_read_b64_tr_b16 %s, v%d %s" % (vr(wB[st] + 4 * nt + 2 * p, 2), wBR + 2 * k + nt, ds_off(bo + (16 * cc + 4 * p) * 256)))

    def mf(st, mt, nt, w):
        if w is not None:
            a("s_waitcnt lgkmcnt(%d)" % w)
        acc = vACC + 32 * mt + 16 * nt
        a("v_mfma_f32_32x32x16_bf16 %s, %s, %s, %s" % (vr(acc, 16), vr(wB[st] + 4 * nt, 4), vr(wA[st] + 4 * mt, 4), vr(acc, 16)))

    WAITS = int(os.environ.get("WAITS", "2"))
    nx2 = NINIT2
    for s in range(NST):
        if s == WAITS:
            peer_wait()
        idx = max(i for i, t in enumerate(log2) if t in (("a", s), ("b", s)))
        a("s_waitcnt vmcnt(%d)" % (len(log2) - 1 - idx))
        a("s_barrier")
        if s == 0:
            stamp(a, 9)
        reads2(s, 0, 0)
        todo = []
        while (s >= WAITS or nx2 < 4) and nx2 < NST and nx2 <= s + D2 and len(todo) < 2:
            todo.append(nx2)
            nx2 += 1
        ops = []
        for t in todo:
            ops += [[(dma2_setup, (t,)), (dma2_a, (t, 0))], [(dma2_a, (t, 1))], [(dma2_b, (t, 0))], [(dma2_b, (t, 1))]]
            log2 += [("a", t)] * 2 + [("b", t)] * 2
        order = ((0, 0), (1, 0), (0, 1), (1, 1))
        for q in range(4):
            if s > 0:
                mf(1, order[q][0], order[q][1], None)
            k = (len(ops) + 3 - q) // (4 - q) if q < 3 else len(ops)
            for grp in ops[:k]:
                for fn, args in grp:
                    fn(*args)
            ops = ops[k:]
        reads2(s, 1, 1)
        mf(0, 0, 0, 8)
        mf(0, 1, 0, None)
        mf(0, 0, 1, 6)
        mf(0, 1, 1, None)
        a("s_waitcnt lgkmcnt(0)")
    for mt, nt in ((0, 0), (1, 0), (0, 1), (1, 1)):
        mf(1, mt, nt, None)
    stamp(a, 10)
    a("s_barrier")
    RS = 528
    GS = 128 * RS
    a("v_and_b32 v%d, 31, v%d" % (t0, L))
    a("v_lshrrev_b32 v%d, 5, v%d" % (t1, L))
    a("s_lshl_b32 s%d, s%d, 6" % (sT0, sWM))
    a("v_add_u32 v%d, s%d, v%d" % (t0, sT0, t0))
    a("s_movk_i32 s%d, %d" % (sT1, RS))
    a("v_mul_lo_u32 v%d, v%d, s%d" % (t0, t0, sT1))
    a("v_lshl_add_u32 v%d, v%d, 5, v%d" % (t0, t1, t0))
    a("s_mul_i32 s%d, s%d, %d" % (sT0, sG, GS))
    a("s_lshl_b32 s%d, s%d, 8" % (sT1, sWN))
    a("s_add_u32 s%d, s%d, s%d" % (sT0, sT0, sT1))
    a("v_add_u32 v%d, s%d, v%d" % (t0, sT0, t0))
    a("s_nop 3")
    for mt in range(2):
        for nt in range(2):
            for jj in range(2):
                for qq in range(2):
                    a("ds_write_b128 v%d, %s %s" % (t0, vr(vACC + 32 * mt + 16 * nt + 8 * jj + 4 * qq, 4), ds_off(mt * 32 * RS + (nt * 32 + 16 * jj + 4 * qq) * 4)))
        a("s_waitcnt lgkmcnt(4)")
    a("s_waitcnt lgkmcnt(0)")
    a("s_barrier")
    a("v_lshrrev_b32 v%d, 5, v%d" % (t1, L))
    a("v_and_b32 v%d, 31, v%d" % (t2, L))
    a("s_lshl_b32 s%d, s%d, 4" % (sT0, sWAVE))
    a("v_add_u32 v%d, s%d, v%d" % (t3, sT0, t1))
    a("s_movk_i32 s%d, %d" % (sT1, RS))
    a("v_mul_lo_u32 v%d, v%d, s%d" % (t3, t3, sT1))
    a("v_lshl_add_u32 v%d, v%d, 4, v%d" % (t3, t2, t3))
    a("v_add_u32 v%d, 0x%x, v%d" % (t4, GS, t3))

    def rd(i):
        a("ds_read_b128 %s, v%d %s" % (vr(vACC + 4 * i, 4), t3, ds_off(2 * RS * i)))
        a("ds_read_b128 %s, v%d %s" % (vr(vACC + 32 + 4 * i, 4), t4, ds_off(2 * RS * i)))
    a("v_lshlrev_b32 v%d, 11, v%d" % (t1, t1))
    a("v_lshl_add_u32 v%d, v%d, 4, v%d" % (t1, t2, t1))
    a("s_lshl_b32 s%d, s%d, 7" % (sPB, sBG))
    a("s_lshl_b32 s%d, s%d, 11" % (sPB, sPB))
    a("s_lshl_b32 s%d, s%d, 9" % (sT1, sHP))
    a("s_add_u32 s%d, s%d, s%d" % (sPB, sPB, sT1))
    a("s_lshr_b32 s%d, s%d, 1" % (sT1, sWAVE))
    a("s_cmp_eq_u32 s%d, s%d" % (sT1, sHG))
    a("s_cbranch_scc1 F_P_SKIP")
    for i in range(6):
        rd(i)
    a("s_lshl_b32 s%d, s%d, 11" % (sT0, sT0))
    a("s_add_u32 s%d, s%d, s%d" % (sT0, sT0, sPB))
    a("s_lshl_b32 s%d, s%d, 21" % (sT1, sHG))
    a("s_add_u32 s%d, s%d, s%d" % (sT0, sT0, sT1))
    for i in range(8):
        a("s_waitcnt lgkmcnt(%d)" % (10 if i < 2 else 2 * (7 - i)))
        if i < 2:
            rd(6 + i)
        for q in range(4):
            a("v_add_f32 v%d, v%d, v%d" % (vACC + 4 * i + q, vACC + 4 * i + q, vACC + 32 + 4 * i + q))
        a("s_add_u32 s%d, s%d, %d" % (sT1, sT0, i * 4096))
        a("buffer_store_dwordx4 %s, v%d, %s, s%d offen sc1" % (vr(vACC + 4 * i, 4), t1, sr(S_P, 4), sT1))
    a.label("F_P_SKIP")
    stamp(a, 11)
    a("s_waitcnt vmcnt(0)")
    a("s_barrier")
    stamp(a, 12)
    a("s_cmp_lg_u32 s%d, 0" % sWAVE)
    a("s_cbranch_scc1 F_S2_DONE")
    a("s_lshl_b32 s%d, s%d, 5" % (sG1, sBLK))
    a("s_lshl_b32 s%d, s%d, 2" % (sT0, sBG))
    a("s_add_u32 s%d, s%d, s%d" % (sG1, sG1, sT0))
    a("s_add_u32 s%d, s%d, s%d" % (sG1, sG1, sHP))
    a("s_add_u32 s%d, s%d, 64" % (sG1, sG1))
    a("s_lshl_b32 s%d, s%d, 7" % (sG1, sG1))
    a("s_lshl_b32 s%d, s%d, 3" % (sT0, sHG))
    a("s_add_u32 s%d, s%d, s%d" % (sT0, sT0, sG1))
    a("v_mov_b32 v%d, s%d" % (t0, sT0))
    a("v_mov_b32 v%d, s%d" % (t2, sNON))
    a("v_mov_b32 v%d, s%d" % (t3, sXCC))
    a("v_cmp_eq_u32 vcc, 0, v%d" % L)
    a("s_and_saveexec_b64 s[10:11], vcc")
    a("buffer_store_dwordx2 v[%d:%d], v%d, %s, 0 offen sc0 sc1" % (t2, t3, t0, sr(S_D, 4)))
    a("s_mov_b64 exec, s[10:11]")
    waitall("F_S2A", 0)
    a.label("F_S2_DONE")
    a("s_barrier")
    stamp(a, 13)
    S_OUT = 40
    make_srd(a, S_OUT, 26, 2 << 20)
    a("s_lshl_b32 s%d, s%d, 5" % (sT0, sHG))
    a("s_lshl_b32 s%d, s%d, 2" % (sT1, sWAVE))
    a("s_add_u32 s%d, s%d, s%d" % (sT0, sT0, sT1))
    a("v_lshrrev_b32 v%d, 5, v%d" % (t2, L))
    a("v_and_b32 v%d, 31, v%d" % (t3, L))
    a("v_add_u32 v%d, s%d, v%d" % (t4, sT0, t2))
    a("s_movk_i32 s%d, %d" % (sT1, RS))
    a("v_mul_lo_u32 v%d, v%d, s%d" % (t4, t4, sT1))
    a("v_lshl_add_u32 v%d, v%d, 4, v%d" % (t4, t3, t4))
    a("v_add_u32 v%d, 0x%x, v%d" % (t0, GS, t4))
    a("s_lshl_b32 s%d, s%d, 11" % (sT1, sT0))
    a("s_add_u32 s%d, s%d, s%d" % (sT1, sT1, sPB))
    for d in range(1, 4):
        a("s_add_u32 s%d, s%d, %d" % (sT2, sHG, d))
        a("s_and_b32 s%d, s%d, 3" % (sT2, sT2))
        a("s_lshl_b32 s%d, s%d, 21" % (sT2, sT2))
        a("s_add_u32 s%d, s%d, s%d" % (sT2, sT2, sT1))
        a("s_add_u32 s%d, s%d, 4096" % (sT3, sT2))
        a("buffer_load_dwordx4 %s, v%d, %s, s%d offen sc1" % (vr(16 + 8 * (d - 1), 4), t1, sr(S_P, 4), sT2))
        a("buffer_load_dwordx4 %s, v%d, %s, s%d offen sc1" % (vr(16 + 8 * (d - 1) + 4, 4), t1, sr(S_P, 4), sT3))
    for i in range(2):
        a("ds_read_b128 %s, v%d %s" % (vr(4 * i, 4), t4, ds_off(2 * RS * i)))
        a("ds_read_b128 %s, v%d %s" % (vr(8 + 4 * i, 4), t0, ds_off(2 * RS * i)))
    a("v_lshlrev_b32 v%d, 11, v%d" % (t2, t2))
    a("v_lshl_add_u32 v%d, v%d, 3, v%d" % (t2, t3, t2))
    a("s_lshl_b32 s%d, s%d, 7" % (sT1, sBG))
    a("s_add_u32 s%d, s%d, s%d" % (sT1, sT1, sT0))
    a("s_lshl_b32 s%d, s%d, 11" % (sT1, sT1))
    a("s_lshl_b32 s%d, s%d, 10" % (sT2, sBLK))
    a("s_add_u32 s%d, s%d, s%d" % (sT1, sT1, sT2))
    a("s_lshl_b32 s%d, s%d, 8" % (sT2, sHP))
    a("s_add_u32 s%d, s%d, s%d" % (sT1, sT1, sT2))
    a("s_add_u32 s%d, s%d, 4096" % (sT2, sT1))
    a("s_waitcnt lgkmcnt(0)")
    for q in range(8):
        a("v_add_f32 v%d, v%d, v%d" % (q, q, 8 + q))
    a("s_waitcnt vmcnt(0)")
    for q in range(8):
        a("v_add_f32 v%d, v%d, v%d" % (16 + q, 16 + q, 24 + q))
        a("v_add_f32 v%d, v%d, v%d" % (q, q, 32 + q))
    for q in range(8):
        a("v_add_f32 v%d, v%d, v%d" % (q, q, 16 + q))
    for q in range(4):
        a("v_cvt_pk_bf16_f32 v%d, v%d, v%d" % (40 + q, 2 * q, 2 * q + 1))
    a("buffer_store_dwordx2 v[40:41], v%d, %s, s%d offen" % (t2, sr(S_OUT, 4), sT1))
    a("buffer_store_dwordx2 v[42:43], v%d, %s, s%d offen" % (t2, sr(S_OUT, 4), sT2))
    if STAMP:
        a("s_waitcnt vmcnt(0)")
        stamp(a, 2)
        a("s_memrealtime s[98:99]")
        a("s_waitcnt lgkmcnt(0)")
        a("s_mov_b32 s97, s98")
        stamp_dump(a, 0, 40, vTID)
    if "diag" in EXP:
        a("s_waitcnt vmcnt(0)")
        a("s_memrealtime s[98:99]")
        a("s_waitcnt lgkmcnt(0)")
        a("s_add_u32 s36, s30, 0x%x" % (60 << 20))
        a("s_addc_u32 s37, s31, 0")
        make_srd(a, 40, 36, 65536)
        a("s_lshl_b32 s3, s2, 3")
        a("v_mov_b32 v0, s3")
        a("v_mov_b32 v2, s96")
        a("v_mov_b32 v3, s98")
        a("s_cmp_lg_u32 s%d, 0" % sWAVE)
        a("s_cbranch_scc1 F_DONE")
        a("buffer_store_dwordx2 v[2:3], v0, s[40:43], 0 offen")
    if "diag2" in EXP:
        a("s_waitcnt vmcnt(0)")
        rt(a, 6)
        a("s_cmp_lg_u32 s%d, 0" % sWAVE)
        a("s_cbranch_scc1 F_DONE")
        a("s_cmp_lg_u32 s2, 0")
        a("s_cbranch_scc1 F_DONE")
        make_srd(a, 40, 28, 256)
        a("v_mov_b32 v0, 32")
        for i in range(7):
            a("v_mov_b32 v%d, s%d" % (2 + i, 88 + i))
        a("v_cmp_eq_u32 vcc, 0, v%d" % L)
        a("s_and_saveexec_b64 s[10:11], vcc")
        a("buffer_store_dwordx4 v[2:5], v0, s[40:43], 0 offen")
        a("buffer_store_dwordx4 v[6:9], v0, s[40:43], 0 offen offset:16")
    a.label("F_DONE")
    a("s_endpgm")
    return kernel_desc(name, NV, 100)


def gen_k3(a):
    name = "k3_kernel"
    kernel_begin(a, name)
    a("s_cmp_ge_u32 s2, %d" % (0 if "k3empty" in EXP else 256))
    a("s_cbranch_scc1 K3_DONE")
    if "diag" in EXP:
        a("s_memrealtime s[36:37]")
    a("s_load_dwordx2 s[4:5], s[0:1], 80")
    a("s_load_dwordx2 s[6:7], s[0:1], 96")
    a("s_lshl_b32 s3, s2, 8")
    a("v_add_u32 v1, s3, v0")
    a("s_waitcnt lgkmcnt(0)")
    a("s_add_u32 s6, s6, 0x%x" % P_WS_OFF)
    a("s_addc_u32 s7, s7, 0")
    make_srd(a, 8, 6, 16 << 20)
    make_srd(a, 12, 4, 2 << 20)
    a("v_lshlrev_b32 v2, 4, v1")
    for i in range(4):
        blk = i >> 1
        for ks in range(4):
            a("s_mov_b32 s%d, 0x%x" % (16 + 4 * i + ks, blk * (8 << 20) + ks * (2 << 20) + (i & 1) * (1 << 20)))
    for i in range(4):
        for ks in range(4):
            a("buffer_load_dwordx4 %s, v2, s[8:11], s%d offen" % (vr(8 + 16 * i + 4 * ks, 4), 16 + 4 * i + ks))
    a("v_lshrrev_b32 v3, 7, v1")
    a("v_lshlrev_b32 v3, 11, v3")
    a("v_and_b32 v4, 127, v1")
    a("v_lshl_add_u32 v3, v4, 3, v3")
    for i in range(4):
        a("s_waitcnt vmcnt(%d)" % (12 - 4 * i))
        b = 8 + 16 * i
        for q in range(4):
            a("v_add_f32 v%d, v%d, v%d" % (b + q, b + q, b + 4 + q))
            a("v_add_f32 v%d, v%d, v%d" % (b + 8 + q, b + 8 + q, b + 12 + q))
        for q in range(4):
            a("v_add_f32 v%d, v%d, v%d" % (b + q, b + q, b + 8 + q))
        a("v_cvt_pk_bf16_f32 v%d, v%d, v%d" % (b, b, b + 1))
        a("v_cvt_pk_bf16_f32 v%d, v%d, v%d" % (b + 1, b + 2, b + 3))
        a("s_mov_b32 s16, 0x%x" % ((i >> 1) * 1024 + (i & 1) * 512 * 2048))
        a("buffer_store_dwordx2 %s, v3, s[12:15], s16 offen" % vr(b, 2))
    if "diag" in EXP:
        a("s_cmp_lg_u32 s2, 0")
        a("s_cbranch_scc1 K3_DONE")
        a("s_waitcnt vmcnt(0)")
        a("s_memrealtime s[38:39]")
        a("s_load_dwordx2 s[4:5], s[0:1], 88")
        a("s_load_dwordx2 s[6:7], s[0:1], 96")
        a("s_waitcnt lgkmcnt(0)")
        a("s_add_u32 s6, s6, 0x%x" % (60 << 20))
        a("s_addc_u32 s7, s7, 0")
        make_srd(a, 8, 6, 65536)
        make_srd(a, 12, 4, 256)
        a("v_lshlrev_b32 v1, 3, v0")
        a("buffer_load_dwordx2 v[4:5], v1, s[8:11], 0 offen")
        a("s_waitcnt vmcnt(0)")
        a("v_cmp_gt_u32 vcc, 6, v0")
        a("s_and_saveexec_b64 s[20:21], vcc")
        a("buffer_store_dwordx2 v[4:5], v1, s[12:15], 0 offen")
        a("s_mov_b64 exec, s[20:21]")
        a("v_mov_b32 v6, s36")
        a("v_mov_b32 v7, s38")
        a("v_mov_b32 v1, 48")
        a("v_cmp_eq_u32 vcc, 0, v0")
        a("s_and_saveexec_b64 s[20:21], vcc")
        a("buffer_store_dwordx2 v[6:7], v1, s[12:15], 0 offen")
    a.label("K3_DONE")
    a("s_endpgm")
    return kernel_desc(name, 80, 40)


def main():
    a = Asm()
    hdr = HEADER + "; @launch grid=(256,1,1) block=(512,1,1) lds=%d\n" % F_LDS
    a.raw('.amdgcn_target "amdgcn-amd-amdhsa--gfx950"')
    a.raw(".text")
    descs = [gen_fused(a)]
    a.raw('.section .rodata,"a"')
    for d in descs:
        a.raw(".p2align 6")
        a.raw(d)
    open(OUT, "w").write(hdr + a.text())


if __name__ == "__main__":
    main()
```

```python
import sys, os
EXP = os.environ.get("EXP", "")

NAME = "concat_heads__gqa_block_cached__mha_block_cached__near_ridge"
OUT = os.environ.get("OUT", "cdna_kernels/%s.s" % NAME)

HEADER = """; Kernarg layout for this problem (104 bytes, ptrs only, base s[0:1]):
"""


class Asm:
    def __init__(self):
        self.lines = []

    def __call__(self, s):
        self.lines.append("    " + s)

    def label(self, s):
        self.lines.append(s + ":")

    def raw(self, s):
        self.lines.append(s)

    def text(self):
        return "\n".join(self.lines) + "\n"


def vr(base, n):
    return "v[%d:%d]" % (base, base + n - 1)


def sr(base, n):
    return "s[%d:%d]" % (base, base + n - 1)


def buf_off(o):
    assert 0 <= o < 4096, o
    return "offset:%d" % o


def ds_off(o):
    assert 0 <= o < 65536, o
    return "offset:%d" % o


def kernel_begin(a, name):
    a.raw(".globl %s" % name)
    a.raw(".p2align 8")
    a.raw(".type %s,@function" % name)
    a.label(name)


def kernel_desc(name, vgpr, sgpr, accum=None):
    if accum is None:
        accum = (vgpr + 3) // 4 * 4
    return """.amdhsa_kernel %s
  .amdhsa_next_free_vgpr %d
  .amdhsa_next_free_sgpr %d
  .amdhsa_accum_offset %d
  .amdhsa_group_segment_fixed_size 0
  .amdhsa_kernarg_size 104
  .amdhsa_user_sgpr_count 2
  .amdhsa_user_sgpr_kernarg_segment_ptr 1
  .amdhsa_system_sgpr_workgroup_id_x 1
.end_amdhsa_kernel
""" % (name, vgpr, sgpr, accum)


def make_srd(a, d, base_lo, size):
    a("s_mov_b32 s%d, s%d" % (d, base_lo))
    a("s_and_b32 s%d, s%d, 0xffff" % (d + 1, base_lo + 1))
    a("s_mov_b32 s%d, 0x%x" % (d + 2, size))
    a("s_mov_b32 s%d, 0x00020000" % (d + 3))


STAMP = "stamp" in EXP
KVMOD = " sc0 sc1 nt" if "kvnt" in EXP else ""
WMOD = " nt" if "wnt" in EXP else ""
DMOD = " nt" if "dnt" in EXP else ""
NSTAMP = 16


def rt(a, idx):
    if "diag2" in EXP:
        a("s_memrealtime s[98:99]")
        a("s_waitcnt lgkmcnt(0)")
        a("s_mov_b32 s%d, s98" % (88 + idx))


def stamp(a, idx):
    m = {0: 0, 2: 1, 4: 2, 7: 3, 10: 4, 13: 5}
    if "diag2" in EXP and idx in m:
        rt(a, m[idx])
    if STAMP:
        assert idx < NSTAMP
        a("s_memtime s[98:99]")
        a("s_waitcnt lgkmcnt(0)")
        a("s_mov_b32 s%d, s98" % (82 + idx))


def stamp_init(a, vtid):
    if STAMP:
        a("v_mov_b32 v%d, v0" % vtid)
        for i in range(NSTAMP):
            a("s_mov_b32 s%d, 0" % (82 + i))


def stamp_dump(a, kidx, vtmp, vtid):
    if not STAMP:
        return
    a("s_load_dwordx2 s[4:5], s[0:1], 96")
    a("s_waitcnt lgkmcnt(0)")
    a("s_add_u32 s4, s4, 0x%x" % ((64 << 20) + kidx * 262144))
    a("s_addc_u32 s5, s5, 0")
    a("s_and_b32 s5, s5, 0xffff")
    a("s_mov_b32 s6, 262144")
    a("s_mov_b32 s7, 0x00020000")
    a("s_lshl_b32 s3, s2, 10")
    a("v_lshrrev_b32 v%d, 6, v%d" % (vtmp, vtid))
    a("v_lshlrev_b32 v%d, 6, v%d" % (vtmp, vtmp))
    a("v_add_u32 v%d, s3, v%d" % (vtmp, vtmp))
    a("v_and_b32 v%d, 63, v%d" % (vtid, vtid))
    a("v_cmp_eq_u32 vcc, 0, v%d" % vtid)
    a("s_and_saveexec_b64 s[8:9], vcc")
    for i in range(NSTAMP):
        a("v_mov_b32 v%d, s%d" % (vtmp + 1, 82 + i))
        a("buffer_store_dword v%d, v%d, s[4:7], 0 offen offset:%d" % (vtmp + 1, vtmp, 4 * i))
        a("s_nop 1")
    a("s_mov_b64 exec, s[8:9]")


O_WS_OFF = 0
P_WS_OFF = 16 << 20

K1_BUF = 24576
K1_NB = 6
K2_BUF = 32768
K2_NB = 5
F_LDS = 163840
SPIN_MAX = 200000
F_WS_OFF = 48 << 20
WOPF = [5, 7, 9, 11]


def gen_fused(a):
    name = NAME + "_kernel"
    kernel_begin(a, name)
    S_X, S_W, S_K, S_V, S_O = 40, 44, 48, 52, 56
    sWAVE, sBL, sHL, sBG, sH0, sB, sH = 60, 61, 62, 63, 64, 65, 66
    sKB, sKB2, sOB = 67, 68, 69
    sT0, sT1, sT2, sT3 = 70, 71, 72, 73
    sM0X, sM0W = 74, 75
    sXS, sWS = 76, 77
    sSCALE, sLOG2E = 78, 79
    sBLK, sHG, sHP = 80, 81, 39
    vACC = 0
    vKR = 64
    vVR = 96
    vA = [128, 144]
    vB = [160, 164]
    vXR = 168
    vWR = 174
    vVOFF = 187
    vXOFF = 188
    vWOFF = 189
    vT = 190
    vLANE = 200
    vTID = 201
    vJ = 204
    NV = 216
    L = vLANE
    t0, t1, t2, t3, t4 = vT, vT + 1, vT + 2, vT + 3, vT + 4
    NST = 16

    a("s_cmp_ge_u32 s2, 256")
    a("s_cbranch_scc1 F_DONE")
    stamp_init(a, vTID)
    stamp(a, 0)
    if "diag" in EXP:
        a("s_memrealtime s[98:99]")
        a("s_waitcnt lgkmcnt(0)")
        a("s_mov_b32 s96, s98")
    if STAMP:
        a("s_memrealtime s[98:99]")
        a("s_waitcnt lgkmcnt(0)")
        a("s_mov_b32 s96, s98")
    a("s_load_dwordx16 s[16:31], s[0:1], 0")
    a("s_load_dwordx8 s[32:39], s[0:1], 64")
    a("s_load_dwordx2 s[14:15], s[0:1], 96")
    a("v_lshrrev_b32 v%d, 6, v0" % vT)
    a("v_and_b32 v%d, 63, v0" % vLANE)
    a("s_nop 0")
    a("v_readfirstlane_b32 s%d, v%d" % (sWAVE, vT))
    if "staticid" not in EXP:
        a("s_load_dwordx2 s[10:11], s[0:1], 88")
        a("s_getreg_b32 s12, hwreg(HW_REG_XCC_ID)")
        a("s_and_b32 s12, s12, 7")
        a("s_cmp_lg_u32 s%d, 0" % sWAVE)
        a("s_cbranch_scc1 F_TK_WAIT")
        a("s_waitcnt lgkmcnt(0)")
        make_srd(a, 4, 10, 256)
        a("s_lshl_b32 s13, s12, 2")
        a("v_mov_b32 v%d, s13" % (vT + 1))
        a("v_mov_b32 v%d, 1" % (vT + 2))
        a("v_mov_b32 v%d, 0" % (vT + 3))
        a("v_cmp_eq_u32 vcc, 0, v%d" % vLANE)
        a("s_and_saveexec_b64 s[8:9], vcc")
        a("buffer_atomic_add v%d, v%d, s[4:7], 0 offen sc0" % (vT + 2, vT + 1))
        a("s_waitcnt vmcnt(0)")
        a("ds_write_b32 v%d, v%d" % (vT + 3, vT + 2))
        a("s_mov_b64 exec, s[8:9]")
        a("s_waitcnt lgkmcnt(0)")
        a("s_branch F_TK_JOIN")
        a.label("F_TK_WAIT")
        if "nopf0" not in EXP:
            a("s_waitcnt lgkmcnt(0)")
            a("s_cmp_lt_u32 s12, 4")
            a("s_cselect_b32 s4, s16, s26")
            a("s_cselect_b32 s5, s17, s27")
            a("s_cselect_b32 s8, s22, s32")
            a("s_cselect_b32 s9, s23, s33")
            a("s_and_b32 s5, s5, 0xffff")
            a("s_mov_b32 s6, 0x%x" % (1 << 20))
            a("s_mov_b32 s7, 0x00020000")
            a("s_and_b32 s9, s9, 0xffff")
            a("s_mov_b32 s10, 0x%x" % (4 << 20))
            a("s_mov_b32 s11, 0x00020000")
            a("s_lshr_b32 s13, s2, 3")
            a("v_lshlrev_b32 v%d, 4, v%d" % (vT + 1, vLANE))
            a("s_lshl_b32 s%d, s13, 5" % sT0)
            a("s_lshl_b32 s%d, s%d, 2" % (sT1, sWAVE))
            a("s_add_u32 s%d, s%d, s%d" % (sT0, sT0, sT1))
            a("s_lshl_b32 s%d, s%d, 10" % (sT0, sT0))
            for i in range(4):
                a("buffer_load_dwordx4 %s, v%d, s[4:7], s%d offen %s" % (vr(vJ + 4 * (i & 1), 4), vT + 1, sT0, buf_off(i * 1024)))
            a("s_lshl_b32 s%d, s13, 4" % sT0)
            a("s_lshl_b32 s%d, s%d, 1" % (sT1, sWAVE))
            a("s_add_u32 s%d, s%d, s%d" % (sT0, sT0, sT1))
            a("s_lshl_b32 s%d, s%d, 13" % (sT0, sT0))
            a("s_and_b32 s%d, s12, 3" % sT1)
            a("s_lshl_b32 s%d, s%d, 11" % (sT1, sT1))
            a("s_add_u32 s%d, s%d, s%d" % (sT0, sT0, sT1))
            a("s_add_u32 s%d, s%d, 8192" % (sT1, sT0))
            for i in range(4):
                a("buffer_load_dwordx4 %s, v%d, s[8:11], s%d offen %s" % (vr(vJ + 4 * (i & 1), 4), vT + 1, sT0 if i < 2 else sT1, buf_off((i & 1) * 1024)))
        a.label("F_TK_JOIN")
        a("s_barrier")
        a("v_mov_b32 v%d, 0" % (vT + 3))
        a("ds_read_b32 v%d, v%d" % (vT + 2, vT + 3))
        a("s_waitcnt lgkmcnt(0)")
        a("v_readfirstlane_b32 s13, v%d" % (vT + 2))
        a("s_nop 3")
        a("s_barrier")
        a("s_cmp_ge_u32 s13, 32")
        a("s_cbranch_scc1 F_DONE")
        a("s_lshl_b32 s13, s13, 3")
        a("s_add_u32 s2, s13, s12")
    a("s_and_b32 s%d, s2, 7" % sT0)
    a("s_lshr_b32 s%d, s2, 3" % sT1)
    a("s_lshr_b32 s%d, s%d, 2" % (sBG, sT1))
    a("s_and_b32 s%d, s%d, 3" % (sT1, sT1))
    a("s_and_b32 s%d, s%d, 3" % (sHG, sT0))
    a("s_lshl_b32 s%d, s%d, 3" % (sH0, sHG))
    a("s_lshl_b32 s%d, s%d, 1" % (sT2, sT1))
    a("s_add_u32 s%d, s%d, s%d" % (sH0, sH0, sT2))
    a("s_lshr_b32 s%d, s%d, 2" % (sBLK, sT0))
    a("s_mov_b32 s13, s%d" % sT1)
    a("v_lshrrev_b32 v%d, 2, v%d" % (t0, L))
    a("v_and_b32 v%d, 3, v%d" % (t1, L))
    a("v_lshrrev_b32 v%d, 4, v%d" % (t2, L))
    a("v_xor_b32 v%d, v%d, v%d" % (t1, t1, t2))
    a("s_lshl_b32 s%d, s%d, 7" % (sT0, sBG))
    a("s_lshl_b32 s%d, s%d, 4" % (sT1, sWAVE))
    a("s_add_u32 s%d, s%d, s%d" % (sT0, sT0, sT1))
    a("v_add_u32 v%d, s%d, v%d" % (t0, sT0, t0))
    a("v_lshlrev_b32 v%d, 10, v%d" % (t0, t0))
    a("v_lshl_add_u32 v%d, v%d, 4, v%d" % (vXOFF, t1, t0))
    a("s_lshl_b32 s%d, s%d, 10" % (sM0X, sWAVE))
    a("v_lshrrev_b32 v%d, 4, v%d" % (t0, L))
    a("v_and_b32 v%d, 15, v%d" % (t1, L))
    a("v_lshlrev_b32 v%d, 2, v%d" % (t2, t0))
    a("v_xor_b32 v%d, v%d, v%d" % (t1, t1, t2))
    a("s_lshr_b32 s%d, s%d, 1" % (sT0, sWAVE))
    a("s_lshl_b32 s%d, s%d, 3" % (sT0, sT0))
    a("v_add_u32 v%d, s%d, v%d" % (t0, sT0, t0))
    a("v_lshlrev_b32 v%d, 13, v%d" % (t0, t0))
    a("v_lshl_add_u32 v%d, v%d, 4, v%d" % (t0, t1, t0))
    a("s_and_b32 s%d, s%d, 1" % (sT1, sWAVE))
    a("s_add_u32 s%d, s%d, s%d" % (sT2, sH0, sT1))
    a("s_lshl_b32 s%d, s%d, 8" % (sT2, sT2))
    a("v_add_u32 v%d, s%d, v%d" % (vWOFF, sT2, t0))
    a("s_lshl_b32 s%d, s%d, 13" % (sM0W, sT1))
    a("s_lshl_b32 s%d, s%d, 8" % (sT0, sT0))
    a("s_add_u32 s%d, s%d, s%d" % (sM0W, sM0W, sT0))
    a("s_add_u32 s%d, s%d, 8192" % (sM0W, sM0W))
    a("s_waitcnt lgkmcnt(0)")
    a("s_cmp_eq_u32 s%d, 0" % sBLK)
    for i in range(5):
        a("s_cselect_b32 s%d, s%d, s%d" % (16 + 2 * i, 16 + 2 * i, 26 + 2 * i))
        a("s_cselect_b32 s%d, s%d, s%d" % (17 + 2 * i, 17 + 2 * i, 27 + 2 * i))
    a("s_mov_b32 s26, s36")
    a("s_mov_b32 s27, s37")
    a("s_mov_b32 s28, s38")
    a("s_mov_b32 s29, s39")
    a("s_mov_b32 s30, s14")
    a("s_mov_b32 s31, s15")
    a("s_mov_b32 s%d, s13" % sHP)
    make_srd(a, S_X, 16, 1 << 20)
    make_srd(a, S_W, 22, 4 << 20)
    vNON = 212
    sNT = 8

    def dma_x(stage):
        buf = stage % K1_NB
        a("s_mov_b32 s%d, %d" % (sXS, stage * 64))
        a("s_add_u32 m0, s%d, %d" % (sM0X, buf * K1_BUF))
        a("s_nop 0")
        a("buffer_load_dwordx4 v%d, %s, s%d offen%s lds" % (vXOFF, sr(S_X, 4), sXS, DMOD))

    def dma_w(stage, j):
        buf = stage % K1_NB
        a("s_mov_b32 s%d, %d" % (sWS, stage * 262144 + j * 32768))
        a("s_add_u32 m0, s%d, %d" % (sM0W, buf * K1_BUF + j * 1024))
        a("s_nop 0")
        a("buffer_load_dwordx4 v%d, %s, s%d offen%s lds" % (vWOFF, sr(S_W, 4), sWS, DMOD))

    NINIT = 2
    for s in range(NINIT):
        dma_x(s)
        dma_w(s, 0)
        dma_w(s, 1)
    make_srd(a, S_K, 18, 8 << 20)
    make_srd(a, S_V, 20, 8 << 20)
    a("s_lshl_b32 s%d, s%d, 23" % (sT0, sBLK))
    a("s_add_u32 s36, s30, s%d" % sT0)
    a("s_addc_u32 s37, s31, 0")
    make_srd(a, S_O, 36, 8 << 20)
    a("s_lshr_b32 s%d, s%d, 1" % (sBL, sWAVE))
    a("s_and_b32 s%d, s%d, 1" % (sHL, sWAVE))
    a("s_lshl_b32 s%d, s%d, 2" % (sB, sBG))
    a("s_add_u32 s%d, s%d, s%d" % (sB, sB, sBL))
    a("s_add_u32 s%d, s%d, s%d" % (sH, sH0, sHL))
    a("s_mov_b32 s%d, 0x3db504f3" % sSCALE)
    a("s_mov_b32 s%d, 0x3fb8aa3b" % sLOG2E)
    a("v_and_b32 v%d, 31, v%d" % (t0, L))
    a("v_lshrrev_b32 v%d, 5, v%d" % (t1, L))
    a("v_lshlrev_b32 v%d, 4, v%d" % (vVOFF, L))
    a("s_lshl_b32 s%d, s%d, 5" % (sKB, sB))
    a("s_add_u32 s%d, s%d, s%d" % (sKB, sKB, sH))
    a("s_lshl_b32 s%d, s%d, 13" % (sKB, sKB))
    a("s_add_u32 s%d, s%d, 4096" % (sKB2, sKB))

    def kv_load(idx):
        if idx < 8:
            a("buffer_load_dwordx4 %s, v%d, %s, s%d offen %s" % (vr(vKR + 4 * idx, 4), vVOFF, sr(S_K, 4), sKB if idx < 4 else sKB2, buf_off(1024 * (idx & 3))) + KVMOD)
        else:
            j = idx - 8
            a("buffer_load_dwordx4 %s, v%d, %s, s%d offen %s" % (vr(vVR + 4 * j, 4), vVOFF, sr(S_V, 4), sKB if j < 4 else sKB2, buf_off(1024 * (j & 3))) + KVMOD)

    a("v_bfe_u32 v%d, v%d, 2, 2" % (t2, t0))
    a("s_lshl_b32 s%d, s%d, 5" % (sT0, sBL))
    a("v_add_u32 v%d, s%d, v%d" % (t3, sT0, t0))
    a("v_lshlrev_b32 v%d, 6, v%d" % (t3, t3))
    for c in range(2):
        a("v_add_u32 v%d, %d, v%d" % (t4, 2 * c, t1))
        a("v_xor_b32 v%d, v%d, v%d" % (t4, t4, t2))
        a("v_lshl_add_u32 v%d, v%d, 4, v%d" % (vXR + c, t4, t3))
        for k in (1, 2):
            a("v_add_u32 v%d, %d, v%d" % (vXR + 2 * k + c, 2 * k * K1_BUF, vXR + c))
    a("v_lshrrev_b32 v%d, 4, v%d" % (t0, L))
    a("v_and_b32 v%d, 1, v%d" % (t1, t0))
    a("v_lshrrev_b32 v%d, 1, v%d" % (t0, t0))
    a("v_bfe_u32 v%d, v%d, 2, 2" % (t2, L))
    a("v_and_b32 v%d, 1, v%d" % (t3, L))
    a("v_bfe_u32 v%d, v%d, 1, 1" % (t4, L))
    a("v_lshl_add_u32 v%d, v%d, 1, v%d" % (t3, t3, t4))
    a("v_lshlrev_b32 v%d, 3, v%d" % (t3, t3))
    a("v_lshl_add_u32 v%d, v%d, 5, v%d" % (t3, t1, t3))
    a("v_lshl_add_u32 v%d, v%d, 3, v%d" % (t4, t0, t2))
    a("v_lshl_add_u32 v%d, v%d, 8, v%d" % (t4, t4, t3))
    a("s_lshl_b32 s%d, s%d, 13" % (sT0, sHL))
    a("s_add_u32 s%d, s%d, 8192" % (sT0, sT0))
    a("v_add_u32 v%d, s%d, v%d" % (t4, sT0, t4))
    for T in range(4):
        a("v_xor_b32 v%d, %d, v%d" % (t1, T, t2))
        a("v_lshl_add_u32 v%d, v%d, 6, v%d" % (vWR + T, t1, t4))
        for k in (1, 2):
            a("v_add_u32 v%d, %d, v%d" % (vWR + 4 * k + T, 2 * k * K1_BUF, vWR + T))
    for i in range(64):
        a("v_mov_b32 v%d, 0" % (vACC + i))

    def reads(stage, c, st):
        buf = stage % K1_NB
        third, bo = buf >> 1, (buf & 1) * K1_BUF
        a("ds_read_b128 %s, v%d %s" % (vr(vB[st], 4), vXR + 2 * third + c, ds_off(bo)))
        for T in range(4):
            for p in range(2):
                a("ds_read_b64_tr_b16 %s, v%d %s" % (vr(vA[st] + 4 * T + 2 * p, 2), vWR + 4 * third + T, ds_off(bo + (16 * c + 4 * p) * 256)))

    def mfma1(st, T, w):
        if w is not None:
            a("s_waitcnt lgkmcnt(%d)" % w)
        a("v_mfma_f32_32x32x16_bf16 %s, %s, %s, %s" % (vr(vACC + 16 * T, 16), vr(vA[st] + 4 * T, 4), vr(vB[st], 4), vr(vACC + 16 * T, 16)))

    make_srd(a, 4, 24, 4 << 20)
    a("s_lshr_b32 s%d, s2, 3" % sT0)
    a("s_lshl_b32 s%d, s%d, 5" % (sT0, sT0))
    a("s_lshl_b32 s%d, s%d, 2" % (sT1, sWAVE))
    a("s_add_u32 s%d, s%d, s%d" % (sT0, sT0, sT1))
    a("s_lshl_b32 s%d, s%d, 10" % (sT1, sHG))
    a("s_add_u32 s%d, s%d, s%d" % (sT0, sT0, sT1))
    a("s_lshl_b32 s9, s%d, 10" % sT0)
    stamp(a, 1)
    log = []
    for s in range(NINIT):
        log += [("d", s)] * 3
    D = K1_NB - 1
    nxt = NINIT
    for s in range(NST):
        idx = max([i for i, t in enumerate(log) if t == ("d", s)], default=-1)
        n = len(log) - 1 - idx
        a("s_waitcnt vmcnt(%d)" % min(n, 63))
        a("s_barrier")
        if s in (0, 8):
            stamp(a, {0: 2, 8: 3}[s])
        reads(s, 0, 0)
        todo = []
        while nxt < NST and nxt <= s + D and len(todo) < 2:
            todo.append(nxt)
            nxt += 1
        ops = []
        for t in todo:
            ops += [(dma_x, (t,)), (dma_w, (t, 0)), (dma_w, (t, 1))]
            log += [("d", t)] * 3
        if s > 0:
            for T in range(4):
                mfma1(1, T, None)
                k = (len(ops) + 3 - T) // (4 - T) if T < 3 else len(ops)
                for f, args in ops[:k]:
                    f(*args)
                ops = ops[k:]
        else:
            for f, args in ops:
                f(*args)
        a("s_waitcnt lgkmcnt(6)")
        reads(s, 1, 1)
        mfma1(0, 0, 15)
        kv_load(s)
        log.append(("kv", s))
        if s == 10:
            a("s_cmp_lg_u32 s%d, 0" % sWAVE)
            a("s_cbranch_scc1 F_NON_SKIP")
            make_srd(a, 12, 28, 256)
            a("s_memrealtime s[10:11]")
            a("s_waitcnt lgkmcnt(0)")
            a("s_or_b32 s%d, s10, 1" % sNT)
            a("v_mov_b32 v%d, s%d" % (vNON, sNT))
            a("v_mov_b32 v%d, 0" % (vNON + 1))
            a("v_mov_b32 v%d, 128" % (vNON + 2))
            a("v_cmp_eq_u32 vcc, 0, v%d" % L)
            a("s_and_saveexec_b64 s[10:11], vcc")
            a("buffer_atomic_cmpswap v[%d:%d], v%d, s[12:15], 0 offen sc0 sc1" % (vNON, vNON + 1, vNON + 2))
            a("s_mov_b64 exec, s[10:11]")
            a.label("F_NON_SKIP")


        mfma1(0, 1, 13)
        if "nowopf" not in EXP and "wolate" not in EXP and s in WOPF:
            i = WOPF.index(s)
            a("buffer_load_dwordx4 %s, v%d, s[4:7], s9 offen %s" % (vr(vJ + 4 * (i & 1), 4), vVOFF, buf_off(i * 1024)))
            log.append(("wo", s))
        mfma1(0, 2, 11)
        mfma1(0, 3, 9)
        a("s_waitcnt lgkmcnt(0)")
    for T in range(4):
        mfma1(1, T, None)
    stamp(a, 4)
    a("s_barrier")
    a("s_waitcnt vmcnt(0)")
    stamp(a, 5)
    if "wolate" in EXP:
        for i in range(4):
            a("buffer_load_dwordx4 %s, v%d, s[4:7], s9 offen %s" % (vr(vJ + 4 * (i & 1), 4), vVOFF, buf_off(i * 1024)))
    S_WO = 44
    make_srd(a, S_WO, 24, 4 << 20)
    u0, u1, u2, u3, u4 = vT + 5, vT + 6, vT + 7, vT + 8, vT + 9
    a("v_lshrrev_b32 v%d, 4, v%d" % (u0, L))
    a("v_and_b32 v%d, 15, v%d" % (u1, L))
    a("v_lshlrev_b32 v%d, 2, v%d" % (u2, u0))
    a("v_xor_b32 v%d, v%d, v%d" % (u1, u1, u2))
    a("v_lshlrev_b32 v%d, 8, v%d" % (u0, u0))
    a("v_lshl_add_u32 v%d, v%d, 4, v%d" % (u0, u1, u0))
    a("s_lshl_b32 s%d, s%d, 13" % (sT0, sWAVE))
    a("v_add_u32 v%d, s%d, v%d" % (u0, sT0, u0))
    a("v_lshrrev_b32 v%d, 4, v%d" % (u3, L))
    a("v_and_b32 v%d, 15, v%d" % (u4, L))
    a("v_xor_b32 v%d, v%d, v%d" % (u4, u4, u3))
    a("v_lshlrev_b32 v%d, 8, v%d" % (u3, u3))
    a("v_lshl_add_u32 v%d, v%d, 4, v%d" % (u3, u4, u3))
    a("v_add_u32 v%d, s%d, v%d" % (u3, sT0, u3))
    a("v_add_u32 v%d, 0x10000, v%d" % (u3, u3))
    for j in range(8):
        a("v_xor_b32 v%d, %d, v%d" % (u4, 64 * (j & 3), u3))
        a("ds_write_b128 v%d, %s %s" % (u4, vr(vKR + 4 * j, 4), ds_off(1024 * j)))
    for j in range(8):
        a("ds_write_b128 v%d, %s %s" % (u0, vr(vVR + 4 * j, 4), ds_off(1024 * j)))
    a("v_and_b32 v%d, 31, v%d" % (u1, L))
    a("v_lshrrev_b32 v%d, 5, v%d" % (u2, L))
    a("v_and_b32 v%d, 15, v%d" % (u4, u1))
    a("v_xor_b32 v%d, v%d, v%d" % (u4, u4, u2))
    a("v_lshlrev_b32 v%d, 8, v%d" % (u1, u1))
    a("v_lshl_add_u32 v%d, v%d, 4, v%d" % (u1, u4, u1))
    a("v_add_u32 v%d, s%d, v%d" % (u1, sT0, u1))
    a("v_add_u32 v%d, 0x10000, v%d" % (u1, u1))
    a("s_waitcnt lgkmcnt(7)")
    for jj in range(8):
        a("v_xor_b32 v%d, %d, v%d" % (u4, 32 * jj, u1))
        a("ds_read_b128 %s, v%d" % (vr(vKR + 4 * jj, 4), u4))
    a("v_lshl_add_u32 v%d, v%d, 2, v%d" % (t4, t0, t2))
    a("v_lshl_add_u32 v%d, v%d, 8, v%d" % (t4, t4, t3))
    a("v_add_u32 v%d, s%d, v%d" % (t4, sT0, t4))
    for T in range(4):
        a("v_xor_b32 v%d, %d, v%d" % (t1, T, t2))
        a("v_lshl_add_u32 v%d, v%d, 6, v%d" % (vWR + T, t1, t4))
    vQ = 128
    for i in range(32):
        a("v_cvt_pk_bf16_f32 v%d, v%d, v%d" % (vQ + i, vACC + 2 * i, vACC + 2 * i + 1))
    vS = 0
    for j in range(8):
        a("s_waitcnt lgkmcnt(%d)" % (7 - j))
        a("v_mfma_f32_32x32x16_bf16 %s, %s, %s, %s" % (vr(vS, 16), vr(vKR + 4 * j, 4), vr(vQ + 4 * j, 4), "0" if j == 0 else vr(vS, 16)))
    vVF = 32
    for T in range(4):
        for c2 in range(2):
            for p in range(2):
                a("ds_read_b64_tr_b16 %s, v%d %s" % (vr(vVF + 8 * T + 4 * c2 + 2 * p, 2), vWR + T, ds_off((16 * c2 + 8 * p) * 256)))
    vP = 16
    vE = 96
    for i in range(8):
        a("v_cvt_pk_bf16_f32 v%d, v%d, v%d" % (vP + i, vS + 2 * i, vS + 2 * i + 1))
    for i in range(8):
        a("v_lshlrev_b32 v%d, 16, v%d" % (vE + 2 * i, vP + i))
        a("v_and_b32 v%d, 0xffff0000, v%d" % (vE + 2 * i + 1, vP + i))
    for i in range(16):
        a("v_mul_f32 v%d, s%d, v%d" % (vE + i, sSCALE, vE + i))
    for i in range(8):
        a("v_cvt_pk_bf16_f32 v%d, v%d, v%d" % (vP + i, vE + 2 * i, vE + 2 * i + 1))
    for i in range(8):
        a("v_lshlrev_b32 v%d, 16, v%d" % (vE + 2 * i, vP + i))
        a("v_and_b32 v%d, 0xffff0000, v%d" % (vE + 2 * i + 1, vP + i))
    m0_, m1_ = t0, t1
    a("v_max3_f32 v%d, v%d, v%d, v%d" % (m0_, vE, vE + 1, vE + 2))
    for i in range(3, 15, 2):
        a("v_max3_f32 v%d, v%d, v%d, v%d" % (m0_, m0_, vE + i, vE + i + 1))
    a("v_max_f32 v%d, v%d, v%d" % (m0_, m0_, vE + 15))
    a("v_mov_b32 v%d, v%d" % (m1_, m0_))
    a("s_nop 1")
    a("v_permlane32_swap_b32 v%d, v%d" % (m0_, m1_))
    a("s_nop 1")
    a("v_max_f32 v%d, v%d, v%d" % (m0_, m0_, m1_))
    a("v_mul_f32 v%d, s%d, v%d" % (m0_, sLOG2E, m0_))
    for i in range(16):
        a("v_fma_f32 v%d, v%d, s%d, -v%d" % (vE + i, vE + i, sLOG2E, m0_))
    for i in range(16):
        a("v_exp_f32 v%d, v%d" % (vE + i, vE + i))
    a("s_nop 0")
    s0_, s1_ = t2, t3
    a("v_add_f32 v%d, v%d, v%d" % (s0_, vE, vE + 1))
    a("v_add_f32 v%d, v%d, v%d" % (s1_, vE + 2, vE + 3))
    for i in range(4, 16, 2):
        a("v_add_f32 v%d, v%d, v%d" % (s0_, s0_, vE + i))
        a("v_add_f32 v%d, v%d, v%d" % (s1_, s1_, vE + i + 1))
    a("v_add_f32 v%d, v%d, v%d" % (s0_, s0_, s1_))
    a("v_mov_b32 v%d, v%d" % (s1_, s0_))
    a("s_nop 1")
    a("v_permlane32_swap_b32 v%d, v%d" % (s0_, s1_))
    a("s_nop 1")
    a("v_add_f32 v%d, v%d, v%d" % (s0_, s0_, s1_))
    a("v_rcp_f32 v%d, v%d" % (s0_, s0_))
    a("s_nop 0")
    for i in range(16):
        a("v_mul_f32 v%d, v%d, v%d" % (vE + i, vE + i, s0_))
    for i in range(8):
        a("v_cvt_pk_bf16_f32 v%d, v%d, v%d" % (vP + i, vE + 2 * i, vE + 2 * i + 1))
    vO = 64
    a("s_waitcnt lgkmcnt(0)")
    a("s_nop 1")
    for T in range(4):
        for c2 in range(2):
            a("v_mfma_f32_32x32x16_bf16 %s, %s, %s, %s" % (vr(vO + 16 * T, 16), vr(vVF + 8 * T + 4 * c2, 4), vr(vP + 4 * c2, 4), "0" if c2 == 0 else vr(vO + 16 * T, 16)))
    a("v_lshrrev_b32 v%d, 4, v%d" % (t0, L))
    a("v_and_b32 v%d, 15, v%d" % (t1, L))
    a("v_lshlrev_b32 v%d, 13, v%d" % (t0, t0))
    a("v_lshl_add_u32 v%d, v%d, 4, v%d" % (t0, t1, t0))
    a("s_lshl_b32 s%d, s%d, 18" % (sOB, sB))
    a("s_lshl_b32 s%d, s%d, 8" % (sT0, sH))
    a("s_add_u32 s%d, s%d, s%d" % (sOB, sOB, sT0))
    a("s_nop 7")
    a("s_nop 3")
    vOP = 128
    for T in range(4):
        for jj in range(2):
            for i in range(4):
                a("v_cvt_pk_bf16_f32 v%d, v%d, v%d" % (vOP + 8 * T + 4 * jj + i, vO + 16 * T + 8 * jj + 2 * i, vO + 16 * T + 8 * jj + 2 * i + 1))
            a("v_xor_b32 v%d, %d, v%d" % (u4, 32 * (2 * T + jj), u1))
            a("ds_write_b128 v%d, %s" % (u4, vr(vOP + 8 * T + 4 * jj, 4)))
    a("s_waitcnt lgkmcnt(0)")
    for j in range(8):
        a("v_xor_b32 v%d, %d, v%d" % (u4, 64 * (j & 3), u3))
        a("ds_read_b128 %s, v%d %s" % (vr(vO + 4 * j, 4), u4, ds_off(1024 * j)))
    for j in range(8):
        a("s_add_u32 s%d, s%d, %d" % (sT0, sOB, j * 32768))
        a("s_waitcnt lgkmcnt(%d)" % (7 - j))
        a("buffer_store_dwordx4 %s, v%d, %s, s%d offen" % (vr(vO + 4 * j, 4), t0, sr(S_O, 4), sT0))
    stamp(a, 6)
    a("s_waitcnt vmcnt(0)")
    a("s_barrier")
    stamp(a, 7)

    S_A, S_B, S_P = S_O, S_WO, 52
    sG, sWM, sWN = 61, 62, 65
    sM0A, sM0B = 74, 75
    sAS, sBS = 76, 77
    sABASE, sBBASE = 78, 79
    sPB, sROT = 66, 64
    wA = [64, 72]
    wB = [80, 88]
    wAR = 96
    wBR = 108
    wAOFF = 114
    wBOFF = 116
    a("s_lshl_b32 s%d, s%d, 23" % (sT0, sBLK))
    a("s_add_u32 s%d, s%d, 0x%x" % (sT0, sT0, P_WS_OFF))
    a("s_add_u32 s36, s30, s%d" % sT0)
    a("s_addc_u32 s37, s31, 0")
    make_srd(a, S_P, 36, 8 << 20)
    a("s_lshr_b32 s%d, s%d, 2" % (sG, sWAVE))
    a("s_bfe_u32 s%d, s%d, 0x10001" % (sWM, sWAVE))
    a("s_and_b32 s%d, s%d, 1" % (sWN, sWAVE))
    a("s_lshl_b32 s%d, s%d, 2" % (sROT, sHP))
    a("s_lshl_b32 s%d, s%d, 11" % (sABASE, sHG))
    a("s_lshl_b32 s%d, s%d, 20" % (sBBASE, sHG))
    a("v_lshrrev_b32 v%d, 3, v%d" % (t0, L))
    a("v_and_b32 v%d, 7, v%d" % (t1, L))
    a("v_lshrrev_b32 v%d, 1, v%d" % (t2, t0))
    a("s_lshl_b32 s%d, s%d, 7" % (sT0, sBG))
    a("s_lshl_b32 s%d, s%d, 4" % (sT1, sWAVE))
    a("s_add_u32 s%d, s%d, s%d" % (sT0, sT0, sT1))
    for i in range(2):
        a("v_add_u32 v%d, %d, v%d" % (t3, 4 * i, t2))
        a("v_xor_b32 v%d, v%d, v%d" % (t3, t3, t1))
        a("v_add_u32 v%d, s%d, v%d" % (t4, sT0, t0))
        a("v_add_u32 v%d, %d, v%d" % (t4, 8 * i, t4))
        a("v_lshlrev_b32 v%d, 13, v%d" % (t4, t4))
        a("v_lshl_add_u32 v%d, v%d, 4, v%d" % (wAOFF + i, t3, t4))
    a("v_lshrrev_b32 v%d, 4, v%d" % (t0, L))
    a("v_and_b32 v%d, 15, v%d" % (t1, L))
    a("v_lshlrev_b32 v%d, 2, v%d" % (t2, t0))
    a("v_xor_b32 v%d, v%d, v%d" % (t1, t1, t2))
    a("s_lshl_b32 s%d, s%d, 3" % (sT0, sWAVE))
    a("v_add_u32 v%d, s%d, v%d" % (t0, sT0, t0))
    a("v_lshlrev_b32 v%d, 10, v%d" % (t0, t0))
    a("v_lshl_add_u32 v%d, v%d, 4, v%d" % (t0, t1, t0))
    a("s_lshl_b32 s%d, s%d, 8" % (sT1, sHP))
    a("v_add_u32 v%d, s%d, v%d" % (wBOFF, sT1, t0))
    a("s_lshl_b32 s%d, s%d, 11" % (sM0A, sWAVE))
    a("s_add_u32 s%d, s%d, 16384" % (sM0B, sM0A))

    def dma2_setup(stage):
        a("s_add_u32 s%d, s%d, %d" % (sT3, sROT, stage))
        a("s_and_b32 s%d, s%d, 15" % (sT3, sT3))
        a("s_lshl_b32 s%d, s%d, 7" % (sAS, sT3))
        a("s_add_u32 s%d, s%d, s%d" % (sAS, sAS, sABASE))
        a("s_lshl_b32 s%d, s%d, 16" % (sT3, sT3))
        a("s_add_u32 s%d, s%d, s%d" % (sT3, sT3, sBBASE))

    def dma2_a(stage, i):
        buf = stage % K2_NB
        a("s_add_u32 m0, s%d, %d" % (sM0A, buf * K2_BUF + i * 1024))
        a("s_nop 0")
        a("buffer_load_dwordx4 v%d, %s, s%d offen lds" % (wAOFF + i, sr(S_A, 4), sAS))

    def dma2_b(stage, j):
        buf = stage % K2_NB
        a("s_add_u32 s%d, s%d, %d" % (sBS, sT3, j * 4096))
        a("s_add_u32 m0, s%d, %d" % (sM0B, buf * K2_BUF + j * 1024))
        a("s_nop 0")
        a("buffer_load_dwordx4 v%d, %s, s%d offen lds" % (wBOFF, sr(S_B, 4), sBS))

    def dma2(stage):
        dma2_setup(stage)
        dma2_a(stage, 0)
        dma2_a(stage, 1)
        dma2_b(stage, 0)
        dma2_b(stage, 1)

    D2 = K2_NB - 1
    log2 = []
    S_D = 48
    a("s_add_u32 s36, s30, 0x%x" % F_WS_OFF)
    a("s_addc_u32 s37, s31, 0")
    make_srd(a, S_D, 36, 16384)
    sG1, sCNT, sNON = 67, 69, 68
    sXCC = 12
    a("s_cmp_lg_u32 s%d, 0" % sWAVE)
    a("s_cbranch_scc1 F_S1_SKIP")
    a("v_readfirstlane_b32 s%d, v%d" % (sNON, vNON))
    a("s_and_b32 s%d, s2, 7" % sT0)
    a("s_lshl_b32 s%d, s%d, 3" % (sG1, sT0))
    a("s_add_u32 s%d, s%d, s%d" % (sG1, sG1, sBG))
    a("s_lshl_b32 s%d, s%d, 7" % (sG1, sG1))
    a("s_cmp_eq_u32 s%d, 0" % sNON)
    a("s_cselect_b32 s%d, s%d, s%d" % (sNON, sNT, sNON))
    a("s_getreg_b32 s%d, hwreg(HW_REG_XCC_ID)" % sXCC)
    a("s_and_b32 s%d, s%d, 7" % (sXCC, sXCC))

    def publish(base):
        a("s_lshl_b32 s%d, s%d, 3" % (sT0, sHP))
        a("s_add_u32 s%d, s%d, s%d" % (sT0, sT0, sG1))
        a("v_mov_b32 v%d, s%d" % (t0, sT0))
        a("v_mov_b32 v%d, s%d" % (t2, sNON))
        a("v_mov_b32 v%d, s%d" % (t3, sXCC))
        a("v_cmp_eq_u32 vcc, 0, v%d" % L)
        a("s_and_saveexec_b64 s[10:11], vcc")
        a("buffer_store_dwordx2 v[%d:%d], v%d, %s, 0 offen offset:%d sc0 sc1" % (t2, t3, t0, sr(S_D, 4), base))
        a("s_mov_b64 exec, s[10:11]")

    def waitall(tag, base):
        a("v_and_b32 v%d, 3, v%d" % (t0, L))
        a("v_lshlrev_b32 v%d, 3, v%d" % (t0, t0))
        a("v_add_u32 v%d, s%d, v%d" % (t0, sG1, t0))
        a("s_mov_b32 s%d, 0" % sCNT)
        a.label("%s_POLL" % tag)
        a("buffer_load_dwordx2 v[%d:%d], v%d, %s, 0 offen offset:%d sc0 sc1" % (t2, t3, t0, sr(S_D, 4), base))
        a("s_waitcnt vmcnt(0)")
        a("v_cmp_ne_u32 vcc, s%d, v%d" % (sNON, t2))
        a("s_nop 3")
        a("s_cmp_eq_u64 vcc, 0")
        a("s_cbranch_scc1 %s_OK" % tag)
        a("s_sleep 2")
        a("s_add_u32 s%d, s%d, 1" % (sCNT, sCNT))
        a("s_cmp_lt_u32 s%d, %d" % (sCNT, SPIN_MAX))
        a("s_cbranch_scc1 %s_POLL" % tag)
        a.label("%s_OK" % tag)

    publish(0)
    a.label("F_S1_SKIP")

    def peer_wait():
        a("s_cmp_lg_u32 s%d, 0" % sWAVE)
        a("s_cbranch_scc1 F_S1_DONE")
        waitall("F_S1A", 0)
        a("v_cmp_ne_u32 vcc, s%d, v%d" % (sXCC, t3))
        a("s_nop 3")
        if "forceslow" not in EXP:
            a("s_cmp_eq_u64 vcc, 0")
            a("s_cbranch_scc1 F_S1_DONE")
        a("buffer_wbl2 sc1")
        a("s_waitcnt vmcnt(0)")
        publish(64)
        waitall("F_S1B", 64)
        a("buffer_inv sc1")
        a("s_waitcnt vmcnt(0)")
        a.label("F_S1_DONE")

    stamp(a, 8)
    NINIT2 = 2
    for s in range(NINIT2):
        dma2(s)
        log2 += [("a", s)] * 2 + [("b", s)] * 2
    if STAMP and "p2diag" in EXP:
        stamp(a, 13)
        a("s_waitcnt vmcnt(14)")
        stamp(a, 2)
        a("s_waitcnt vmcnt(12)")
        stamp(a, 3)
    a("v_and_b32 v%d, 31, v%d" % (t0, L))
    a("v_lshrrev_b32 v%d, 5, v%d" % (t1, L))
    a("v_bfe_u32 v%d, v%d, 1, 3" % (t2, t0))
    a("s_lshl_b32 s%d, s%d, 6" % (sT0, sWM))
    a("v_add_u32 v%d, s%d, v%d" % (t3, sT0, t0))
    a("v_lshlrev_b32 v%d, 7, v%d" % (t3, t3))
    a("s_lshl_b32 s%d, s%d, 2" % (sT1, sG))
    for cc in range(2):
        a("v_add_u32 v%d, s%d, v%d" % (t4, sT1, t1))
        a("v_add_u32 v%d, %d, v%d" % (t4, 2 * cc, t4))
        a("v_xor_b32 v%d, v%d, v%d" % (t4, t4, t2))
        a("v_lshl_add_u32 v%d, v%d, 4, v%d" % (wAR + 2 * cc, t4, t3))
        a("v_add_u32 v%d, 4096, v%d" % (wAR + 2 * cc + 1, wAR + 2 * cc))
    a("v_lshrrev_b32 v%d, 4, v%d" % (t0, L))
    a("v_and_b32 v%d, 1, v%d" % (t1, t0))
    a("v_lshrrev_b32 v%d, 1, v%d" % (t0, t0))
    a("v_bfe_u32 v%d, v%d, 2, 2" % (t2, L))
    a("v_and_b32 v%d, 1, v%d" % (t3, L))
    a("v_bfe_u32 v%d, v%d, 1, 1" % (t4, L))
    a("v_lshl_add_u32 v%d, v%d, 1, v%d" % (t3, t3, t4))
    a("v_lshlrev_b32 v%d, 3, v%d" % (t3, t3))
    a("v_lshl_add_u32 v%d, v%d, 5, v%d" % (t3, t1, t3))
    a("v_lshl_add_u32 v%d, v%d, 3, v%d" % (t4, t0, t2))
    a("s_lshl_b32 s%d, s%d, 5" % (sT0, sG))
    a("v_add_u32 v%d, s%d, v%d" % (t4, sT0, t4))
    a("v_lshl_add_u32 v%d, v%d, 8, v%d" % (t4, t4, t3))
    a("v_add_u32 v%d, 16384, v%d" % (t4, t4))
    a("s_lshl_b32 s%d, s%d, 1" % (sT1, sWN))
    for nt in range(2):
        a("s_add_u32 s%d, s%d, %d" % (sT2, sT1, nt))
        a("v_xor_b32 v%d, s%d, v%d" % (t1, sT2, t2))
        a("v_lshl_add_u32 v%d, v%d, 6, v%d" % (wBR + nt, t1, t4))
    for k in (1, 2):
        for i in range(4):
            a("v_add_u32 v%d, 0x%x, v%d" % (wAR + 4 * k + i, k * 65536, wAR + i))
        for i in range(2):
            a("v_add_u32 v%d, 0x%x, v%d" % (wBR + 2 * k + i, k * 65536, wBR + i))
    for i in range(64):
        a("v_mov_b32 v%d, 0" % (vACC + i))

    def reads2(stage, cc, st):
        buf = stage % K2_NB
        k, bo = buf >> 1, (buf & 1) * K2_BUF
        for mt in range(2):
            a("ds_read_b128 %s, v%d %s" % (vr(wA[st] + 4 * mt, 4), wAR + 4 * k + 2 * cc + mt, ds_off(bo)))
        for nt in range(2):
            for p in range(2):
                a("ds_read_b64_tr_b16 %s, v%d %s" % (vr(wB[st] + 4 * nt + 2 * p, 2), wBR + 2 * k + nt, ds_off(bo + (16 * cc + 4 * p) * 256)))

    def mf(st, mt, nt, w):
        if w is not None:
            a("s_waitcnt lgkmcnt(%d)" % w)
        acc = vACC + 32 * mt + 16 * nt
        a("v_mfma_f32_32x32x16_bf16 %s, %s, %s, %s" % (vr(acc, 16), vr(wB[st] + 4 * nt, 4), vr(wA[st] + 4 * mt, 4), vr(acc, 16)))

    WAITS = int(os.environ.get("WAITS", "2"))
    nx2 = NINIT2
    for s in range(NST):
        if s == WAITS:
            peer_wait()
        idx = max(i for i, t in enumerate(log2) if t in (("a", s), ("b", s)))
        a("s_waitcnt vmcnt(%d)" % (len(log2) - 1 - idx))
        a("s_barrier")
        if s == 0:
            stamp(a, 9)
        reads2(s, 0, 0)
        todo = []
        while (s >= WAITS or nx2 < 4) and nx2 < NST and nx2 <= s + D2 and len(todo) < 2:
            todo.append(nx2)
            nx2 += 1
        ops = []
        for t in todo:
            ops += [[(dma2_setup, (t,)), (dma2_a, (t, 0))], [(dma2_a, (t, 1))], [(dma2_b, (t, 0))], [(dma2_b, (t, 1))]]
            log2 += [("a", t)] * 2 + [("b", t)] * 2
        order = ((0, 0), (1, 0), (0, 1), (1, 1))
        for q in range(4):
            if s > 0:
                mf(1, order[q][0], order[q][1], None)
            k = (len(ops) + 3 - q) // (4 - q) if q < 3 else len(ops)
            for grp in ops[:k]:
                for fn, args in grp:
                    fn(*args)
            ops = ops[k:]
        reads2(s, 1, 1)
        mf(0, 0, 0, 8)
        mf(0, 1, 0, None)
        mf(0, 0, 1, 6)
        mf(0, 1, 1, None)
        a("s_waitcnt lgkmcnt(0)")
    for mt, nt in ((0, 0), (1, 0), (0, 1), (1, 1)):
        mf(1, mt, nt, None)
    stamp(a, 10)
    a("s_barrier")
    RS = 528
    GS = 128 * RS
    a("v_and_b32 v%d, 31, v%d" % (t0, L))
    a("v_lshrrev_b32 v%d, 5, v%d" % (t1, L))
    a("s_lshl_b32 s%d, s%d, 6" % (sT0, sWM))
    a("v_add_u32 v%d, s%d, v%d" % (t0, sT0, t0))
    a("s_movk_i32 s%d, %d" % (sT1, RS))
    a("v_mul_lo_u32 v%d, v%d, s%d" % (t0, t0, sT1))
    a("v_lshl_add_u32 v%d, v%d, 5, v%d" % (t0, t1, t0))
    a("s_mul_i32 s%d, s%d, %d" % (sT0, sG, GS))
    a("s_lshl_b32 s%d, s%d, 8" % (sT1, sWN))
    a("s_add_u32 s%d, s%d, s%d" % (sT0, sT0, sT1))
    a("v_add_u32 v%d, s%d, v%d" % (t0, sT0, t0))
    a("s_nop 3")
    for mt in range(2):
        for nt in range(2):
            for jj in range(2):
                for qq in range(2):
                    a("ds_write_b128 v%d, %s %s" % (t0, vr(vACC + 32 * mt + 16 * nt + 8 * jj + 4 * qq, 4), ds_off(mt * 32 * RS + (nt * 32 + 16 * jj + 4 * qq) * 4)))
        a("s_waitcnt lgkmcnt(4)")
    a("s_waitcnt lgkmcnt(0)")
    a("s_barrier")
    a("v_lshrrev_b32 v%d, 5, v%d" % (t1, L))
    a("v_and_b32 v%d, 31, v%d" % (t2, L))
    a("s_lshl_b32 s%d, s%d, 4" % (sT0, sWAVE))
    a("v_add_u32 v%d, s%d, v%d" % (t3, sT0, t1))
    a("s_movk_i32 s%d, %d" % (sT1, RS))
    a("v_mul_lo_u32 v%d, v%d, s%d" % (t3, t3, sT1))
    a("v_lshl_add_u32 v%d, v%d, 4, v%d" % (t3, t2, t3))
    a("v_add_u32 v%d, 0x%x, v%d" % (t4, GS, t3))

    def rd(i):
        a("ds_read_b128 %s, v%d %s" % (vr(vACC + 4 * i, 4), t3, ds_off(2 * RS * i)))
        a("ds_read_b128 %s, v%d %s" % (vr(vACC + 32 + 4 * i, 4), t4, ds_off(2 * RS * i)))
    PB16 = "pb16" in EXP
    RSH = 10 if PB16 else 11
    PSH = 20 if PB16 else 21
    a("v_lshlrev_b32 v%d, %d, v%d" % (t1, RSH, t1))
    a("v_lshl_add_u32 v%d, v%d, %d, v%d" % (t1, t2, 3 if PB16 else 4, t1))
    a("s_lshl_b32 s%d, s%d, 7" % (sPB, sBG))
    a("s_lshl_b32 s%d, s%d, %d" % (sPB, sPB, RSH))
    a("s_lshl_b32 s%d, s%d, %d" % (sT1, sHP, 8 if PB16 else 9))
    a("s_add_u32 s%d, s%d, s%d" % (sPB, sPB, sT1))
    a("s_lshr_b32 s%d, s%d, 1" % (sT1, sWAVE))
    a("s_cmp_eq_u32 s%d, s%d" % (sT1, sHG))
    a("s_cbranch_scc1 F_P_SKIP")
    for i in range(6):
        rd(i)
    a("s_lshl_b32 s%d, s%d, %d" % (sT0, sT0, RSH))
    a("s_add_u32 s%d, s%d, s%d" % (sT0, sT0, sPB))
    a("s_lshl_b32 s%d, s%d, %d" % (sT1, sHG, PSH))
    a("s_add_u32 s%d, s%d, s%d" % (sT0, sT0, sT1))
    for i in range(8):
        a("s_waitcnt lgkmcnt(%d)" % (10 if i < 2 else 2 * (7 - i)))
        if i < 2:
            rd(6 + i)
        for q in range(4):
            a("v_add_f32 v%d, v%d, v%d" % (vACC + 4 * i + q, vACC + 4 * i + q, vACC + 32 + 4 * i + q))
        a("s_add_u32 s%d, s%d, %d" % (sT1, sT0, i * (2 << RSH)))
        if PB16:
            a("v_cvt_pk_bf16_f32 v%d, v%d, v%d" % (vACC + 4 * i, vACC + 4 * i, vACC + 4 * i + 1))
            a("v_cvt_pk_bf16_f32 v%d, v%d, v%d" % (vACC + 4 * i + 1, vACC + 4 * i + 2, vACC + 4 * i + 3))
            a("buffer_store_dwordx2 %s, v%d, %s, s%d offen sc1" % (vr(vACC + 4 * i, 2), t1, sr(S_P, 4), sT1))
        else:
            a("buffer_store_dwordx4 %s, v%d, %s, s%d offen sc1" % (vr(vACC + 4 * i, 4), t1, sr(S_P, 4), sT1))
    a.label("F_P_SKIP")
    stamp(a, 11)
    a("s_waitcnt vmcnt(0)")
    a("s_barrier")
    stamp(a, 12)
    a("s_cmp_lg_u32 s%d, 0" % sWAVE)
    a("s_cbranch_scc1 F_S2_DONE")
    a("s_lshl_b32 s%d, s%d, 5" % (sG1, sBLK))
    a("s_lshl_b32 s%d, s%d, 2" % (sT0, sBG))
    a("s_add_u32 s%d, s%d, s%d" % (sG1, sG1, sT0))
    a("s_add_u32 s%d, s%d, s%d" % (sG1, sG1, sHP))
    a("s_add_u32 s%d, s%d, 64" % (sG1, sG1))
    a("s_lshl_b32 s%d, s%d, 7" % (sG1, sG1))
    a("s_lshl_b32 s%d, s%d, 3" % (sT0, sHG))
    a("s_add_u32 s%d, s%d, s%d" % (sT0, sT0, sG1))
    a("v_mov_b32 v%d, s%d" % (t0, sT0))
    a("v_mov_b32 v%d, s%d" % (t2, sNON))
    a("v_mov_b32 v%d, s%d" % (t3, sXCC))
    a("v_cmp_eq_u32 vcc, 0, v%d" % L)
    a("s_and_saveexec_b64 s[10:11], vcc")
    a("buffer_store_dwordx2 v[%d:%d], v%d, %s, 0 offen sc0 sc1" % (t2, t3, t0, sr(S_D, 4)))
    a("s_mov_b64 exec, s[10:11]")
    waitall("F_S2A", 0)
    a.label("F_S2_DONE")
    a("s_barrier")
    stamp(a, 13)
    S_OUT = 40
    make_srd(a, S_OUT, 26, 2 << 20)
    a("s_lshl_b32 s%d, s%d, 5" % (sT0, sHG))
    a("s_lshl_b32 s%d, s%d, 2" % (sT1, sWAVE))
    a("s_add_u32 s%d, s%d, s%d" % (sT0, sT0, sT1))
    a("v_lshrrev_b32 v%d, 5, v%d" % (t2, L))
    a("v_and_b32 v%d, 31, v%d" % (t3, L))
    a("v_add_u32 v%d, s%d, v%d" % (t4, sT0, t2))
    a("s_movk_i32 s%d, %d" % (sT1, RS))
    a("v_mul_lo_u32 v%d, v%d, s%d" % (t4, t4, sT1))
    a("v_lshl_add_u32 v%d, v%d, 4, v%d" % (t4, t3, t4))
    a("v_add_u32 v%d, 0x%x, v%d" % (t0, GS, t4))
    a("s_lshl_b32 s%d, s%d, %d" % (sT1, sT0, RSH))
    a("s_add_u32 s%d, s%d, s%d" % (sT1, sT1, sPB))
    for d in range(1, 4):
        a("s_add_u32 s%d, s%d, %d" % (sT2, sHG, d))
        a("s_and_b32 s%d, s%d, 3" % (sT2, sT2))
        a("s_lshl_b32 s%d, s%d, %d" % (sT2, sT2, PSH))
        a("s_add_u32 s%d, s%d, s%d" % (sT2, sT2, sT1))
        a("s_add_u32 s%d, s%d, %d" % (sT3, sT2, 2 << RSH))
        if PB16:
            a("buffer_load_dwordx2 %s, v%d, %s, s%d offen sc1" % (vr(44 + 4 * (d - 1), 2), t1, sr(S_P, 4), sT2))
            a("buffer_load_dwordx2 %s, v%d, %s, s%d offen sc1" % (vr(44 + 4 * (d - 1) + 2, 2), t1, sr(S_P, 4), sT3))
        else:
            a("buffer_load_dwordx4 %s, v%d, %s, s%d offen sc1" % (vr(16 + 8 * (d - 1), 4), t1, sr(S_P, 4), sT2))
            a("buffer_load_dwordx4 %s, v%d, %s, s%d offen sc1" % (vr(16 + 8 * (d - 1) + 4, 4), t1, sr(S_P, 4), sT3))
    for i in range(2):
        a("ds_read_b128 %s, v%d %s" % (vr(4 * i, 4), t4, ds_off(2 * RS * i)))
        a("ds_read_b128 %s, v%d %s" % (vr(8 + 4 * i, 4), t0, ds_off(2 * RS * i)))
    a("v_lshlrev_b32 v%d, 11, v%d" % (t2, t2))
    a("v_lshl_add_u32 v%d, v%d, 3, v%d" % (t2, t3, t2))
    a("s_lshl_b32 s%d, s%d, 7" % (sT1, sBG))
    a("s_add_u32 s%d, s%d, s%d" % (sT1, sT1, sT0))
    a("s_lshl_b32 s%d, s%d, 11" % (sT1, sT1))
    a("s_lshl_b32 s%d, s%d, 10" % (sT2, sBLK))
    a("s_add_u32 s%d, s%d, s%d" % (sT1, sT1, sT2))
    a("s_lshl_b32 s%d, s%d, 8" % (sT2, sHP))
    a("s_add_u32 s%d, s%d, s%d" % (sT1, sT1, sT2))
    a("s_add_u32 s%d, s%d, 4096" % (sT2, sT1))
    a("s_waitcnt lgkmcnt(0)")
    for q in range(8):
        a("v_add_f32 v%d, v%d, v%d" % (q, q, 8 + q))
    a("s_waitcnt vmcnt(0)")
    if PB16:
        for d in range(3):
            for q in range(4):
                a("v_lshlrev_b32 v%d, 16, v%d" % (16 + 8 * d + 2 * q, 44 + 4 * d + q))
                a("v_and_b32 v%d, 0xffff0000, v%d" % (16 + 8 * d + 2 * q + 1, 44 + 4 * d + q))
    for q in range(8):
        a("v_add_f32 v%d, v%d, v%d" % (16 + q, 16 + q, 24 + q))
        a("v_add_f32 v%d, v%d, v%d" % (q, q, 32 + q))
    for q in range(8):
        a("v_add_f32 v%d, v%d, v%d" % (q, q, 16 + q))
    for q in range(4):
        a("v_cvt_pk_bf16_f32 v%d, v%d, v%d" % (40 + q, 2 * q, 2 * q + 1))
    a("buffer_store_dwordx2 v[40:41], v%d, %s, s%d offen" % (t2, sr(S_OUT, 4), sT1))
    a("buffer_store_dwordx2 v[42:43], v%d, %s, s%d offen" % (t2, sr(S_OUT, 4), sT2))
    if STAMP:
        a("s_waitcnt vmcnt(0)")
        stamp(a, 2)
        a("s_memrealtime s[98:99]")
        a("s_waitcnt lgkmcnt(0)")
        a("s_mov_b32 s97, s98")
        stamp_dump(a, 0, 40, vTID)
    if "diag" in EXP:
        a("s_waitcnt vmcnt(0)")
        a("s_memrealtime s[98:99]")
        a("s_waitcnt lgkmcnt(0)")
        a("s_add_u32 s36, s30, 0x%x" % (60 << 20))
        a("s_addc_u32 s37, s31, 0")
        make_srd(a, 40, 36, 65536)
        a("s_lshl_b32 s3, s2, 3")
        a("v_mov_b32 v0, s3")
        a("v_mov_b32 v2, s96")
        a("v_mov_b32 v3, s98")
        a("s_cmp_lg_u32 s%d, 0" % sWAVE)
        a("s_cbranch_scc1 F_DONE")
        a("buffer_store_dwordx2 v[2:3], v0, s[40:43], 0 offen")
    if "diag2" in EXP:
        a("s_waitcnt vmcnt(0)")
        rt(a, 6)
        a("s_cmp_lg_u32 s%d, 0" % sWAVE)
        a("s_cbranch_scc1 F_DONE")
        a("s_cmp_lg_u32 s2, 0")
        a("s_cbranch_scc1 F_DONE")
        make_srd(a, 40, 28, 256)
        a("v_mov_b32 v0, 32")
        for i in range(7):
            a("v_mov_b32 v%d, s%d" % (2 + i, 88 + i))
        a("v_cmp_eq_u32 vcc, 0, v%d" % L)
        a("s_and_saveexec_b64 s[10:11], vcc")
        a("buffer_store_dwordx4 v[2:5], v0, s[40:43], 0 offen")
        a("buffer_store_dwordx4 v[6:9], v0, s[40:43], 0 offen offset:16")
    a.label("F_DONE")
    a("s_endpgm")
    return kernel_desc(name, NV, 100)


def gen_k3(a):
    name = "k3_kernel"
    kernel_begin(a, name)
    a("s_cmp_ge_u32 s2, %d" % (0 if "k3empty" in EXP else 256))
    a("s_cbranch_scc1 K3_DONE")
    if "diag" in EXP:
        a("s_memrealtime s[36:37]")
    a("s_load_dwordx2 s[4:5], s[0:1], 80")
    a("s_load_dwordx2 s[6:7], s[0:1], 96")
    a("s_lshl_b32 s3, s2, 8")
    a("v_add_u32 v1, s3, v0")
    a("s_waitcnt lgkmcnt(0)")
    a("s_add_u32 s6, s6, 0x%x" % P_WS_OFF)
    a("s_addc_u32 s7, s7, 0")
    make_srd(a, 8, 6, 16 << 20)
    make_srd(a, 12, 4, 2 << 20)
    a("v_lshlrev_b32 v2, 4, v1")
    for i in range(4):
        blk = i >> 1
        for ks in range(4):
            a("s_mov_b32 s%d, 0x%x" % (16 + 4 * i + ks, blk * (8 << 20) + ks * (2 << 20) + (i & 1) * (1 << 20)))
    for i in range(4):
        for ks in range(4):
            a("buffer_load_dwordx4 %s, v2, s[8:11], s%d offen" % (vr(8 + 16 * i + 4 * ks, 4), 16 + 4 * i + ks))
    a("v_lshrrev_b32 v3, 7, v1")
    a("v_lshlrev_b32 v3, 11, v3")
    a("v_and_b32 v4, 127, v1")
    a("v_lshl_add_u32 v3, v4, 3, v3")
    for i in range(4):
        a("s_waitcnt vmcnt(%d)" % (12 - 4 * i))
        b = 8 + 16 * i
        for q in range(4):
            a("v_add_f32 v%d, v%d, v%d" % (b + q, b + q, b + 4 + q))
            a("v_add_f32 v%d, v%d, v%d" % (b + 8 + q, b + 8 + q, b + 12 + q))
        for q in range(4):
            a("v_add_f32 v%d, v%d, v%d" % (b + q, b + q, b + 8 + q))
        a("v_cvt_pk_bf16_f32 v%d, v%d, v%d" % (b, b, b + 1))
        a("v_cvt_pk_bf16_f32 v%d, v%d, v%d" % (b + 1, b + 2, b + 3))
        a("s_mov_b32 s16, 0x%x" % ((i >> 1) * 1024 + (i & 1) * 512 * 2048))
        a("buffer_store_dwordx2 %s, v3, s[12:15], s16 offen" % vr(b, 2))
    if "diag" in EXP:
        a("s_cmp_lg_u32 s2, 0")
        a("s_cbranch_scc1 K3_DONE")
        a("s_waitcnt vmcnt(0)")
        a("s_memrealtime s[38:39]")
        a("s_load_dwordx2 s[4:5], s[0:1], 88")
        a("s_load_dwordx2 s[6:7], s[0:1], 96")
        a("s_waitcnt lgkmcnt(0)")
        a("s_add_u32 s6, s6, 0x%x" % (60 << 20))
        a("s_addc_u32 s7, s7, 0")
        make_srd(a, 8, 6, 65536)
        make_srd(a, 12, 4, 256)
        a("v_lshlrev_b32 v1, 3, v0")
        a("buffer_load_dwordx2 v[4:5], v1, s[8:11], 0 offen")
        a("s_waitcnt vmcnt(0)")
        a("v_cmp_gt_u32 vcc, 6, v0")
        a("s_and_saveexec_b64 s[20:21], vcc")
        a("buffer_store_dwordx2 v[4:5], v1, s[12:15], 0 offen")
        a("s_mov_b64 exec, s[20:21]")
        a("v_mov_b32 v6, s36")
        a("v_mov_b32 v7, s38")
        a("v_mov_b32 v1, 48")
        a("v_cmp_eq_u32 vcc, 0, v0")
        a("s_and_saveexec_b64 s[20:21], vcc")
        a("buffer_store_dwordx2 v[6:7], v1, s[12:15], 0 offen")
    a.label("K3_DONE")
    a("s_endpgm")
    return kernel_desc(name, 80, 40)


def main():
    a = Asm()
    hdr = HEADER + "; @launch grid=(256,1,1) block=(512,1,1) lds=%d\n" % F_LDS
    a.raw('.amdgcn_target "amdgcn-amd-amdhsa--gfx950"')
    a.raw(".text")
    descs = [gen_fused(a)]
    a.raw('.section .rodata,"a"')
    for d in descs:
        a.raw(".p2align 6")
        a.raw(d)
    open(OUT, "w").write(hdr + a.text())


if __name__ == "__main__":
    main()
```

```python
import sys, os
EXP = os.environ.get("EXP", "")

NAME = "concat_heads__gqa_block_cached__mha_block_cached__near_ridge"
OUT = os.environ.get("OUT", "cdna_kernels/%s.s" % NAME)

HEADER = """; Kernarg layout for this problem (104 bytes, ptrs only, base s[0:1]):
"""


class Asm:
    def __init__(self):
        self.lines = []

    def __call__(self, s):
        self.lines.append("    " + s)

    def label(self, s):
        self.lines.append(s + ":")

    def raw(self, s):
        self.lines.append(s)

    def text(self):
        return "\n".join(self.lines) + "\n"


def vr(base, n):
    return "v[%d:%d]" % (base, base + n - 1)


def sr(base, n):
    return "s[%d:%d]" % (base, base + n - 1)


def buf_off(o):
    assert 0 <= o < 4096, o
    return "offset:%d" % o


def ds_off(o):
    assert 0 <= o < 65536, o
    return "offset:%d" % o


def kernel_begin(a, name):
    a.raw(".globl %s" % name)
    a.raw(".p2align 8")
    a.raw(".type %s,@function" % name)
    a.label(name)


def kernel_desc(name, vgpr, sgpr, accum=None):
    if accum is None:
        accum = (vgpr + 3) // 4 * 4
    return """.amdhsa_kernel %s
  .amdhsa_next_free_vgpr %d
  .amdhsa_next_free_sgpr %d
  .amdhsa_accum_offset %d
  .amdhsa_group_segment_fixed_size 0
  .amdhsa_kernarg_size 104
  .amdhsa_user_sgpr_count 2
  .amdhsa_user_sgpr_kernarg_segment_ptr 1
  .amdhsa_system_sgpr_workgroup_id_x 1
.end_amdhsa_kernel
""" % (name, vgpr, sgpr, accum)


def make_srd(a, d, base_lo, size):
    a("s_mov_b32 s%d, s%d" % (d, base_lo))
    a("s_and_b32 s%d, s%d, 0xffff" % (d + 1, base_lo + 1))
    a("s_mov_b32 s%d, 0x%x" % (d + 2, size))
    a("s_mov_b32 s%d, 0x00020000" % (d + 3))


STAMP = "stamp" in EXP
KVMOD = " sc0 sc1 nt" if "kvnt" in EXP else ""
WMOD = " nt" if "wnt" in EXP else ""
DMOD = " nt" if "dnt" in EXP else ""
NSTAMP = 16


def rt(a, idx):
    if "diag2" in EXP:
        a("s_memrealtime s[98:99]")
        a("s_waitcnt lgkmcnt(0)")
        a("s_mov_b32 s%d, s98" % (88 + idx))


def stamp(a, idx):
    m = {0: 0, 2: 1, 4: 2, 7: 3, 10: 4, 13: 5}
    if "diag2" in EXP and idx in m:
        rt(a, m[idx])
    if STAMP:
        assert idx < NSTAMP
        a("s_memtime s[98:99]")
        a("s_waitcnt lgkmcnt(0)")
        a("s_mov_b32 s%d, s98" % (82 + idx))


def stamp_init(a, vtid):
    if STAMP:
        a("v_mov_b32 v%d, v0" % vtid)
        for i in range(NSTAMP):
            a("s_mov_b32 s%d, 0" % (82 + i))


def stamp_dump(a, kidx, vtmp, vtid):
    if not STAMP:
        return
    a("s_load_dwordx2 s[4:5], s[0:1], 96")
    a("s_waitcnt lgkmcnt(0)")
    a("s_add_u32 s4, s4, 0x%x" % ((64 << 20) + kidx * 262144))
    a("s_addc_u32 s5, s5, 0")
    a("s_and_b32 s5, s5, 0xffff")
    a("s_mov_b32 s6, 262144")
    a("s_mov_b32 s7, 0x00020000")
    a("s_lshl_b32 s3, s2, 10")
    a("v_lshrrev_b32 v%d, 6, v%d" % (vtmp, vtid))
    a("v_lshlrev_b32 v%d, 6, v%d" % (vtmp, vtmp))
    a("v_add_u32 v%d, s3, v%d" % (vtmp, vtmp))
    a("v_and_b32 v%d, 63, v%d" % (vtid, vtid))
    a("v_cmp_eq_u32 vcc, 0, v%d" % vtid)
    a("s_and_saveexec_b64 s[8:9], vcc")
    for i in range(NSTAMP):
        a("v_mov_b32 v%d, s%d" % (vtmp + 1, 82 + i))
        a("buffer_store_dword v%d, v%d, s[4:7], 0 offen offset:%d" % (vtmp + 1, vtmp, 4 * i))
        a("s_nop 1")
    a("s_mov_b64 exec, s[8:9]")


O_WS_OFF = 0
P_WS_OFF = 16 << 20

K1_BUF = 24576
K1_NB = 6
K2_BUF = 32768
K2_NB = 5
F_LDS = 163840
SPIN_MAX = 200000
F_WS_OFF = 48 << 20
WOPF = [5, 7, 9, 11]


def gen_fused(a):
    name = NAME + "_kernel"
    kernel_begin(a, name)
    S_X, S_W, S_K, S_V, S_O = 40, 44, 48, 52, 56
    sWAVE, sBL, sHL, sBG, sH0, sB, sH = 60, 61, 62, 63, 64, 65, 66
    sKB, sKB2, sOB = 67, 68, 69
    sT0, sT1, sT2, sT3 = 70, 71, 72, 73
    sM0X, sM0W = 74, 75
    sXS, sWS = 76, 77
    sSCALE, sLOG2E = 78, 79
    sBLK, sHG, sHP = 80, 81, 39
    vACC = 0
    vKR = 64
    vVR = 96
    vA = [128, 144]
    vB = [160, 164]
    vXR = 168
    vWR = 174
    vVOFF = 187
    vXOFF = 188
    vWOFF = 189
    vT = 190
    vLANE = 200
    vTID = 201
    vJ = 204
    NV = 216
    L = vLANE
    t0, t1, t2, t3, t4 = vT, vT + 1, vT + 2, vT + 3, vT + 4
    NST = 16

    a("s_cmp_ge_u32 s2, 256")
    a("s_cbranch_scc1 F_DONE")
    stamp_init(a, vTID)
    stamp(a, 0)
    if "diag" in EXP:
        a("s_memrealtime s[98:99]")
        a("s_waitcnt lgkmcnt(0)")
        a("s_mov_b32 s96, s98")
    if STAMP:
        a("s_memrealtime s[98:99]")
        a("s_waitcnt lgkmcnt(0)")
        a("s_mov_b32 s96, s98")
    a("s_load_dwordx16 s[16:31], s[0:1], 0")
    a("s_load_dwordx8 s[32:39], s[0:1], 64")
    a("s_load_dwordx2 s[14:15], s[0:1], 96")
    a("v_lshrrev_b32 v%d, 6, v0" % vT)
    a("v_and_b32 v%d, 63, v0" % vLANE)
    a("s_nop 0")
    a("v_readfirstlane_b32 s%d, v%d" % (sWAVE, vT))
    if "staticid" not in EXP:
        a("s_load_dwordx2 s[10:11], s[0:1], 88")
        a("s_getreg_b32 s12, hwreg(HW_REG_XCC_ID)")
        a("s_and_b32 s12, s12, 7")
        a("s_cmp_lg_u32 s%d, 0" % sWAVE)
        a("s_cbranch_scc1 F_TK_WAIT")
        a("s_waitcnt lgkmcnt(0)")
        make_srd(a, 4, 10, 256)
        a("s_lshl_b32 s13, s12, 2")
        a("v_mov_b32 v%d, s13" % (vT + 1))
        a("v_mov_b32 v%d, 1" % (vT + 2))
        a("v_mov_b32 v%d, 0" % (vT + 3))
        a("v_cmp_eq_u32 vcc, 0, v%d" % vLANE)
        a("s_and_saveexec_b64 s[8:9], vcc")
        a("buffer_atomic_add v%d, v%d, s[4:7], 0 offen sc0" % (vT + 2, vT + 1))
        a("s_waitcnt vmcnt(0)")
        a("ds_write_b32 v%d, v%d" % (vT + 3, vT + 2))
        a("s_mov_b64 exec, s[8:9]")
        a("s_waitcnt lgkmcnt(0)")
        a("s_branch F_TK_JOIN")
        a.label("F_TK_WAIT")
        if "nopf0" not in EXP:
            a("s_waitcnt lgkmcnt(0)")
            a("s_cmp_lt_u32 s12, 4")
            a("s_cselect_b32 s4, s16, s26")
            a("s_cselect_b32 s5, s17, s27")
            a("s_cselect_b32 s8, s22, s32")
            a("s_cselect_b32 s9, s23, s33")
            a("s_and_b32 s5, s5, 0xffff")
            a("s_mov_b32 s6, 0x%x" % (1 << 20))
            a("s_mov_b32 s7, 0x00020000")
            a("s_and_b32 s9, s9, 0xffff")
            a("s_mov_b32 s10, 0x%x" % (4 << 20))
            a("s_mov_b32 s11, 0x00020000")
            a("s_lshr_b32 s13, s2, 3")
            a("v_lshlrev_b32 v%d, 4, v%d" % (vT + 1, vLANE))
            a("s_lshl_b32 s%d, s13, 5" % sT0)
            a("s_lshl_b32 s%d, s%d, 2" % (sT1, sWAVE))
            a("s_add_u32 s%d, s%d, s%d" % (sT0, sT0, sT1))
            a("s_lshl_b32 s%d, s%d, 10" % (sT0, sT0))
            for i in range(4):
                a("buffer_load_dwordx4 %s, v%d, s[4:7], s%d offen %s" % (vr(vJ + 4 * (i & 1), 4), vT + 1, sT0, buf_off(i * 1024)))
            a("s_lshl_b32 s%d, s13, 4" % sT0)
            a("s_lshl_b32 s%d, s%d, 1" % (sT1, sWAVE))
            a("s_add_u32 s%d, s%d, s%d" % (sT0, sT0, sT1))
            a("s_lshl_b32 s%d, s%d, 13" % (sT0, sT0))
            a("s_and_b32 s%d, s12, 3" % sT1)
            a("s_lshl_b32 s%d, s%d, 11" % (sT1, sT1))
            a("s_add_u32 s%d, s%d, s%d" % (sT0, sT0, sT1))
            a("s_add_u32 s%d, s%d, 8192" % (sT1, sT0))
            for i in range(4):
                a("buffer_load_dwordx4 %s, v%d, s[8:11], s%d offen %s" % (vr(vJ + 4 * (i & 1), 4), vT + 1, sT0 if i < 2 else sT1, buf_off((i & 1) * 1024)))
        a.label("F_TK_JOIN")
        a("s_barrier")
        a("v_mov_b32 v%d, 0" % (vT + 3))
        a("ds_read_b32 v%d, v%d" % (vT + 2, vT + 3))
        a("s_waitcnt lgkmcnt(0)")
        a("v_readfirstlane_b32 s13, v%d" % (vT + 2))
        a("s_nop 3")
        a("s_barrier")
        a("s_cmp_ge_u32 s13, 32")
        a("s_cbranch_scc1 F_DONE")
        a("s_lshl_b32 s13, s13, 3")
        a("s_add_u32 s2, s13, s12")
    a("s_and_b32 s%d, s2, 7" % sT0)
    a("s_lshr_b32 s%d, s2, 3" % sT1)
    a("s_lshr_b32 s%d, s%d, 2" % (sBG, sT1))
    a("s_and_b32 s%d, s%d, 3" % (sT1, sT1))
    a("s_and_b32 s%d, s%d, 3" % (sHG, sT0))
    a("s_lshl_b32 s%d, s%d, 3" % (sH0, sHG))
    a("s_lshl_b32 s%d, s%d, 1" % (sT2, sT1))
    a("s_add_u32 s%d, s%d, s%d" % (sH0, sH0, sT2))
    a("s_lshr_b32 s%d, s%d, 2" % (sBLK, sT0))
    a("s_mov_b32 s13, s%d" % sT1)
    a("v_lshrrev_b32 v%d, 2, v%d" % (t0, L))
    a("v_and_b32 v%d, 3, v%d" % (t1, L))
    a("v_lshrrev_b32 v%d, 4, v%d" % (t2, L))
    a("v_xor_b32 v%d, v%d, v%d" % (t1, t1, t2))
    a("s_lshl_b32 s%d, s%d, 7" % (sT0, sBG))
    a("s_lshl_b32 s%d, s%d, 4" % (sT1, sWAVE))
    a("s_add_u32 s%d, s%d, s%d" % (sT0, sT0, sT1))
    a("v_add_u32 v%d, s%d, v%d" % (t0, sT0, t0))
    a("v_lshlrev_b32 v%d, 10, v%d" % (t0, t0))
    a("v_lshl_add_u32 v%d, v%d, 4, v%d" % (vXOFF, t1, t0))
    a("s_lshl_b32 s%d, s%d, 10" % (sM0X, sWAVE))
    a("v_lshrrev_b32 v%d, 4, v%d" % (t0, L))
    a("v_and_b32 v%d, 15, v%d" % (t1, L))
    a("v_lshlrev_b32 v%d, 2, v%d" % (t2, t0))
    a("v_xor_b32 v%d, v%d, v%d" % (t1, t1, t2))
    a("s_lshr_b32 s%d, s%d, 1" % (sT0, sWAVE))
    a("s_lshl_b32 s%d, s%d, 3" % (sT0, sT0))
    a("v_add_u32 v%d, s%d, v%d" % (t0, sT0, t0))
    a("v_lshlrev_b32 v%d, 13, v%d" % (t0, t0))
    a("v_lshl_add_u32 v%d, v%d, 4, v%d" % (t0, t1, t0))
    a("s_and_b32 s%d, s%d, 1" % (sT1, sWAVE))
    a("s_add_u32 s%d, s%d, s%d" % (sT2, sH0, sT1))
    a("s_lshl_b32 s%d, s%d, 8" % (sT2, sT2))
    a("v_add_u32 v%d, s%d, v%d" % (vWOFF, sT2, t0))
    a("s_lshl_b32 s%d, s%d, 13" % (sM0W, sT1))
    a("s_lshl_b32 s%d, s%d, 8" % (sT0, sT0))
    a("s_add_u32 s%d, s%d, s%d" % (sM0W, sM0W, sT0))
    a("s_add_u32 s%d, s%d, 8192" % (sM0W, sM0W))
    a("s_waitcnt lgkmcnt(0)")
    a("s_cmp_eq_u32 s%d, 0" % sBLK)
    for i in range(5):
        a("s_cselect_b32 s%d, s%d, s%d" % (16 + 2 * i, 16 + 2 * i, 26 + 2 * i))
        a("s_cselect_b32 s%d, s%d, s%d" % (17 + 2 * i, 17 + 2 * i, 27 + 2 * i))
    a("s_mov_b32 s26, s36")
    a("s_mov_b32 s27, s37")
    a("s_mov_b32 s28, s38")
    a("s_mov_b32 s29, s39")
    a("s_mov_b32 s30, s14")
    a("s_mov_b32 s31, s15")
    a("s_mov_b32 s%d, s13" % sHP)
    make_srd(a, S_X, 16, 1 << 20)
    make_srd(a, S_W, 22, 4 << 20)
    vNON = 212
    sNT = 8

    def dma_x(stage):
        buf = stage % K1_NB
        a("s_mov_b32 s%d, %d" % (sXS, stage * 64))
        a("s_add_u32 m0, s%d, %d" % (sM0X, buf * K1_BUF))
        a("s_nop 0")
        a("buffer_load_dwordx4 v%d, %s, s%d offen%s lds" % (vXOFF, sr(S_X, 4), sXS, DMOD))

    def dma_w(stage, j):
        buf = stage % K1_NB
        a("s_mov_b32 s%d, %d" % (sWS, stage * 262144 + j * 32768))
        a("s_add_u32 m0, s%d, %d" % (sM0W, buf * K1_BUF + j * 1024))
        a("s_nop 0")
        a("buffer_load_dwordx4 v%d, %s, s%d offen%s lds" % (vWOFF, sr(S_W, 4), sWS, DMOD))

    NINIT = int(os.environ.get('NINIT', '2'))
    for s in range(NINIT):
        dma_x(s)
        dma_w(s, 0)
        dma_w(s, 1)
    make_srd(a, S_K, 18, 8 << 20)
    make_srd(a, S_V, 20, 8 << 20)
    a("s_lshl_b32 s%d, s%d, 23" % (sT0, sBLK))
    a("s_add_u32 s36, s30, s%d" % sT0)
    a("s_addc_u32 s37, s31, 0")
    make_srd(a, S_O, 36, 8 << 20)
    a("s_lshr_b32 s%d, s%d, 1" % (sBL, sWAVE))
    a("s_and_b32 s%d, s%d, 1" % (sHL, sWAVE))
    a("s_lshl_b32 s%d, s%d, 2" % (sB, sBG))
    a("s_add_u32 s%d, s%d, s%d" % (sB, sB, sBL))
    a("s_add_u32 s%d, s%d, s%d" % (sH, sH0, sHL))
    a("s_mov_b32 s%d, 0x3db504f3" % sSCALE)
    a("s_mov_b32 s%d, 0x3fb8aa3b" % sLOG2E)
    a("v_and_b32 v%d, 31, v%d" % (t0, L))
    a("v_lshrrev_b32 v%d, 5, v%d" % (t1, L))
    a("v_lshlrev_b32 v%d, 4, v%d" % (vVOFF, L))
    a("s_lshl_b32 s%d, s%d, 5" % (sKB, sB))
    a("s_add_u32 s%d, s%d, s%d" % (sKB, sKB, sH))
    a("s_lshl_b32 s%d, s%d, 13" % (sKB, sKB))
    a("s_add_u32 s%d, s%d, 4096" % (sKB2, sKB))

    def kv_load(idx):
        if idx < 8:
            a("buffer_load_dwordx4 %s, v%d, %s, s%d offen %s" % (vr(vKR + 4 * idx, 4), vVOFF, sr(S_K, 4), sKB if idx < 4 else sKB2, buf_off(1024 * (idx & 3))) + KVMOD)
        else:
            j = idx - 8
            a("buffer_load_dwordx4 %s, v%d, %s, s%d offen %s" % (vr(vVR + 4 * j, 4), vVOFF, sr(S_V, 4), sKB if j < 4 else sKB2, buf_off(1024 * (j & 3))) + KVMOD)

    a("v_bfe_u32 v%d, v%d, 2, 2" % (t2, t0))
    a("s_lshl_b32 s%d, s%d, 5" % (sT0, sBL))
    a("v_add_u32 v%d, s%d, v%d" % (t3, sT0, t0))
    a("v_lshlrev_b32 v%d, 6, v%d" % (t3, t3))
    for c in range(2):
        a("v_add_u32 v%d, %d, v%d" % (t4, 2 * c, t1))
        a("v_xor_b32 v%d, v%d, v%d" % (t4, t4, t2))
        a("v_lshl_add_u32 v%d, v%d, 4, v%d" % (vXR + c, t4, t3))
        for k in (1, 2):
            a("v_add_u32 v%d, %d, v%d" % (vXR + 2 * k + c, 2 * k * K1_BUF, vXR + c))
    a("v_lshrrev_b32 v%d, 4, v%d" % (t0, L))
    a("v_and_b32 v%d, 1, v%d" % (t1, t0))
    a("v_lshrrev_b32 v%d, 1, v%d" % (t0, t0))
    a("v_bfe_u32 v%d, v%d, 2, 2" % (t2, L))
    a("v_and_b32 v%d, 1, v%d" % (t3, L))
    a("v_bfe_u32 v%d, v%d, 1, 1" % (t4, L))
    a("v_lshl_add_u32 v%d, v%d, 1, v%d" % (t3, t3, t4))
    a("v_lshlrev_b32 v%d, 3, v%d" % (t3, t3))
    a("v_lshl_add_u32 v%d, v%d, 5, v%d" % (t3, t1, t3))
    a("v_lshl_add_u32 v%d, v%d, 3, v%d" % (t4, t0, t2))
    a("v_lshl_add_u32 v%d, v%d, 8, v%d" % (t4, t4, t3))
    a("s_lshl_b32 s%d, s%d, 13" % (sT0, sHL))
    a("s_add_u32 s%d, s%d, 8192" % (sT0, sT0))
    a("v_add_u32 v%d, s%d, v%d" % (t4, sT0, t4))
    for T in range(4):
        a("v_xor_b32 v%d, %d, v%d" % (t1, T, t2))
        a("v_lshl_add_u32 v%d, v%d, 6, v%d" % (vWR + T, t1, t4))
        for k in (1, 2):
            a("v_add_u32 v%d, %d, v%d" % (vWR + 4 * k + T, 2 * k * K1_BUF, vWR + T))
    for i in range(64):
        a("v_mov_b32 v%d, 0" % (vACC + i))

    def reads(stage, c, st):
        buf = stage % K1_NB
        third, bo = buf >> 1, (buf & 1) * K1_BUF
        a("ds_read_b128 %s, v%d %s" % (vr(vB[st], 4), vXR + 2 * third + c, ds_off(bo)))
        for T in range(4):
            for p in range(2):
                a("ds_read_b64_tr_b16 %s, v%d %s" % (vr(vA[st] + 4 * T + 2 * p, 2), vWR + 4 * third + T, ds_off(bo + (16 * c + 4 * p) * 256)))

    def mfma1(st, T, w):
        if w is not None:
            a("s_waitcnt lgkmcnt(%d)" % w)
        a("v_mfma_f32_32x32x16_bf16 %s, %s, %s, %s" % (vr(vACC + 16 * T, 16), vr(vA[st] + 4 * T, 4), vr(vB[st], 4), vr(vACC + 16 * T, 16)))

    make_srd(a, 4, 24, 4 << 20)
    a("s_lshr_b32 s%d, s2, 3" % sT0)
    a("s_lshl_b32 s%d, s%d, 5" % (sT0, sT0))
    a("s_lshl_b32 s%d, s%d, 2" % (sT1, sWAVE))
    a("s_add_u32 s%d, s%d, s%d" % (sT0, sT0, sT1))
    a("s_lshl_b32 s%d, s%d, 10" % (sT1, sHG))
    a("s_add_u32 s%d, s%d, s%d" % (sT0, sT0, sT1))
    a("s_lshl_b32 s9, s%d, 10" % sT0)
    stamp(a, 1)
    log = []
    for s in range(NINIT):
        log += [("d", s)] * 3
    D = K1_NB - 1
    nxt = NINIT
    for s in range(NST):
        idx = max([i for i, t in enumerate(log) if t == ("d", s)], default=-1)
        n = len(log) - 1 - idx
        a("s_waitcnt vmcnt(%d)" % min(n, 63))
        a("s_barrier")
        if s in (0, 8):
            stamp(a, {0: 2, 8: 3}[s])
        reads(s, 0, 0)
        todo = []
        while nxt < NST and nxt <= s + D and len(todo) < 2:
            todo.append(nxt)
            nxt += 1
        ops = []
        for t in todo:
            ops += [(dma_x, (t,)), (dma_w, (t, 0)), (dma_w, (t, 1))]
            log += [("d", t)] * 3
        if s > 0:
            for T in range(4):
                mfma1(1, T, None)
                k = (len(ops) + 3 - T) // (4 - T) if T < 3 else len(ops)
                for f, args in ops[:k]:
                    f(*args)
                ops = ops[k:]
        else:
            for f, args in ops:
                f(*args)
        a("s_waitcnt lgkmcnt(6)")
        reads(s, 1, 1)
        mfma1(0, 0, 15)
        if "kv2" in EXP:
            kvs = [2 * s, 2 * s + 1] if s < 8 else []
        elif "kv12" in EXP:
            kvs = ([2 * s, 2 * s + 1] if s < 4 else [s + 4]) if s < 12 else []
        else:
            kvs = [s]
        for q in kvs:
            kv_load(q)
            log.append(("kv", s))
        if s == 10:
            a("s_cmp_lg_u32 s%d, 0" % sWAVE)
            a("s_cbranch_scc1 F_NON_SKIP")
            make_srd(a, 12, 28, 256)
            a("s_memrealtime s[10:11]")
            a("s_waitcnt lgkmcnt(0)")
            a("s_or_b32 s%d, s10, 1" % sNT)
            a("v_mov_b32 v%d, s%d" % (vNON, sNT))
            a("v_mov_b32 v%d, 0" % (vNON + 1))
            a("v_mov_b32 v%d, 128" % (vNON + 2))
            a("v_cmp_eq_u32 vcc, 0, v%d" % L)
            a("s_and_saveexec_b64 s[10:11], vcc")
            a("buffer_atomic_cmpswap v[%d:%d], v%d, s[12:15], 0 offen sc0 sc1" % (vNON, vNON + 1, vNON + 2))
            a("s_mov_b64 exec, s[10:11]")
            a.label("F_NON_SKIP")


        mfma1(0, 1, 13)
        if "nowopf" not in EXP and "wolate" not in EXP and s in WOPF:
            i = WOPF.index(s)
            a("buffer_load_dwordx4 %s, v%d, s[4:7], s9 offen %s" % (vr(vJ + 4 * (i & 1), 4), vVOFF, buf_off(i * 1024)))
            log.append(("wo", s))
        mfma1(0, 2, 11)
        mfma1(0, 3, 9)
        a("s_waitcnt lgkmcnt(0)")
    for T in range(4):
        mfma1(1, T, None)
    stamp(a, 4)
    a("s_barrier")
    a("s_waitcnt vmcnt(0)")
    stamp(a, 5)
    if "wolate" in EXP:
        for i in range(4):
            a("buffer_load_dwordx4 %s, v%d, s[4:7], s9 offen %s" % (vr(vJ + 4 * (i & 1), 4), vVOFF, buf_off(i * 1024)))
    S_WO = 44
    make_srd(a, S_WO, 24, 4 << 20)
    u0, u1, u2, u3, u4 = vT + 5, vT + 6, vT + 7, vT + 8, vT + 9
    a("v_lshrrev_b32 v%d, 4, v%d" % (u0, L))
    a("v_and_b32 v%d, 15, v%d" % (u1, L))
    a("v_lshlrev_b32 v%d, 2, v%d" % (u2, u0))
    a("v_xor_b32 v%d, v%d, v%d" % (u1, u1, u2))
    a("v_lshlrev_b32 v%d, 8, v%d" % (u0, u0))
    a("v_lshl_add_u32 v%d, v%d, 4, v%d" % (u0, u1, u0))
    a("s_lshl_b32 s%d, s%d, 13" % (sT0, sWAVE))
    a("v_add_u32 v%d, s%d, v%d" % (u0, sT0, u0))
    a("v_lshrrev_b32 v%d, 4, v%d" % (u3, L))
    a("v_and_b32 v%d, 15, v%d" % (u4, L))
    a("v_xor_b32 v%d, v%d, v%d" % (u4, u4, u3))
    a("v_lshlrev_b32 v%d, 8, v%d" % (u3, u3))
    a("v_lshl_add_u32 v%d, v%d, 4, v%d" % (u3, u4, u3))
    a("v_add_u32 v%d, s%d, v%d" % (u3, sT0, u3))
    a("v_add_u32 v%d, 0x10000, v%d" % (u3, u3))
    for j in range(8):
        a("v_xor_b32 v%d, %d, v%d" % (u4, 64 * (j & 3), u3))
        a("ds_write_b128 v%d, %s %s" % (u4, vr(vKR + 4 * j, 4), ds_off(1024 * j)))
    for j in range(8):
        a("ds_write_b128 v%d, %s %s" % (u0, vr(vVR + 4 * j, 4), ds_off(1024 * j)))
    a("v_and_b32 v%d, 31, v%d" % (u1, L))
    a("v_lshrrev_b32 v%d, 5, v%d" % (u2, L))
    a("v_and_b32 v%d, 15, v%d" % (u4, u1))
    a("v_xor_b32 v%d, v%d, v%d" % (u4, u4, u2))
    a("v_lshlrev_b32 v%d, 8, v%d" % (u1, u1))
    a("v_lshl_add_u32 v%d, v%d, 4, v%d" % (u1, u4, u1))
    a("v_add_u32 v%d, s%d, v%d" % (u1, sT0, u1))
    a("v_add_u32 v%d, 0x10000, v%d" % (u1, u1))
    a("s_waitcnt lgkmcnt(7)")
    for jj in range(8):
        a("v_xor_b32 v%d, %d, v%d" % (u4, 32 * jj, u1))
        a("ds_read_b128 %s, v%d" % (vr(vKR + 4 * jj, 4), u4))
    a("v_lshl_add_u32 v%d, v%d, 2, v%d" % (t4, t0, t2))
    a("v_lshl_add_u32 v%d, v%d, 8, v%d" % (t4, t4, t3))
    a("v_add_u32 v%d, s%d, v%d" % (t4, sT0, t4))
    for T in range(4):
        a("v_xor_b32 v%d, %d, v%d" % (t1, T, t2))
        a("v_lshl_add_u32 v%d, v%d, 6, v%d" % (vWR + T, t1, t4))
    vQ = 128
    for i in range(32):
        a("v_cvt_pk_bf16_f32 v%d, v%d, v%d" % (vQ + i, vACC + 2 * i, vACC + 2 * i + 1))
    vS = 0
    for j in range(8):
        a("s_waitcnt lgkmcnt(%d)" % (7 - j))
        a("v_mfma_f32_32x32x16_bf16 %s, %s, %s, %s" % (vr(vS, 16), vr(vKR + 4 * j, 4), vr(vQ + 4 * j, 4), "0" if j == 0 else vr(vS, 16)))
    vVF = 32
    for T in range(4):
        for c2 in range(2):
            for p in range(2):
                a("ds_read_b64_tr_b16 %s, v%d %s" % (vr(vVF + 8 * T + 4 * c2 + 2 * p, 2), vWR + T, ds_off((16 * c2 + 8 * p) * 256)))
    vP = 16
    vE = 96
    for i in range(8):
        a("v_cvt_pk_bf16_f32 v%d, v%d, v%d" % (vP + i, vS + 2 * i, vS + 2 * i + 1))
    for i in range(8):
        a("v_lshlrev_b32 v%d, 16, v%d" % (vE + 2 * i, vP + i))
        a("v_and_b32 v%d, 0xffff0000, v%d" % (vE + 2 * i + 1, vP + i))
    for i in range(16):
        a("v_mul_f32 v%d, s%d, v%d" % (vE + i, sSCALE, vE + i))
    for i in range(8):
        a("v_cvt_pk_bf16_f32 v%d, v%d, v%d" % (vP + i, vE + 2 * i, vE + 2 * i + 1))
    for i in range(8):
        a("v_lshlrev_b32 v%d, 16, v%d" % (vE + 2 * i, vP + i))
        a("v_and_b32 v%d, 0xffff0000, v%d" % (vE + 2 * i + 1, vP + i))
    m0_, m1_ = t0, t1
    a("v_max3_f32 v%d, v%d, v%d, v%d" % (m0_, vE, vE + 1, vE + 2))
    for i in range(3, 15, 2):
        a("v_max3_f32 v%d, v%d, v%d, v%d" % (m0_, m0_, vE + i, vE + i + 1))
    a("v_max_f32 v%d, v%d, v%d" % (m0_, m0_, vE + 15))
    a("v_mov_b32 v%d, v%d" % (m1_, m0_))
    a("s_nop 1")
    a("v_permlane32_swap_b32 v%d, v%d" % (m0_, m1_))
    a("s_nop 1")
    a("v_max_f32 v%d, v%d, v%d" % (m0_, m0_, m1_))
    a("v_mul_f32 v%d, s%d, v%d" % (m0_, sLOG2E, m0_))
    for i in range(16):
        a("v_fma_f32 v%d, v%d, s%d, -v%d" % (vE + i, vE + i, sLOG2E, m0_))
    for i in range(16):
        a("v_exp_f32 v%d, v%d" % (vE + i, vE + i))
    a("s_nop 0")
    s0_, s1_ = t2, t3
    a("v_add_f32 v%d, v%d, v%d" % (s0_, vE, vE + 1))
    a("v_add_f32 v%d, v%d, v%d" % (s1_, vE + 2, vE + 3))
    for i in range(4, 16, 2):
        a("v_add_f32 v%d, v%d, v%d" % (s0_, s0_, vE + i))
        a("v_add_f32 v%d, v%d, v%d" % (s1_, s1_, vE + i + 1))
    a("v_add_f32 v%d, v%d, v%d" % (s0_, s0_, s1_))
    a("v_mov_b32 v%d, v%d" % (s1_, s0_))
    a("s_nop 1")
    a("v_permlane32_swap_b32 v%d, v%d" % (s0_, s1_))
    a("s_nop 1")
    a("v_add_f32 v%d, v%d, v%d" % (s0_, s0_, s1_))
    a("v_rcp_f32 v%d, v%d" % (s0_, s0_))
    a("s_nop 0")
    for i in range(16):
        a("v_mul_f32 v%d, v%d, v%d" % (vE + i, vE + i, s0_))
    for i in range(8):
        a("v_cvt_pk_bf16_f32 v%d, v%d, v%d" % (vP + i, vE + 2 * i, vE + 2 * i + 1))
    vO = 64
    a("s_waitcnt lgkmcnt(0)")
    a("s_nop 1")
    for T in range(4):
        for c2 in range(2):
            a("v_mfma_f32_32x32x16_bf16 %s, %s, %s, %s" % (vr(vO + 16 * T, 16), vr(vVF + 8 * T + 4 * c2, 4), vr(vP + 4 * c2, 4), "0" if c2 == 0 else vr(vO + 16 * T, 16)))
    a("v_lshrrev_b32 v%d, 4, v%d" % (t0, L))
    a("v_and_b32 v%d, 15, v%d" % (t1, L))
    a("v_lshlrev_b32 v%d, 13, v%d" % (t0, t0))
    a("v_lshl_add_u32 v%d, v%d, 4, v%d" % (t0, t1, t0))
    a("s_lshl_b32 s%d, s%d, 18" % (sOB, sB))
    a("s_lshl_b32 s%d, s%d, 8" % (sT0, sH))
    a("s_add_u32 s%d, s%d, s%d" % (sOB, sOB, sT0))
    a("s_nop 7")
    a("s_nop 3")
    vOP = 128
    for T in range(4):
        for jj in range(2):
            for i in range(4):
                a("v_cvt_pk_bf16_f32 v%d, v%d, v%d" % (vOP + 8 * T + 4 * jj + i, vO + 16 * T + 8 * jj + 2 * i, vO + 16 * T + 8 * jj + 2 * i + 1))
            a("v_xor_b32 v%d, %d, v%d" % (u4, 32 * (2 * T + jj), u1))
            a("ds_write_b128 v%d, %s" % (u4, vr(vOP + 8 * T + 4 * jj, 4)))
    a("s_waitcnt lgkmcnt(0)")
    for j in range(8):
        a("v_xor_b32 v%d, %d, v%d" % (u4, 64 * (j & 3), u3))
        a("ds_read_b128 %s, v%d %s" % (vr(vO + 4 * j, 4), u4, ds_off(1024 * j)))
    for j in range(8):
        a("s_add_u32 s%d, s%d, %d" % (sT0, sOB, j * 32768))
        a("s_waitcnt lgkmcnt(%d)" % (7 - j))
        a("buffer_store_dwordx4 %s, v%d, %s, s%d offen" % (vr(vO + 4 * j, 4), t0, sr(S_O, 4), sT0))
    stamp(a, 6)
    a("s_waitcnt vmcnt(0)")
    a("s_barrier")
    stamp(a, 7)

    S_A, S_B, S_P = S_O, S_WO, 52
    sG, sWM, sWN = 61, 62, 65
    sM0A, sM0B = 74, 75
    sAS, sBS = 76, 77
    sABASE, sBBASE = 78, 79
    sPB, sROT = 66, 64
    wA = [64, 72]
    wB = [80, 88]
    wAR = 96
    wBR = 108
    wAOFF = 114
    wBOFF = 116
    a("s_lshl_b32 s%d, s%d, 23" % (sT0, sBLK))
    a("s_add_u32 s%d, s%d, 0x%x" % (sT0, sT0, P_WS_OFF))
    a("s_add_u32 s36, s30, s%d" % sT0)
    a("s_addc_u32 s37, s31, 0")
    make_srd(a, S_P, 36, 8 << 20)
    a("s_lshr_b32 s%d, s%d, 2" % (sG, sWAVE))
    a("s_bfe_u32 s%d, s%d, 0x10001" % (sWM, sWAVE))
    a("s_and_b32 s%d, s%d, 1" % (sWN, sWAVE))
    a("s_lshl_b32 s%d, s%d, 2" % (sROT, sHP))
    a("s_lshl_b32 s%d, s%d, 11" % (sABASE, sHG))
    a("s_lshl_b32 s%d, s%d, 20" % (sBBASE, sHG))
    a("v_lshrrev_b32 v%d, 3, v%d" % (t0, L))
    a("v_and_b32 v%d, 7, v%d" % (t1, L))
    a("v_lshrrev_b32 v%d, 1, v%d" % (t2, t0))
    a("s_lshl_b32 s%d, s%d, 7" % (sT0, sBG))
    a("s_lshl_b32 s%d, s%d, 4" % (sT1, sWAVE))
    a("s_add_u32 s%d, s%d, s%d" % (sT0, sT0, sT1))
    for i in range(2):
        a("v_add_u32 v%d, %d, v%d" % (t3, 4 * i, t2))
        a("v_xor_b32 v%d, v%d, v%d" % (t3, t3, t1))
        a("v_add_u32 v%d, s%d, v%d" % (t4, sT0, t0))
        a("v_add_u32 v%d, %d, v%d" % (t4, 8 * i, t4))
        a("v_lshlrev_b32 v%d, 13, v%d" % (t4, t4))
        a("v_lshl_add_u32 v%d, v%d, 4, v%d" % (wAOFF + i, t3, t4))
    a("v_lshrrev_b32 v%d, 4, v%d" % (t0, L))
    a("v_and_b32 v%d, 15, v%d" % (t1, L))
    a("v_lshlrev_b32 v%d, 2, v%d" % (t2, t0))
    a("v_xor_b32 v%d, v%d, v%d" % (t1, t1, t2))
    a("s_lshl_b32 s%d, s%d, 3" % (sT0, sWAVE))
    a("v_add_u32 v%d, s%d, v%d" % (t0, sT0, t0))
    a("v_lshlrev_b32 v%d, 10, v%d" % (t0, t0))
    a("v_lshl_add_u32 v%d, v%d, 4, v%d" % (t0, t1, t0))
    a("s_lshl_b32 s%d, s%d, 8" % (sT1, sHP))
    a("v_add_u32 v%d, s%d, v%d" % (wBOFF, sT1, t0))
    a("s_lshl_b32 s%d, s%d, 11" % (sM0A, sWAVE))
    a("s_add_u32 s%d, s%d, 16384" % (sM0B, sM0A))

    def dma2_setup(stage):
        a("s_add_u32 s%d, s%d, %d" % (sT3, sROT, stage))
        a("s_and_b32 s%d, s%d, 15" % (sT3, sT3))
        a("s_lshl_b32 s%d, s%d, 7" % (sAS, sT3))
        a("s_add_u32 s%d, s%d, s%d" % (sAS, sAS, sABASE))
        a("s_lshl_b32 s%d, s%d, 16" % (sT3, sT3))
        a("s_add_u32 s%d, s%d, s%d" % (sT3, sT3, sBBASE))

    def dma2_a(stage, i):
        buf = stage % K2_NB
        a("s_add_u32 m0, s%d, %d" % (sM0A, buf * K2_BUF + i * 1024))
        a("s_nop 0")
        a("buffer_load_dwordx4 v%d, %s, s%d offen lds" % (wAOFF + i, sr(S_A, 4), sAS))

    def dma2_b(stage, j):
        buf = stage % K2_NB
        a("s_add_u32 s%d, s%d, %d" % (sBS, sT3, j * 4096))
        a("s_add_u32 m0, s%d, %d" % (sM0B, buf * K2_BUF + j * 1024))
        a("s_nop 0")
        a("buffer_load_dwordx4 v%d, %s, s%d offen lds" % (wBOFF, sr(S_B, 4), sBS))

    def dma2(stage):
        dma2_setup(stage)
        dma2_a(stage, 0)
        dma2_a(stage, 1)
        dma2_b(stage, 0)
        dma2_b(stage, 1)

    D2 = K2_NB - 1
    log2 = []
    S_D = 48
    a("s_add_u32 s36, s30, 0x%x" % F_WS_OFF)
    a("s_addc_u32 s37, s31, 0")
    make_srd(a, S_D, 36, 16384)
    sG1, sCNT, sNON = 67, 69, 68
    sXCC = 12
    a("s_cmp_lg_u32 s%d, 0" % sWAVE)
    a("s_cbranch_scc1 F_S1_SKIP")
    a("v_readfirstlane_b32 s%d, v%d" % (sNON, vNON))
    a("s_and_b32 s%d, s2, 7" % sT0)
    a("s_lshl_b32 s%d, s%d, 3" % (sG1, sT0))
    a("s_add_u32 s%d, s%d, s%d" % (sG1, sG1, sBG))
    a("s_lshl_b32 s%d, s%d, 7" % (sG1, sG1))
    a("s_cmp_eq_u32 s%d, 0" % sNON)
    a("s_cselect_b32 s%d, s%d, s%d" % (sNON, sNT, sNON))
    a("s_getreg_b32 s%d, hwreg(HW_REG_XCC_ID)" % sXCC)
    a("s_and_b32 s%d, s%d, 7" % (sXCC, sXCC))

    def publish(base):
        a("s_lshl_b32 s%d, s%d, 3" % (sT0, sHP))
        a("s_add_u32 s%d, s%d, s%d" % (sT0, sT0, sG1))
        a("v_mov_b32 v%d, s%d" % (t0, sT0))
        a("v_mov_b32 v%d, s%d" % (t2, sNON))
        a("v_mov_b32 v%d, s%d" % (t3, sXCC))
        a("v_cmp_eq_u32 vcc, 0, v%d" % L)
        a("s_and_saveexec_b64 s[10:11], vcc")
        a("buffer_store_dwordx2 v[%d:%d], v%d, %s, 0 offen offset:%d sc0 sc1" % (t2, t3, t0, sr(S_D, 4), base))
        a("s_mov_b64 exec, s[10:11]")

    def waitall(tag, base):
        a("v_and_b32 v%d, 3, v%d" % (t0, L))
        a("v_lshlrev_b32 v%d, 3, v%d" % (t0, t0))
        a("v_add_u32 v%d, s%d, v%d" % (t0, sG1, t0))
        a("s_mov_b32 s%d, 0" % sCNT)
        a.label("%s_POLL" % tag)
        a("buffer_load_dwordx2 v[%d:%d], v%d, %s, 0 offen offset:%d sc0 sc1" % (t2, t3, t0, sr(S_D, 4), base))
        a("s_waitcnt vmcnt(0)")
        a("v_cmp_ne_u32 vcc, s%d, v%d" % (sNON, t2))
        a("s_nop 3")
        a("s_cmp_eq_u64 vcc, 0")
        a("s_cbranch_scc1 %s_OK" % tag)
        a("s_sleep 2")
        a("s_add_u32 s%d, s%d, 1" % (sCNT, sCNT))
        a("s_cmp_lt_u32 s%d, %d" % (sCNT, SPIN_MAX))
        a("s_cbranch_scc1 %s_POLL" % tag)
        a.label("%s_OK" % tag)

    publish(0)
    a.label("F_S1_SKIP")

    def peer_wait():
        a("s_cmp_lg_u32 s%d, 0" % sWAVE)
        a("s_cbranch_scc1 F_S1_DONE")
        waitall("F_S1A", 0)
        a("v_cmp_ne_u32 vcc, s%d, v%d" % (sXCC, t3))
        a("s_nop 3")
        if "forceslow" not in EXP:
            a("s_cmp_eq_u64 vcc, 0")
            a("s_cbranch_scc1 F_S1_DONE")
        a("buffer_wbl2 sc1")
        a("s_waitcnt vmcnt(0)")
        publish(64)
        waitall("F_S1B", 64)
        a("buffer_inv sc1")
        a("s_waitcnt vmcnt(0)")
        a.label("F_S1_DONE")

    stamp(a, 8)
    NINIT2 = 2
    for s in range(NINIT2):
        dma2(s)
        log2 += [("a", s)] * 2 + [("b", s)] * 2
    if STAMP and "p2diag" in EXP:
        stamp(a, 13)
        a("s_waitcnt vmcnt(14)")
        stamp(a, 2)
        a("s_waitcnt vmcnt(12)")
        stamp(a, 3)
    a("v_and_b32 v%d, 31, v%d" % (t0, L))
    a("v_lshrrev_b32 v%d, 5, v%d" % (t1, L))
    a("v_bfe_u32 v%d, v%d, 1, 3" % (t2, t0))
    a("s_lshl_b32 s%d, s%d, 6" % (sT0, sWM))
    a("v_add_u32 v%d, s%d, v%d" % (t3, sT0, t0))
    a("v_lshlrev_b32 v%d, 7, v%d" % (t3, t3))
    a("s_lshl_b32 s%d, s%d, 2" % (sT1, sG))
    for cc in range(2):
        a("v_add_u32 v%d, s%d, v%d" % (t4, sT1, t1))
        a("v_add_u32 v%d, %d, v%d" % (t4, 2 * cc, t4))
        a("v_xor_b32 v%d, v%d, v%d" % (t4, t4, t2))
        a("v_lshl_add_u32 v%d, v%d, 4, v%d" % (wAR + 2 * cc, t4, t3))
        a("v_add_u32 v%d, 4096, v%d" % (wAR + 2 * cc + 1, wAR + 2 * cc))
    a("v_lshrrev_b32 v%d, 4, v%d" % (t0, L))
    a("v_and_b32 v%d, 1, v%d" % (t1, t0))
    a("v_lshrrev_b32 v%d, 1, v%d" % (t0, t0))
    a("v_bfe_u32 v%d, v%d, 2, 2" % (t2, L))
    a("v_and_b32 v%d, 1, v%d" % (t3, L))
    a("v_bfe_u32 v%d, v%d, 1, 1" % (t4, L))
    a("v_lshl_add_u32 v%d, v%d, 1, v%d" % (t3, t3, t4))
    a("v_lshlrev_b32 v%d, 3, v%d" % (t3, t3))
    a("v_lshl_add_u32 v%d, v%d, 5, v%d" % (t3, t1, t3))
    a("v_lshl_add_u32 v%d, v%d, 3, v%d" % (t4, t0, t2))
    a("s_lshl_b32 s%d, s%d, 5" % (sT0, sG))
    a("v_add_u32 v%d, s%d, v%d" % (t4, sT0, t4))
    a("v_lshl_add_u32 v%d, v%d, 8, v%d" % (t4, t4, t3))
    a("v_add_u32 v%d, 16384, v%d" % (t4, t4))
    a("s_lshl_b32 s%d, s%d, 1" % (sT1, sWN))
    for nt in range(2):
        a("s_add_u32 s%d, s%d, %d" % (sT2, sT1, nt))
        a("v_xor_b32 v%d, s%d, v%d" % (t1, sT2, t2))
        a("v_lshl_add_u32 v%d, v%d, 6, v%d" % (wBR + nt, t1, t4))
    for k in (1, 2):
        for i in range(4):
            a("v_add_u32 v%d, 0x%x, v%d" % (wAR + 4 * k + i, k * 65536, wAR + i))
        for i in range(2):
            a("v_add_u32 v%d, 0x%x, v%d" % (wBR + 2 * k + i, k * 65536, wBR + i))
    for i in range(64):
        a("v_mov_b32 v%d, 0" % (vACC + i))

    def reads2(stage, cc, st):
        buf = stage % K2_NB
        k, bo = buf >> 1, (buf & 1) * K2_BUF
        for mt in range(2):
            a("ds_read_b128 %s, v%d %s" % (vr(wA[st] + 4 * mt, 4), wAR + 4 * k + 2 * cc + mt, ds_off(bo)))
        for nt in range(2):
            for p in range(2):
                a("ds_read_b64_tr_b16 %s, v%d %s" % (vr(wB[st] + 4 * nt + 2 * p, 2), wBR + 2 * k + nt, ds_off(bo + (16 * cc + 4 * p) * 256)))

    def mf(st, mt, nt, w):
        if w is not None:
            a("s_waitcnt lgkmcnt(%d)" % w)
        acc = vACC + 32 * mt + 16 * nt
        a("v_mfma_f32_32x32x16_bf16 %s, %s, %s, %s" % (vr(acc, 16), vr(wB[st] + 4 * nt, 4), vr(wA[st] + 4 * mt, 4), vr(acc, 16)))

    WAITS = int(os.environ.get("WAITS", "2"))
    nx2 = NINIT2
    for s in range(NST):
        if s == WAITS:
            peer_wait()
        idx = max(i for i, t in enumerate(log2) if t in (("a", s), ("b", s)))
        a("s_waitcnt vmcnt(%d)" % (len(log2) - 1 - idx))
        a("s_barrier")
        if s == 0:
            stamp(a, 9)
        reads2(s, 0, 0)
        todo = []
        while (s >= WAITS or nx2 < 4) and nx2 < NST and nx2 <= s + D2 and len(todo) < 2:
            todo.append(nx2)
            nx2 += 1
        ops = []
        for t in todo:
            ops += [[(dma2_setup, (t,)), (dma2_a, (t, 0))], [(dma2_a, (t, 1))], [(dma2_b, (t, 0))], [(dma2_b, (t, 1))]]
            log2 += [("a", t)] * 2 + [("b", t)] * 2
        order = ((0, 0), (1, 0), (0, 1), (1, 1))
        for q in range(4):
            if s > 0:
                mf(1, order[q][0], order[q][1], None)
            k = (len(ops) + 3 - q) // (4 - q) if q < 3 else len(ops)
            for grp in ops[:k]:
                for fn, args in grp:
                    fn(*args)
            ops = ops[k:]
        reads2(s, 1, 1)
        mf(0, 0, 0, 8)
        mf(0, 1, 0, None)
        mf(0, 0, 1, 6)
        mf(0, 1, 1, None)
        a("s_waitcnt lgkmcnt(0)")
    for mt, nt in ((0, 0), (1, 0), (0, 1), (1, 1)):
        mf(1, mt, nt, None)
    stamp(a, 10)
    a("s_barrier")
    RS = 528
    GS = 128 * RS
    a("v_and_b32 v%d, 31, v%d" % (t0, L))
    a("v_lshrrev_b32 v%d, 5, v%d" % (t1, L))
    a("s_lshl_b32 s%d, s%d, 6" % (sT0, sWM))
    a("v_add_u32 v%d, s%d, v%d" % (t0, sT0, t0))
    a("s_movk_i32 s%d, %d" % (sT1, RS))
    a("v_mul_lo_u32 v%d, v%d, s%d" % (t0, t0, sT1))
    a("v_lshl_add_u32 v%d, v%d, 5, v%d" % (t0, t1, t0))
    a("s_mul_i32 s%d, s%d, %d" % (sT0, sG, GS))
    a("s_lshl_b32 s%d, s%d, 8" % (sT1, sWN))
    a("s_add_u32 s%d, s%d, s%d" % (sT0, sT0, sT1))
    a("v_add_u32 v%d, s%d, v%d" % (t0, sT0, t0))
    a("s_nop 3")
    for mt in range(2):
        for nt in range(2):
            for jj in range(2):
                for qq in range(2):
                    a("ds_write_b128 v%d, %s %s" % (t0, vr(vACC + 32 * mt + 16 * nt + 8 * jj + 4 * qq, 4), ds_off(mt * 32 * RS + (nt * 32 + 16 * jj + 4 * qq) * 4)))
        a("s_waitcnt lgkmcnt(4)")
    a("s_waitcnt lgkmcnt(0)")
    a("s_barrier")
    a("v_lshrrev_b32 v%d, 5, v%d" % (t1, L))
    a("v_and_b32 v%d, 31, v%d" % (t2, L))
    a("s_lshl_b32 s%d, s%d, 4" % (sT0, sWAVE))
    a("v_add_u32 v%d, s%d, v%d" % (t3, sT0, t1))
    a("s_movk_i32 s%d, %d" % (sT1, RS))
    a("v_mul_lo_u32 v%d, v%d, s%d" % (t3, t3, sT1))
    a("v_lshl_add_u32 v%d, v%d, 4, v%d" % (t3, t2, t3))
    a("v_add_u32 v%d, 0x%x, v%d" % (t4, GS, t3))

    def rd(i):
        a("ds_read_b128 %s, v%d %s" % (vr(vACC + 4 * i, 4), t3, ds_off(2 * RS * i)))
        a("ds_read_b128 %s, v%d %s" % (vr(vACC + 32 + 4 * i, 4), t4, ds_off(2 * RS * i)))
    PB16 = "pb16" in EXP
    RSH = 10 if PB16 else 11
    PSH = 20 if PB16 else 21
    a("v_lshlrev_b32 v%d, %d, v%d" % (t1, RSH, t1))
    a("v_lshl_add_u32 v%d, v%d, %d, v%d" % (t1, t2, 3 if PB16 else 4, t1))
    a("s_lshl_b32 s%d, s%d, 7" % (sPB, sBG))
    a("s_lshl_b32 s%d, s%d, %d" % (sPB, sPB, RSH))
    a("s_lshl_b32 s%d, s%d, %d" % (sT1, sHP, 8 if PB16 else 9))
    a("s_add_u32 s%d, s%d, s%d" % (sPB, sPB, sT1))
    a("s_lshr_b32 s%d, s%d, 1" % (sT1, sWAVE))
    a("s_cmp_eq_u32 s%d, s%d" % (sT1, sHG))
    a("s_cbranch_scc1 F_P_SKIP")
    for i in range(6):
        rd(i)
    a("s_lshl_b32 s%d, s%d, %d" % (sT0, sT0, RSH))
    a("s_add_u32 s%d, s%d, s%d" % (sT0, sT0, sPB))
    a("s_lshl_b32 s%d, s%d, %d" % (sT1, sHG, PSH))
    a("s_add_u32 s%d, s%d, s%d" % (sT0, sT0, sT1))
    for i in range(8):
        a("s_waitcnt lgkmcnt(%d)" % (10 if i < 2 else 2 * (7 - i)))
        if i < 2:
            rd(6 + i)
        for q in range(4):
            a("v_add_f32 v%d, v%d, v%d" % (vACC + 4 * i + q, vACC + 4 * i + q, vACC + 32 + 4 * i + q))
        a("s_add_u32 s%d, s%d, %d" % (sT1, sT0, i * (2 << RSH)))
        if PB16:
            a("v_cvt_pk_bf16_f32 v%d, v%d, v%d" % (vACC + 4 * i, vACC + 4 * i, vACC + 4 * i + 1))
            a("v_cvt_pk_bf16_f32 v%d, v%d, v%d" % (vACC + 4 * i + 1, vACC + 4 * i + 2, vACC + 4 * i + 3))
            a("buffer_store_dwordx2 %s, v%d, %s, s%d offen sc1" % (vr(vACC + 4 * i, 2), t1, sr(S_P, 4), sT1))
        else:
            a("buffer_store_dwordx4 %s, v%d, %s, s%d offen sc1" % (vr(vACC + 4 * i, 4), t1, sr(S_P, 4), sT1))
    a.label("F_P_SKIP")
    stamp(a, 11)
    a("s_waitcnt vmcnt(0)")
    a("s_barrier")
    stamp(a, 12)
    a("s_cmp_lg_u32 s%d, 0" % sWAVE)
    a("s_cbranch_scc1 F_S2_DONE")
    a("s_lshl_b32 s%d, s%d, 5" % (sG1, sBLK))
    a("s_lshl_b32 s%d, s%d, 2" % (sT0, sBG))
    a("s_add_u32 s%d, s%d, s%d" % (sG1, sG1, sT0))
    a("s_add_u32 s%d, s%d, s%d" % (sG1, sG1, sHP))
    a("s_add_u32 s%d, s%d, 64" % (sG1, sG1))
    a("s_lshl_b32 s%d, s%d, 7" % (sG1, sG1))
    a("s_lshl_b32 s%d, s%d, 3" % (sT0, sHG))
    a("s_add_u32 s%d, s%d, s%d" % (sT0, sT0, sG1))
    a("v_mov_b32 v%d, s%d" % (t0, sT0))
    a("v_mov_b32 v%d, s%d" % (t2, sNON))
    a("v_mov_b32 v%d, s%d" % (t3, sXCC))
    a("v_cmp_eq_u32 vcc, 0, v%d" % L)
    a("s_and_saveexec_b64 s[10:11], vcc")
    a("buffer_store_dwordx2 v[%d:%d], v%d, %s, 0 offen sc0 sc1" % (t2, t3, t0, sr(S_D, 4)))
    a("s_mov_b64 exec, s[10:11]")
    waitall("F_S2A", 0)
    a.label("F_S2_DONE")
    a("s_barrier")
    stamp(a, 13)
    S_OUT = 40
    make_srd(a, S_OUT, 26, 2 << 20)
    a("s_lshl_b32 s%d, s%d, 5" % (sT0, sHG))
    a("s_lshl_b32 s%d, s%d, 2" % (sT1, sWAVE))
    a("s_add_u32 s%d, s%d, s%d" % (sT0, sT0, sT1))
    a("v_lshrrev_b32 v%d, 5, v%d" % (t2, L))
    a("v_and_b32 v%d, 31, v%d" % (t3, L))
    a("v_add_u32 v%d, s%d, v%d" % (t4, sT0, t2))
    a("s_movk_i32 s%d, %d" % (sT1, RS))
    a("v_mul_lo_u32 v%d, v%d, s%d" % (t4, t4, sT1))
    a("v_lshl_add_u32 v%d, v%d, 4, v%d" % (t4, t3, t4))
    a("v_add_u32 v%d, 0x%x, v%d" % (t0, GS, t4))
    a("s_lshl_b32 s%d, s%d, %d" % (sT1, sT0, RSH))
    a("s_add_u32 s%d, s%d, s%d" % (sT1, sT1, sPB))
    for d in range(1, 4):
        a("s_add_u32 s%d, s%d, %d" % (sT2, sHG, d))
        a("s_and_b32 s%d, s%d, 3" % (sT2, sT2))
        a("s_lshl_b32 s%d, s%d, %d" % (sT2, sT2, PSH))
        a("s_add_u32 s%d, s%d, s%d" % (sT2, sT2, sT1))
        a("s_add_u32 s%d, s%d, %d" % (sT3, sT2, 2 << RSH))
        if PB16:
            a("buffer_load_dwordx2 %s, v%d, %s, s%d offen sc1" % (vr(44 + 4 * (d - 1), 2), t1, sr(S_P, 4), sT2))
            a("buffer_load_dwordx2 %s, v%d, %s, s%d offen sc1" % (vr(44 + 4 * (d - 1) + 2, 2), t1, sr(S_P, 4), sT3))
        else:
            a("buffer_load_dwordx4 %s, v%d, %s, s%d offen sc1" % (vr(16 + 8 * (d - 1), 4), t1, sr(S_P, 4), sT2))
            a("buffer_load_dwordx4 %s, v%d, %s, s%d offen sc1" % (vr(16 + 8 * (d - 1) + 4, 4), t1, sr(S_P, 4), sT3))
    for i in range(2):
        a("ds_read_b128 %s, v%d %s" % (vr(4 * i, 4), t4, ds_off(2 * RS * i)))
        a("ds_read_b128 %s, v%d %s" % (vr(8 + 4 * i, 4), t0, ds_off(2 * RS * i)))
    a("v_lshlrev_b32 v%d, 11, v%d" % (t2, t2))
    a("v_lshl_add_u32 v%d, v%d, 3, v%d" % (t2, t3, t2))
    a("s_lshl_b32 s%d, s%d, 7" % (sT1, sBG))
    a("s_add_u32 s%d, s%d, s%d" % (sT1, sT1, sT0))
    a("s_lshl_b32 s%d, s%d, 11" % (sT1, sT1))
    a("s_lshl_b32 s%d, s%d, 10" % (sT2, sBLK))
    a("s_add_u32 s%d, s%d, s%d" % (sT1, sT1, sT2))
    a("s_lshl_b32 s%d, s%d, 8" % (sT2, sHP))
    a("s_add_u32 s%d, s%d, s%d" % (sT1, sT1, sT2))
    a("s_add_u32 s%d, s%d, 4096" % (sT2, sT1))
    a("s_waitcnt lgkmcnt(0)")
    for q in range(8):
        a("v_add_f32 v%d, v%d, v%d" % (q, q, 8 + q))
    a("s_waitcnt vmcnt(0)")
    if PB16:
        for d in range(3):
            for q in range(4):
                a("v_lshlrev_b32 v%d, 16, v%d" % (16 + 8 * d + 2 * q, 44 + 4 * d + q))
                a("v_and_b32 v%d, 0xffff0000, v%d" % (16 + 8 * d + 2 * q + 1, 44 + 4 * d + q))
    for q in range(8):
        a("v_add_f32 v%d, v%d, v%d" % (16 + q, 16 + q, 24 + q))
        a("v_add_f32 v%d, v%d, v%d" % (q, q, 32 + q))
    for q in range(8):
        a("v_add_f32 v%d, v%d, v%d" % (q, q, 16 + q))
    for q in range(4):
        a("v_cvt_pk_bf16_f32 v%d, v%d, v%d" % (40 + q, 2 * q, 2 * q + 1))
    a("buffer_store_dwordx2 v[40:41], v%d, %s, s%d offen" % (t2, sr(S_OUT, 4), sT1))
    a("buffer_store_dwordx2 v[42:43], v%d, %s, s%d offen" % (t2, sr(S_OUT, 4), sT2))
    if STAMP:
        a("s_waitcnt vmcnt(0)")
        stamp(a, 2)
        a("s_memrealtime s[98:99]")
        a("s_waitcnt lgkmcnt(0)")
        a("s_mov_b32 s97, s98")
        stamp_dump(a, 0, 40, vTID)
    if "diag" in EXP:
        a("s_waitcnt vmcnt(0)")
        a("s_memrealtime s[98:99]")
        a("s_waitcnt lgkmcnt(0)")
        a("s_add_u32 s36, s30, 0x%x" % (60 << 20))
        a("s_addc_u32 s37, s31, 0")
        make_srd(a, 40, 36, 65536)
        a("s_lshl_b32 s3, s2, 3")
        a("v_mov_b32 v0, s3")
        a("v_mov_b32 v2, s96")
        a("v_mov_b32 v3, s98")
        a("s_cmp_lg_u32 s%d, 0" % sWAVE)
        a("s_cbranch_scc1 F_DONE")
        a("buffer_store_dwordx2 v[2:3], v0, s[40:43], 0 offen")
    if "diag2" in EXP:
        a("s_waitcnt vmcnt(0)")
        rt(a, 6)
        a("s_cmp_lg_u32 s%d, 0" % sWAVE)
        a("s_cbranch_scc1 F_DONE")
        a("s_cmp_lg_u32 s2, 0")
        a("s_cbranch_scc1 F_DONE")
        make_srd(a, 40, 28, 256)
        a("v_mov_b32 v0, 32")
        for i in range(7):
            a("v_mov_b32 v%d, s%d" % (2 + i, 88 + i))
        a("v_cmp_eq_u32 vcc, 0, v%d" % L)
        a("s_and_saveexec_b64 s[10:11], vcc")
        a("buffer_store_dwordx4 v[2:5], v0, s[40:43], 0 offen")
        a("buffer_store_dwordx4 v[6:9], v0, s[40:43], 0 offen offset:16")
    a.label("F_DONE")
    a("s_endpgm")
    return kernel_desc(name, NV, 100)


def gen_k3(a):
    name = "k3_kernel"
    kernel_begin(a, name)
    a("s_cmp_ge_u32 s2, %d" % (0 if "k3empty" in EXP else 256))
    a("s_cbranch_scc1 K3_DONE")
    if "diag" in EXP:
        a("s_memrealtime s[36:37]")
    a("s_load_dwordx2 s[4:5], s[0:1], 80")
    a("s_load_dwordx2 s[6:7], s[0:1], 96")
    a("s_lshl_b32 s3, s2, 8")
    a("v_add_u32 v1, s3, v0")
    a("s_waitcnt lgkmcnt(0)")
    a("s_add_u32 s6, s6, 0x%x" % P_WS_OFF)
    a("s_addc_u32 s7, s7, 0")
    make_srd(a, 8, 6, 16 << 20)
    make_srd(a, 12, 4, 2 << 20)
    a("v_lshlrev_b32 v2, 4, v1")
    for i in range(4):
        blk = i >> 1
        for ks in range(4):
            a("s_mov_b32 s%d, 0x%x" % (16 + 4 * i + ks, blk * (8 << 20) + ks * (2 << 20) + (i & 1) * (1 << 20)))
    for i in range(4):
        for ks in range(4):
            a("buffer_load_dwordx4 %s, v2, s[8:11], s%d offen" % (vr(8 + 16 * i + 4 * ks, 4), 16 + 4 * i + ks))
    a("v_lshrrev_b32 v3, 7, v1")
    a("v_lshlrev_b32 v3, 11, v3")
    a("v_and_b32 v4, 127, v1")
    a("v_lshl_add_u32 v3, v4, 3, v3")
    for i in range(4):
        a("s_waitcnt vmcnt(%d)" % (12 - 4 * i))
        b = 8 + 16 * i
        for q in range(4):
            a("v_add_f32 v%d, v%d, v%d" % (b + q, b + q, b + 4 + q))
            a("v_add_f32 v%d, v%d, v%d" % (b + 8 + q, b + 8 + q, b + 12 + q))
        for q in range(4):
            a("v_add_f32 v%d, v%d, v%d" % (b + q, b + q, b + 8 + q))
        a("v_cvt_pk_bf16_f32 v%d, v%d, v%d" % (b, b, b + 1))
        a("v_cvt_pk_bf16_f32 v%d, v%d, v%d" % (b + 1, b + 2, b + 3))
        a("s_mov_b32 s16, 0x%x" % ((i >> 1) * 1024 + (i & 1) * 512 * 2048))
        a("buffer_store_dwordx2 %s, v3, s[12:15], s16 offen" % vr(b, 2))
    if "diag" in EXP:
        a("s_cmp_lg_u32 s2, 0")
        a("s_cbranch_scc1 K3_DONE")
        a("s_waitcnt vmcnt(0)")
        a("s_memrealtime s[38:39]")
        a("s_load_dwordx2 s[4:5], s[0:1], 88")
        a("s_load_dwordx2 s[6:7], s[0:1], 96")
        a("s_waitcnt lgkmcnt(0)")
        a("s_add_u32 s6, s6, 0x%x" % (60 << 20))
        a("s_addc_u32 s7, s7, 0")
        make_srd(a, 8, 6, 65536)
        make_srd(a, 12, 4, 256)
        a("v_lshlrev_b32 v1, 3, v0")
        a("buffer_load_dwordx2 v[4:5], v1, s[8:11], 0 offen")
        a("s_waitcnt vmcnt(0)")
        a("v_cmp_gt_u32 vcc, 6, v0")
        a("s_and_saveexec_b64 s[20:21], vcc")
        a("buffer_store_dwordx2 v[4:5], v1, s[12:15], 0 offen")
        a("s_mov_b64 exec, s[20:21]")
        a("v_mov_b32 v6, s36")
        a("v_mov_b32 v7, s38")
        a("v_mov_b32 v1, 48")
        a("v_cmp_eq_u32 vcc, 0, v0")
        a("s_and_saveexec_b64 s[20:21], vcc")
        a("buffer_store_dwordx2 v[6:7], v1, s[12:15], 0 offen")
    a.label("K3_DONE")
    a("s_endpgm")
    return kernel_desc(name, 80, 40)


def main():
    a = Asm()
    hdr = HEADER + "; @launch grid=(256,1,1) block=(512,1,1) lds=%d\n" % F_LDS
    a.raw('.amdgcn_target "amdgcn-amd-amdhsa--gfx950"')
    a.raw(".text")
    descs = [gen_fused(a)]
    a.raw('.section .rodata,"a"')
    for d in descs:
        a.raw(".p2align 6")
        a.raw(d)
    open(OUT, "w").write(hdr + a.text())


if __name__ == "__main__":
    main()
```

```python
import sys, os
EXP = os.environ.get("EXP", "")

NAME = "concat_heads__gqa_block_cached__mha_block_cached__near_ridge"
OUT = os.environ.get("OUT", "cdna_kernels/%s.s" % NAME)

HEADER = """; Kernarg layout for this problem (104 bytes, ptrs only, base s[0:1]):
"""


class Asm:
    def __init__(self):
        self.lines = []

    def __call__(self, s):
        self.lines.append("    " + s)

    def label(self, s):
        self.lines.append(s + ":")

    def raw(self, s):
        self.lines.append(s)

    def text(self):
        return "\n".join(self.lines) + "\n"


def vr(base, n):
    return "v[%d:%d]" % (base, base + n - 1)


def sr(base, n):
    return "s[%d:%d]" % (base, base + n - 1)


def buf_off(o):
    assert 0 <= o < 4096, o
    return "offset:%d" % o


def ds_off(o):
    assert 0 <= o < 65536, o
    return "offset:%d" % o


def kernel_begin(a, name):
    a.raw(".globl %s" % name)
    a.raw(".p2align 8")
    a.raw(".type %s,@function" % name)
    a.label(name)


def kernel_desc(name, vgpr, sgpr, accum=None):
    if accum is None:
        accum = (vgpr + 3) // 4 * 4
    return """.amdhsa_kernel %s
  .amdhsa_next_free_vgpr %d
  .amdhsa_next_free_sgpr %d
  .amdhsa_accum_offset %d
  .amdhsa_group_segment_fixed_size 0
  .amdhsa_kernarg_size 104
  .amdhsa_user_sgpr_count 2
  .amdhsa_user_sgpr_kernarg_segment_ptr 1
  .amdhsa_system_sgpr_workgroup_id_x 1
.end_amdhsa_kernel
""" % (name, vgpr, sgpr, accum)


def make_srd(a, d, base_lo, size):
    a("s_mov_b32 s%d, s%d" % (d, base_lo))
    a("s_and_b32 s%d, s%d, 0xffff" % (d + 1, base_lo + 1))
    a("s_mov_b32 s%d, 0x%x" % (d + 2, size))
    a("s_mov_b32 s%d, 0x00020000" % (d + 3))


STAMP = "stamp" in EXP
KVMOD = "" if "kvplain" in EXP else " sc0 sc1 nt"
WMOD = " nt" if "wnt" in EXP else ""
DMOD = " nt" if "dnt" in EXP else ""
NSTAMP = 16


def rt(a, idx):
    if "diag2" in EXP:
        a("s_memrealtime s[98:99]")
        a("s_waitcnt lgkmcnt(0)")
        a("s_mov_b32 s%d, s98" % (88 + idx))


def stamp(a, idx):
    m = {0: 0, 2: 1, 4: 2, 7: 3, 10: 4, 13: 5}
    if "diag2" in EXP and idx in m:
        rt(a, m[idx])
    if STAMP:
        assert idx < NSTAMP
        a("s_memtime s[98:99]")
        a("s_waitcnt lgkmcnt(0)")
        a("s_mov_b32 s%d, s98" % (82 + idx))


def stamp_init(a, vtid):
    if STAMP:
        a("v_mov_b32 v%d, v0" % vtid)
        for i in range(NSTAMP):
            a("s_mov_b32 s%d, 0" % (82 + i))


def stamp_dump(a, kidx, vtmp, vtid):
    if not STAMP:
        return
    a("s_load_dwordx2 s[4:5], s[0:1], 96")
    a("s_waitcnt lgkmcnt(0)")
    a("s_add_u32 s4, s4, 0x%x" % ((64 << 20) + kidx * 262144))
    a("s_addc_u32 s5, s5, 0")
    a("s_and_b32 s5, s5, 0xffff")
    a("s_mov_b32 s6, 262144")
    a("s_mov_b32 s7, 0x00020000")
    a("s_lshl_b32 s3, s2, 10")
    a("v_lshrrev_b32 v%d, 6, v%d" % (vtmp, vtid))
    a("v_lshlrev_b32 v%d, 6, v%d" % (vtmp, vtmp))
    a("v_add_u32 v%d, s3, v%d" % (vtmp, vtmp))
    a("v_and_b32 v%d, 63, v%d" % (vtid, vtid))
    a("v_cmp_eq_u32 vcc, 0, v%d" % vtid)
    a("s_and_saveexec_b64 s[8:9], vcc")
    for i in range(NSTAMP):
        a("v_mov_b32 v%d, s%d" % (vtmp + 1, 82 + i))
        a("buffer_store_dword v%d, v%d, s[4:7], 0 offen offset:%d" % (vtmp + 1, vtmp, 4 * i))
        a("s_nop 1")
    a("s_mov_b64 exec, s[8:9]")


O_WS_OFF = 0
P_WS_OFF = 16 << 20

K1_BUF = 24576
K1_NB = 6
K2_BUF = 32768
K2_NB = 5
F_LDS = 163840
SPIN_MAX = 200000
F_WS_OFF = 48 << 20
WOPF = [5, 7, 9, 11]


def gen_fused(a):
    name = NAME + "_kernel"
    kernel_begin(a, name)
    S_X, S_W, S_K, S_V, S_O = 40, 44, 48, 52, 56
    sWAVE, sBL, sHL, sBG, sH0, sB, sH = 60, 61, 62, 63, 64, 65, 66
    sKB, sKB2, sOB = 67, 68, 69
    sT0, sT1, sT2, sT3 = 70, 71, 72, 73
    sM0X, sM0W = 74, 75
    sXS, sWS = 76, 77
    sSCALE, sLOG2E = 78, 79
    sBLK, sHG, sHP = 80, 81, 39
    vACC = 0
    vKR = 64
    vVR = 96
    vA = [128, 144]
    vB = [160, 164]
    vXR = 168
    vWR = 174
    vVOFF = 187
    vXOFF = 188
    vWOFF = 189
    vT = 190
    vLANE = 200
    vTID = 201
    vJ = 204
    NV = 216
    L = vLANE
    t0, t1, t2, t3, t4 = vT, vT + 1, vT + 2, vT + 3, vT + 4
    NST = 16

    a("s_cmp_ge_u32 s2, 256")
    a("s_cbranch_scc1 F_DONE")
    stamp_init(a, vTID)
    stamp(a, 0)
    if "diag" in EXP:
        a("s_memrealtime s[98:99]")
        a("s_waitcnt lgkmcnt(0)")
        a("s_mov_b32 s96, s98")
    if STAMP:
        a("s_memrealtime s[98:99]")
        a("s_waitcnt lgkmcnt(0)")
        a("s_mov_b32 s96, s98")
    a("s_load_dwordx16 s[16:31], s[0:1], 0")
    a("s_load_dwordx8 s[32:39], s[0:1], 64")
    a("s_load_dwordx2 s[14:15], s[0:1], 96")
    a("v_lshrrev_b32 v%d, 6, v0" % vT)
    a("v_and_b32 v%d, 63, v0" % vLANE)
    a("s_nop 0")
    a("v_readfirstlane_b32 s%d, v%d" % (sWAVE, vT))
    if "staticid" not in EXP:
        a("s_load_dwordx2 s[10:11], s[0:1], 88")
        a("s_getreg_b32 s12, hwreg(HW_REG_XCC_ID)")
        a("s_and_b32 s12, s12, 7")
        a("s_cmp_lg_u32 s%d, 0" % sWAVE)
        a("s_cbranch_scc1 F_TK_WAIT")
        a("s_waitcnt lgkmcnt(0)")
        make_srd(a, 4, 10, 256)
        a("s_lshl_b32 s13, s12, 2")
        a("v_mov_b32 v%d, s13" % (vT + 1))
        a("v_mov_b32 v%d, 1" % (vT + 2))
        a("v_mov_b32 v%d, 0" % (vT + 3))
        a("v_cmp_eq_u32 vcc, 0, v%d" % vLANE)
        a("s_and_saveexec_b64 s[8:9], vcc")
        a("buffer_atomic_add v%d, v%d, s[4:7], 0 offen sc0" % (vT + 2, vT + 1))
        a("s_waitcnt vmcnt(0)")
        a("ds_write_b32 v%d, v%d" % (vT + 3, vT + 2))
        a("s_mov_b64 exec, s[8:9]")
        a("s_waitcnt lgkmcnt(0)")
        a("s_branch F_TK_JOIN")
        a.label("F_TK_WAIT")
        if "nopf0" not in EXP:
            a("s_waitcnt lgkmcnt(0)")
            a("s_cmp_lt_u32 s12, 4")
            a("s_cselect_b32 s4, s16, s26")
            a("s_cselect_b32 s5, s17, s27")
            a("s_cselect_b32 s8, s22, s32")
            a("s_cselect_b32 s9, s23, s33")
            a("s_and_b32 s5, s5, 0xffff")
            a("s_mov_b32 s6, 0x%x" % (1 << 20))
            a("s_mov_b32 s7, 0x00020000")
            a("s_and_b32 s9, s9, 0xffff")
            a("s_mov_b32 s10, 0x%x" % (4 << 20))
            a("s_mov_b32 s11, 0x00020000")
            a("s_lshr_b32 s13, s2, 3")
            a("v_lshlrev_b32 v%d, 4, v%d" % (vT + 1, vLANE))
            a("s_lshl_b32 s%d, s13, 5" % sT0)
            a("s_lshl_b32 s%d, s%d, 2" % (sT1, sWAVE))
            a("s_add_u32 s%d, s%d, s%d" % (sT0, sT0, sT1))
            a("s_lshl_b32 s%d, s%d, 10" % (sT0, sT0))
            for i in range(4):
                a("buffer_load_dwordx4 %s, v%d, s[4:7], s%d offen %s" % (vr(vJ + 4 * (i & 1), 4), vT + 1, sT0, buf_off(i * 1024)))
            a("s_lshl_b32 s%d, s13, 4" % sT0)
            a("s_lshl_b32 s%d, s%d, 1" % (sT1, sWAVE))
            a("s_add_u32 s%d, s%d, s%d" % (sT0, sT0, sT1))
            a("s_lshl_b32 s%d, s%d, 13" % (sT0, sT0))
            a("s_and_b32 s%d, s12, 3" % sT1)
            a("s_lshl_b32 s%d, s%d, 11" % (sT1, sT1))
            a("s_add_u32 s%d, s%d, s%d" % (sT0, sT0, sT1))
            a("s_add_u32 s%d, s%d, 8192" % (sT1, sT0))
            for i in range(4):
                a("buffer_load_dwordx4 %s, v%d, s[8:11], s%d offen %s" % (vr(vJ + 4 * (i & 1), 4), vT + 1, sT0 if i < 2 else sT1, buf_off((i & 1) * 1024)))
        a.label("F_TK_JOIN")
        a("s_barrier")
        a("v_mov_b32 v%d, 0" % (vT + 3))
        a("ds_read_b32 v%d, v%d" % (vT + 2, vT + 3))
        a("s_waitcnt lgkmcnt(0)")
        a("v_readfirstlane_b32 s13, v%d" % (vT + 2))
        a("s_nop 3")
        a("s_barrier")
        a("s_cmp_ge_u32 s13, 32")
        a("s_cbranch_scc1 F_DONE")
        a("s_lshl_b32 s13, s13, 3")
        a("s_add_u32 s2, s13, s12")
    a("s_and_b32 s%d, s2, 7" % sT0)
    a("s_lshr_b32 s%d, s2, 3" % sT1)
    a("s_lshr_b32 s%d, s%d, 2" % (sBG, sT1))
    a("s_and_b32 s%d, s%d, 3" % (sT1, sT1))
    a("s_and_b32 s%d, s%d, 3" % (sHG, sT0))
    a("s_lshl_b32 s%d, s%d, 3" % (sH0, sHG))
    a("s_lshl_b32 s%d, s%d, 1" % (sT2, sT1))
    a("s_add_u32 s%d, s%d, s%d" % (sH0, sH0, sT2))
    a("s_lshr_b32 s%d, s%d, 2" % (sBLK, sT0))
    a("s_mov_b32 s13, s%d" % sT1)
    a("v_lshrrev_b32 v%d, 2, v%d" % (t0, L))
    a("v_and_b32 v%d, 3, v%d" % (t1, L))
    a("v_lshrrev_b32 v%d, 4, v%d" % (t2, L))
    a("v_xor_b32 v%d, v%d, v%d" % (t1, t1, t2))
    a("s_lshl_b32 s%d, s%d, 7" % (sT0, sBG))
    a("s_lshl_b32 s%d, s%d, 4" % (sT1, sWAVE))
    a("s_add_u32 s%d, s%d, s%d" % (sT0, sT0, sT1))
    a("v_add_u32 v%d, s%d, v%d" % (t0, sT0, t0))
    a("v_lshlrev_b32 v%d, 10, v%d" % (t0, t0))
    a("v_lshl_add_u32 v%d, v%d, 4, v%d" % (vXOFF, t1, t0))
    a("s_lshl_b32 s%d, s%d, 10" % (sM0X, sWAVE))
    a("v_lshrrev_b32 v%d, 4, v%d" % (t0, L))
    a("v_and_b32 v%d, 15, v%d" % (t1, L))
    a("v_lshlrev_b32 v%d, 2, v%d" % (t2, t0))
    a("v_xor_b32 v%d, v%d, v%d" % (t1, t1, t2))
    a("s_lshr_b32 s%d, s%d, 1" % (sT0, sWAVE))
    a("s_lshl_b32 s%d, s%d, 3" % (sT0, sT0))
    a("v_add_u32 v%d, s%d, v%d" % (t0, sT0, t0))
    a("v_lshlrev_b32 v%d, 13, v%d" % (t0, t0))
    a("v_lshl_add_u32 v%d, v%d, 4, v%d" % (t0, t1, t0))
    a("s_and_b32 s%d, s%d, 1" % (sT1, sWAVE))
    a("s_add_u32 s%d, s%d, s%d" % (sT2, sH0, sT1))
    a("s_lshl_b32 s%d, s%d, 8" % (sT2, sT2))
    a("v_add_u32 v%d, s%d, v%d" % (vWOFF, sT2, t0))
    a("s_lshl_b32 s%d, s%d, 13" % (sM0W, sT1))
    a("s_lshl_b32 s%d, s%d, 8" % (sT0, sT0))
    a("s_add_u32 s%d, s%d, s%d" % (sM0W, sM0W, sT0))
    a("s_add_u32 s%d, s%d, 8192" % (sM0W, sM0W))
    a("s_waitcnt lgkmcnt(0)")
    a("s_cmp_eq_u32 s%d, 0" % sBLK)
    for i in range(5):
        a("s_cselect_b32 s%d, s%d, s%d" % (16 + 2 * i, 16 + 2 * i, 26 + 2 * i))
        a("s_cselect_b32 s%d, s%d, s%d" % (17 + 2 * i, 17 + 2 * i, 27 + 2 * i))
    a("s_mov_b32 s26, s36")
    a("s_mov_b32 s27, s37")
    a("s_mov_b32 s28, s38")
    a("s_mov_b32 s29, s39")
    a("s_mov_b32 s30, s14")
    a("s_mov_b32 s31, s15")
    a("s_mov_b32 s%d, s13" % sHP)
    make_srd(a, S_X, 16, 1 << 20)
    make_srd(a, S_W, 22, 4 << 20)
    vNON = 212
    sNT = 8

    def dma_x(stage):
        buf = stage % K1_NB
        a("s_mov_b32 s%d, %d" % (sXS, stage * 64))
        a("s_add_u32 m0, s%d, %d" % (sM0X, buf * K1_BUF))
        a("s_nop 0")
        a("buffer_load_dwordx4 v%d, %s, s%d offen%s lds" % (vXOFF, sr(S_X, 4), sXS, DMOD))

    def dma_w(stage, j):
        buf = stage % K1_NB
        a("s_mov_b32 s%d, %d" % (sWS, stage * 262144 + j * 32768))
        a("s_add_u32 m0, s%d, %d" % (sM0W, buf * K1_BUF + j * 1024))
        a("s_nop 0")
        a("buffer_load_dwordx4 v%d, %s, s%d offen%s lds" % (vWOFF, sr(S_W, 4), sWS, DMOD))

    NINIT = int(os.environ.get('NINIT', '4'))
    for s in range(NINIT):
        dma_x(s)
        dma_w(s, 0)
        dma_w(s, 1)
    make_srd(a, S_K, 18, 8 << 20)
    make_srd(a, S_V, 20, 8 << 20)
    a("s_lshl_b32 s%d, s%d, 23" % (sT0, sBLK))
    a("s_add_u32 s36, s30, s%d" % sT0)
    a("s_addc_u32 s37, s31, 0")
    make_srd(a, S_O, 36, 8 << 20)
    a("s_lshr_b32 s%d, s%d, 1" % (sBL, sWAVE))
    a("s_and_b32 s%d, s%d, 1" % (sHL, sWAVE))
    a("s_lshl_b32 s%d, s%d, 2" % (sB, sBG))
    a("s_add_u32 s%d, s%d, s%d" % (sB, sB, sBL))
    a("s_add_u32 s%d, s%d, s%d" % (sH, sH0, sHL))
    a("s_mov_b32 s%d, 0x3db504f3" % sSCALE)
    a("s_mov_b32 s%d, 0x3fb8aa3b" % sLOG2E)
    a("v_and_b32 v%d, 31, v%d" % (t0, L))
    a("v_lshrrev_b32 v%d, 5, v%d" % (t1, L))
    a("v_lshlrev_b32 v%d, 4, v%d" % (vVOFF, L))
    a("s_lshl_b32 s%d, s%d, 5" % (sKB, sB))
    a("s_add_u32 s%d, s%d, s%d" % (sKB, sKB, sH))
    a("s_lshl_b32 s%d, s%d, 13" % (sKB, sKB))
    a("s_add_u32 s%d, s%d, 4096" % (sKB2, sKB))

    def kv_load(idx):
        if idx < 8:
            a("buffer_load_dwordx4 %s, v%d, %s, s%d offen %s" % (vr(vKR + 4 * idx, 4), vVOFF, sr(S_K, 4), sKB if idx < 4 else sKB2, buf_off(1024 * (idx & 3))) + KVMOD)
        else:
            j = idx - 8
            a("buffer_load_dwordx4 %s, v%d, %s, s%d offen %s" % (vr(vVR + 4 * j, 4), vVOFF, sr(S_V, 4), sKB if j < 4 else sKB2, buf_off(1024 * (j & 3))) + KVMOD)

    a("v_bfe_u32 v%d, v%d, 2, 2" % (t2, t0))
    a("s_lshl_b32 s%d, s%d, 5" % (sT0, sBL))
    a("v_add_u32 v%d, s%d, v%d" % (t3, sT0, t0))
    a("v_lshlrev_b32 v%d, 6, v%d" % (t3, t3))
    for c in range(2):
        a("v_add_u32 v%d, %d, v%d" % (t4, 2 * c, t1))
        a("v_xor_b32 v%d, v%d, v%d" % (t4, t4, t2))
        a("v_lshl_add_u32 v%d, v%d, 4, v%d" % (vXR + c, t4, t3))
        for k in (1, 2):
            a("v_add_u32 v%d, %d, v%d" % (vXR + 2 * k + c, 2 * k * K1_BUF, vXR + c))
    a("v_lshrrev_b32 v%d, 4, v%d" % (t0, L))
    a("v_and_b32 v%d, 1, v%d" % (t1, t0))
    a("v_lshrrev_b32 v%d, 1, v%d" % (t0, t0))
    a("v_bfe_u32 v%d, v%d, 2, 2" % (t2, L))
    a("v_and_b32 v%d, 1, v%d" % (t3, L))
    a("v_bfe_u32 v%d, v%d, 1, 1" % (t4, L))
    a("v_lshl_add_u32 v%d, v%d, 1, v%d" % (t3, t3, t4))
    a("v_lshlrev_b32 v%d, 3, v%d" % (t3, t3))
    a("v_lshl_add_u32 v%d, v%d, 5, v%d" % (t3, t1, t3))
    a("v_lshl_add_u32 v%d, v%d, 3, v%d" % (t4, t0, t2))
    a("v_lshl_add_u32 v%d, v%d, 8, v%d" % (t4, t4, t3))
    a("s_lshl_b32 s%d, s%d, 13" % (sT0, sHL))
    a("s_add_u32 s%d, s%d, 8192" % (sT0, sT0))
    a("v_add_u32 v%d, s%d, v%d" % (t4, sT0, t4))
    for T in range(4):
        a("v_xor_b32 v%d, %d, v%d" % (t1, T, t2))
        a("v_lshl_add_u32 v%d, v%d, 6, v%d" % (vWR + T, t1, t4))
        for k in (1, 2):
            a("v_add_u32 v%d, %d, v%d" % (vWR + 4 * k + T, 2 * k * K1_BUF, vWR + T))
    for i in range(64):
        a("v_mov_b32 v%d, 0" % (vACC + i))

    def reads(stage, c, st):
        buf = stage % K1_NB
        third, bo = buf >> 1, (buf & 1) * K1_BUF
        a("ds_read_b128 %s, v%d %s" % (vr(vB[st], 4), vXR + 2 * third + c, ds_off(bo)))
        for T in range(4):
            for p in range(2):
                a("ds_read_b64_tr_b16 %s, v%d %s" % (vr(vA[st] + 4 * T + 2 * p, 2), vWR + 4 * third + T, ds_off(bo + (16 * c + 4 * p) * 256)))

    def mfma1(st, T, w):
        if w is not None:
            a("s_waitcnt lgkmcnt(%d)" % w)
        a("v_mfma_f32_32x32x16_bf16 %s, %s, %s, %s" % (vr(vACC + 16 * T, 16), vr(vA[st] + 4 * T, 4), vr(vB[st], 4), vr(vACC + 16 * T, 16)))

    make_srd(a, 4, 24, 4 << 20)
    a("s_lshr_b32 s%d, s2, 3" % sT0)
    a("s_lshl_b32 s%d, s%d, 5" % (sT0, sT0))
    a("s_lshl_b32 s%d, s%d, 2" % (sT1, sWAVE))
    a("s_add_u32 s%d, s%d, s%d" % (sT0, sT0, sT1))
    a("s_lshl_b32 s%d, s%d, 10" % (sT1, sHG))
    a("s_add_u32 s%d, s%d, s%d" % (sT0, sT0, sT1))
    a("s_lshl_b32 s9, s%d, 10" % sT0)
    stamp(a, 1)
    log = []
    for s in range(NINIT):
        log += [("d", s)] * 3
    D = K1_NB - 1
    nxt = NINIT
    for s in range(NST):
        idx = max([i for i, t in enumerate(log) if t == ("d", s)], default=-1)
        n = len(log) - 1 - idx
        a("s_waitcnt vmcnt(%d)" % min(n, 63))
        a("s_barrier")
        if s in (0, 8):
            stamp(a, {0: 2, 8: 3}[s])
        reads(s, 0, 0)
        todo = []
        while nxt < NST and nxt <= s + D and len(todo) < 2:
            todo.append(nxt)
            nxt += 1
        ops = []
        for t in todo:
            ops += [(dma_x, (t,)), (dma_w, (t, 0)), (dma_w, (t, 1))]
            log += [("d", t)] * 3
        if s > 0:
            for T in range(4):
                mfma1(1, T, None)
                k = (len(ops) + 3 - T) // (4 - T) if T < 3 else len(ops)
                for f, args in ops[:k]:
                    f(*args)
                ops = ops[k:]
        else:
            for f, args in ops:
                f(*args)
        a("s_waitcnt lgkmcnt(6)")
        reads(s, 1, 1)
        mfma1(0, 0, 15)
        if "kv2" in EXP:
            kvs = [2 * s, 2 * s + 1] if s < 8 else []
        elif "kv12" in EXP:
            kvs = ([2 * s, 2 * s + 1] if s < 4 else [s + 4]) if s < 12 else []
        else:
            kvs = [s]
        for q in kvs:
            kv_load(q)
            log.append(("kv", s))
        if s == 10:
            a("s_cmp_lg_u32 s%d, 0" % sWAVE)
            a("s_cbranch_scc1 F_NON_SKIP")
            make_srd(a, 12, 28, 256)
            a("s_memrealtime s[10:11]")
            a("s_waitcnt lgkmcnt(0)")
            a("s_or_b32 s%d, s10, 1" % sNT)
            a("v_mov_b32 v%d, s%d" % (vNON, sNT))
            a("v_mov_b32 v%d, 0" % (vNON + 1))
            a("v_mov_b32 v%d, 128" % (vNON + 2))
            a("v_cmp_eq_u32 vcc, 0, v%d" % L)
            a("s_and_saveexec_b64 s[10:11], vcc")
            a("buffer_atomic_cmpswap v[%d:%d], v%d, s[12:15], 0 offen sc0 sc1" % (vNON, vNON + 1, vNON + 2))
            a("s_mov_b64 exec, s[10:11]")
            a.label("F_NON_SKIP")


        mfma1(0, 1, 13)
        if "nowopf" not in EXP and "wolate" not in EXP and s in WOPF:
            i = WOPF.index(s)
            a("buffer_load_dwordx4 %s, v%d, s[4:7], s9 offen %s" % (vr(vJ + 4 * (i & 1), 4), vVOFF, buf_off(i * 1024)))
            log.append(("wo", s))
        mfma1(0, 2, 11)
        mfma1(0, 3, 9)
        a("s_waitcnt lgkmcnt(0)")
    for T in range(4):
        mfma1(1, T, None)
    stamp(a, 4)
    a("s_barrier")
    a("s_waitcnt vmcnt(0)")
    stamp(a, 5)
    if "wolate" in EXP:
        for i in range(4):
            a("buffer_load_dwordx4 %s, v%d, s[4:7], s9 offen %s" % (vr(vJ + 4 * (i & 1), 4), vVOFF, buf_off(i * 1024)))
    S_WO = 44
    make_srd(a, S_WO, 24, 4 << 20)
    u0, u1, u2, u3, u4 = vT + 5, vT + 6, vT + 7, vT + 8, vT + 9
    a("v_lshrrev_b32 v%d, 4, v%d" % (u0, L))
    a("v_and_b32 v%d, 15, v%d" % (u1, L))
    a("v_lshlrev_b32 v%d, 2, v%d" % (u2, u0))
    a("v_xor_b32 v%d, v%d, v%d" % (u1, u1, u2))
    a("v_lshlrev_b32 v%d, 8, v%d" % (u0, u0))
    a("v_lshl_add_u32 v%d, v%d, 4, v%d" % (u0, u1, u0))
    a("s_lshl_b32 s%d, s%d, 13" % (sT0, sWAVE))
    a("v_add_u32 v%d, s%d, v%d" % (u0, sT0, u0))
    a("v_lshrrev_b32 v%d, 4, v%d" % (u3, L))
    a("v_and_b32 v%d, 15, v%d" % (u4, L))
    a("v_xor_b32 v%d, v%d, v%d" % (u4, u4, u3))
    a("v_lshlrev_b32 v%d, 8, v%d" % (u3, u3))
    a("v_lshl_add_u32 v%d, v%d, 4, v%d" % (u3, u4, u3))
    a("v_add_u32 v%d, s%d, v%d" % (u3, sT0, u3))
    a("v_add_u32 v%d, 0x10000, v%d" % (u3, u3))
    for j in range(8):
        a("v_xor_b32 v%d, %d, v%d" % (u4, 64 * (j & 3), u3))
        a("ds_write_b128 v%d, %s %s" % (u4, vr(vKR + 4 * j, 4), ds_off(1024 * j)))
    for j in range(8):
        a("ds_write_b128 v%d, %s %s" % (u0, vr(vVR + 4 * j, 4), ds_off(1024 * j)))
    a("v_and_b32 v%d, 31, v%d" % (u1, L))
    a("v_lshrrev_b32 v%d, 5, v%d" % (u2, L))
    a("v_and_b32 v%d, 15, v%d" % (u4, u1))
    a("v_xor_b32 v%d, v%d, v%d" % (u4, u4, u2))
    a("v_lshlrev_b32 v%d, 8, v%d" % (u1, u1))
    a("v_lshl_add_u32 v%d, v%d, 4, v%d" % (u1, u4, u1))
    a("v_add_u32 v%d, s%d, v%d" % (u1, sT0, u1))
    a("v_add_u32 v%d, 0x10000, v%d" % (u1, u1))
    a("s_waitcnt lgkmcnt(7)")
    for jj in range(8):
        a("v_xor_b32 v%d, %d, v%d" % (u4, 32 * jj, u1))
        a("ds_read_b128 %s, v%d" % (vr(vKR + 4 * jj, 4), u4))
    a("v_lshl_add_u32 v%d, v%d, 2, v%d" % (t4, t0, t2))
    a("v_lshl_add_u32 v%d, v%d, 8, v%d" % (t4, t4, t3))
    a("v_add_u32 v%d, s%d, v%d" % (t4, sT0, t4))
    for T in range(4):
        a("v_xor_b32 v%d, %d, v%d" % (t1, T, t2))
        a("v_lshl_add_u32 v%d, v%d, 6, v%d" % (vWR + T, t1, t4))
    vQ = 128
    for i in range(32):
        a("v_cvt_pk_bf16_f32 v%d, v%d, v%d" % (vQ + i, vACC + 2 * i, vACC + 2 * i + 1))
    vS = 0
    for j in range(8):
        a("s_waitcnt lgkmcnt(%d)" % (7 - j))
        a("v_mfma_f32_32x32x16_bf16 %s, %s, %s, %s" % (vr(vS, 16), vr(vKR + 4 * j, 4), vr(vQ + 4 * j, 4), "0" if j == 0 else vr(vS, 16)))
    vVF = 32
    for T in range(4):
        for c2 in range(2):
            for p in range(2):
                a("ds_read_b64_tr_b16 %s, v%d %s" % (vr(vVF + 8 * T + 4 * c2 + 2 * p, 2), vWR + T, ds_off((16 * c2 + 8 * p) * 256)))
    vP = 16
    vE = 96
    for i in range(8):
        a("v_cvt_pk_bf16_f32 v%d, v%d, v%d" % (vP + i, vS + 2 * i, vS + 2 * i + 1))
    for i in range(8):
        a("v_lshlrev_b32 v%d, 16, v%d" % (vE + 2 * i, vP + i))
        a("v_and_b32 v%d, 0xffff0000, v%d" % (vE + 2 * i + 1, vP + i))
    for i in range(16):
        a("v_mul_f32 v%d, s%d, v%d" % (vE + i, sSCALE, vE + i))
    for i in range(8):
        a("v_cvt_pk_bf16_f32 v%d, v%d, v%d" % (vP + i, vE + 2 * i, vE + 2 * i + 1))
    for i in range(8):
        a("v_lshlrev_b32 v%d, 16, v%d" % (vE + 2 * i, vP + i))
        a("v_and_b32 v%d, 0xffff0000, v%d" % (vE + 2 * i + 1, vP + i))
    m0_, m1_ = t0, t1
    a("v_max3_f32 v%d, v%d, v%d, v%d" % (m0_, vE, vE + 1, vE + 2))
    for i in range(3, 15, 2):
        a("v_max3_f32 v%d, v%d, v%d, v%d" % (m0_, m0_, vE + i, vE + i + 1))
    a("v_max_f32 v%d, v%d, v%d" % (m0_, m0_, vE + 15))
    a("v_mov_b32 v%d, v%d" % (m1_, m0_))
    a("s_nop 1")
    a("v_permlane32_swap_b32 v%d, v%d" % (m0_, m1_))
    a("s_nop 1")
    a("v_max_f32 v%d, v%d, v%d" % (m0_, m0_, m1_))
    a("v_mul_f32 v%d, s%d, v%d" % (m0_, sLOG2E, m0_))
    for i in range(16):
        a("v_fma_f32 v%d, v%d, s%d, -v%d" % (vE + i, vE + i, sLOG2E, m0_))
    for i in range(16):
        a("v_exp_f32 v%d, v%d" % (vE + i, vE + i))
    a("s_nop 0")
    s0_, s1_ = t2, t3
    a("v_add_f32 v%d, v%d, v%d" % (s0_, vE, vE + 1))
    a("v_add_f32 v%d, v%d, v%d" % (s1_, vE + 2, vE + 3))
    for i in range(4, 16, 2):
        a("v_add_f32 v%d, v%d, v%d" % (s0_, s0_, vE + i))
        a("v_add_f32 v%d, v%d, v%d" % (s1_, s1_, vE + i + 1))
    a("v_add_f32 v%d, v%d, v%d" % (s0_, s0_, s1_))
    a("v_mov_b32 v%d, v%d" % (s1_, s0_))
    a("s_nop 1")
    a("v_permlane32_swap_b32 v%d, v%d" % (s0_, s1_))
    a("s_nop 1")
    a("v_add_f32 v%d, v%d, v%d" % (s0_, s0_, s1_))
    a("v_rcp_f32 v%d, v%d" % (s0_, s0_))
    a("s_nop 0")
    for i in range(16):
        a("v_mul_f32 v%d, v%d, v%d" % (vE + i, vE + i, s0_))
    for i in range(8):
        a("v_cvt_pk_bf16_f32 v%d, v%d, v%d" % (vP + i, vE + 2 * i, vE + 2 * i + 1))
    vO = 64
    a("s_waitcnt lgkmcnt(0)")
    a("s_nop 1")
    for T in range(4):
        for c2 in range(2):
            a("v_mfma_f32_32x32x16_bf16 %s, %s, %s, %s" % (vr(vO + 16 * T, 16), vr(vVF + 8 * T + 4 * c2, 4), vr(vP + 4 * c2, 4), "0" if c2 == 0 else vr(vO + 16 * T, 16)))
    a("v_lshrrev_b32 v%d, 4, v%d" % (t0, L))
    a("v_and_b32 v%d, 15, v%d" % (t1, L))
    a("v_lshlrev_b32 v%d, 13, v%d" % (t0, t0))
    a("v_lshl_add_u32 v%d, v%d, 4, v%d" % (t0, t1, t0))
    a("s_lshl_b32 s%d, s%d, 18" % (sOB, sB))
    a("s_lshl_b32 s%d, s%d, 8" % (sT0, sH))
    a("s_add_u32 s%d, s%d, s%d" % (sOB, sOB, sT0))
    a("s_nop 7")
    a("s_nop 3")
    vOP = 128
    for T in range(4):
        for jj in range(2):
            for i in range(4):
                a("v_cvt_pk_bf16_f32 v%d, v%d, v%d" % (vOP + 8 * T + 4 * jj + i, vO + 16 * T + 8 * jj + 2 * i, vO + 16 * T + 8 * jj + 2 * i + 1))
            a("v_xor_b32 v%d, %d, v%d" % (u4, 32 * (2 * T + jj), u1))
            a("ds_write_b128 v%d, %s" % (u4, vr(vOP + 8 * T + 4 * jj, 4)))
    a("s_waitcnt lgkmcnt(0)")
    for j in range(8):
        a("v_xor_b32 v%d, %d, v%d" % (u4, 64 * (j & 3), u3))
        a("ds_read_b128 %s, v%d %s" % (vr(vO + 4 * j, 4), u4, ds_off(1024 * j)))
    for j in range(8):
        a("s_add_u32 s%d, s%d, %d" % (sT0, sOB, j * 32768))
        a("s_waitcnt lgkmcnt(%d)" % (7 - j))
        a("buffer_store_dwordx4 %s, v%d, %s, s%d offen" % (vr(vO + 4 * j, 4), t0, sr(S_O, 4), sT0))
    stamp(a, 6)
    a("s_waitcnt vmcnt(0)")
    a("s_barrier")
    stamp(a, 7)

    S_A, S_B, S_P = S_O, S_WO, 52
    sG, sWM, sWN = 61, 62, 65
    sM0A, sM0B = 74, 75
    sAS, sBS = 76, 77
    sABASE, sBBASE = 78, 79
    sPB, sROT = 66, 64
    wA = [64, 72]
    wB = [80, 88]
    wAR = 96
    wBR = 108
    wAOFF = 114
    wBOFF = 116
    a("s_lshl_b32 s%d, s%d, 23" % (sT0, sBLK))
    a("s_add_u32 s%d, s%d, 0x%x" % (sT0, sT0, P_WS_OFF))
    a("s_add_u32 s36, s30, s%d" % sT0)
    a("s_addc_u32 s37, s31, 0")
    make_srd(a, S_P, 36, 8 << 20)
    a("s_lshr_b32 s%d, s%d, 2" % (sG, sWAVE))
    a("s_bfe_u32 s%d, s%d, 0x10001" % (sWM, sWAVE))
    a("s_and_b32 s%d, s%d, 1" % (sWN, sWAVE))
    a("s_lshl_b32 s%d, s%d, 2" % (sROT, sHP))
    a("s_lshl_b32 s%d, s%d, 11" % (sABASE, sHG))
    a("s_lshl_b32 s%d, s%d, 20" % (sBBASE, sHG))
    a("v_lshrrev_b32 v%d, 3, v%d" % (t0, L))
    a("v_and_b32 v%d, 7, v%d" % (t1, L))
    a("v_lshrrev_b32 v%d, 1, v%d" % (t2, t0))
    a("s_lshl_b32 s%d, s%d, 7" % (sT0, sBG))
    a("s_lshl_b32 s%d, s%d, 4" % (sT1, sWAVE))
    a("s_add_u32 s%d, s%d, s%d" % (sT0, sT0, sT1))
    for i in range(2):
        a("v_add_u32 v%d, %d, v%d" % (t3, 4 * i, t2))
        a("v_xor_b32 v%d, v%d, v%d" % (t3, t3, t1))
        a("v_add_u32 v%d, s%d, v%d" % (t4, sT0, t0))
        a("v_add_u32 v%d, %d, v%d" % (t4, 8 * i, t4))
        a("v_lshlrev_b32 v%d, 13, v%d" % (t4, t4))
        a("v_lshl_add_u32 v%d, v%d, 4, v%d" % (wAOFF + i, t3, t4))
    a("v_lshrrev_b32 v%d, 4, v%d" % (t0, L))
    a("v_and_b32 v%d, 15, v%d" % (t1, L))
    a("v_lshlrev_b32 v%d, 2, v%d" % (t2, t0))
    a("v_xor_b32 v%d, v%d, v%d" % (t1, t1, t2))
    a("s_lshl_b32 s%d, s%d, 3" % (sT0, sWAVE))
    a("v_add_u32 v%d, s%d, v%d" % (t0, sT0, t0))
    a("v_lshlrev_b32 v%d, 10, v%d" % (t0, t0))
    a("v_lshl_add_u32 v%d, v%d, 4, v%d" % (t0, t1, t0))
    a("s_lshl_b32 s%d, s%d, 8" % (sT1, sHP))
    a("v_add_u32 v%d, s%d, v%d" % (wBOFF, sT1, t0))
    a("s_lshl_b32 s%d, s%d, 11" % (sM0A, sWAVE))
    a("s_add_u32 s%d, s%d, 16384" % (sM0B, sM0A))

    def dma2_setup(stage):
        a("s_add_u32 s%d, s%d, %d" % (sT3, sROT, stage))
        a("s_and_b32 s%d, s%d, 15" % (sT3, sT3))
        a("s_lshl_b32 s%d, s%d, 7" % (sAS, sT3))
        a("s_add_u32 s%d, s%d, s%d" % (sAS, sAS, sABASE))
        a("s_lshl_b32 s%d, s%d, 16" % (sT3, sT3))
        a("s_add_u32 s%d, s%d, s%d" % (sT3, sT3, sBBASE))

    def dma2_a(stage, i):
        buf = stage % K2_NB
        a("s_add_u32 m0, s%d, %d" % (sM0A, buf * K2_BUF + i * 1024))
        a("s_nop 0")
        a("buffer_load_dwordx4 v%d, %s, s%d offen lds" % (wAOFF + i, sr(S_A, 4), sAS))

    def dma2_b(stage, j):
        buf = stage % K2_NB
        a("s_add_u32 s%d, s%d, %d" % (sBS, sT3, j * 4096))
        a("s_add_u32 m0, s%d, %d" % (sM0B, buf * K2_BUF + j * 1024))
        a("s_nop 0")
        a("buffer_load_dwordx4 v%d, %s, s%d offen lds" % (wBOFF, sr(S_B, 4), sBS))

    def dma2(stage):
        dma2_setup(stage)
        dma2_a(stage, 0)
        dma2_a(stage, 1)
        dma2_b(stage, 0)
        dma2_b(stage, 1)

    D2 = K2_NB - 1
    log2 = []
    S_D = 48
    a("s_add_u32 s36, s30, 0x%x" % F_WS_OFF)
    a("s_addc_u32 s37, s31, 0")
    make_srd(a, S_D, 36, 16384)
    sG1, sCNT, sNON = 67, 69, 68
    sXCC = 12
    a("s_cmp_lg_u32 s%d, 0" % sWAVE)
    a("s_cbranch_scc1 F_S1_SKIP")
    a("v_readfirstlane_b32 s%d, v%d" % (sNON, vNON))
    a("s_and_b32 s%d, s2, 7" % sT0)
    a("s_lshl_b32 s%d, s%d, 3" % (sG1, sT0))
    a("s_add_u32 s%d, s%d, s%d" % (sG1, sG1, sBG))
    a("s_lshl_b32 s%d, s%d, 7" % (sG1, sG1))
    a("s_cmp_eq_u32 s%d, 0" % sNON)
    a("s_cselect_b32 s%d, s%d, s%d" % (sNON, sNT, sNON))
    a("s_getreg_b32 s%d, hwreg(HW_REG_XCC_ID)" % sXCC)
    a("s_and_b32 s%d, s%d, 7" % (sXCC, sXCC))

    def publish(base):
        a("s_lshl_b32 s%d, s%d, 3" % (sT0, sHP))
        a("s_add_u32 s%d, s%d, s%d" % (sT0, sT0, sG1))
        a("v_mov_b32 v%d, s%d" % (t0, sT0))
        a("v_mov_b32 v%d, s%d" % (t2, sNON))
        a("v_mov_b32 v%d, s%d" % (t3, sXCC))
        a("v_cmp_eq_u32 vcc, 0, v%d" % L)
        a("s_and_saveexec_b64 s[10:11], vcc")
        a("buffer_store_dwordx2 v[%d:%d], v%d, %s, 0 offen offset:%d sc0 sc1" % (t2, t3, t0, sr(S_D, 4), base))
        a("s_mov_b64 exec, s[10:11]")

    def waitall(tag, base):
        a("v_and_b32 v%d, 3, v%d" % (t0, L))
        a("v_lshlrev_b32 v%d, 3, v%d" % (t0, t0))
        a("v_add_u32 v%d, s%d, v%d" % (t0, sG1, t0))
        a("s_mov_b32 s%d, 0" % sCNT)
        a.label("%s_POLL" % tag)
        a("buffer_load_dwordx2 v[%d:%d], v%d, %s, 0 offen offset:%d sc0 sc1" % (t2, t3, t0, sr(S_D, 4), base))
        a("s_waitcnt vmcnt(0)")
        a("v_cmp_ne_u32 vcc, s%d, v%d" % (sNON, t2))
        a("s_nop 3")
        a("s_cmp_eq_u64 vcc, 0")
        a("s_cbranch_scc1 %s_OK" % tag)
        a("s_sleep 2")
        a("s_add_u32 s%d, s%d, 1" % (sCNT, sCNT))
        a("s_cmp_lt_u32 s%d, %d" % (sCNT, SPIN_MAX))
        a("s_cbranch_scc1 %s_POLL" % tag)
        a.label("%s_OK" % tag)

    publish(0)
    a.label("F_S1_SKIP")

    def peer_wait():
        a("s_cmp_lg_u32 s%d, 0" % sWAVE)
        a("s_cbranch_scc1 F_S1_DONE")
        waitall("F_S1A", 0)
        a("v_cmp_ne_u32 vcc, s%d, v%d" % (sXCC, t3))
        a("s_nop 3")
        if "forceslow" not in EXP:
            a("s_cmp_eq_u64 vcc, 0")
            a("s_cbranch_scc1 F_S1_DONE")
        a("buffer_wbl2 sc1")
        a("s_waitcnt vmcnt(0)")
        publish(64)
        waitall("F_S1B", 64)
        a("buffer_inv sc1")
        a("s_waitcnt vmcnt(0)")
        a.label("F_S1_DONE")

    stamp(a, 8)
    NINIT2 = 2
    for s in range(NINIT2):
        dma2(s)
        log2 += [("a", s)] * 2 + [("b", s)] * 2
    if STAMP and "p2diag" in EXP:
        stamp(a, 13)
        a("s_waitcnt vmcnt(14)")
        stamp(a, 2)
        a("s_waitcnt vmcnt(12)")
        stamp(a, 3)
    a("v_and_b32 v%d, 31, v%d" % (t0, L))
    a("v_lshrrev_b32 v%d, 5, v%d" % (t1, L))
    a("v_bfe_u32 v%d, v%d, 1, 3" % (t2, t0))
    a("s_lshl_b32 s%d, s%d, 6" % (sT0, sWM))
    a("v_add_u32 v%d, s%d, v%d" % (t3, sT0, t0))
    a("v_lshlrev_b32 v%d, 7, v%d" % (t3, t3))
    a("s_lshl_b32 s%d, s%d, 2" % (sT1, sG))
    for cc in range(2):
        a("v_add_u32 v%d, s%d, v%d" % (t4, sT1, t1))
        a("v_add_u32 v%d, %d, v%d" % (t4, 2 * cc, t4))
        a("v_xor_b32 v%d, v%d, v%d" % (t4, t4, t2))
        a("v_lshl_add_u32 v%d, v%d, 4, v%d" % (wAR + 2 * cc, t4, t3))
        a("v_add_u32 v%d, 4096, v%d" % (wAR + 2 * cc + 1, wAR + 2 * cc))
    a("v_lshrrev_b32 v%d, 4, v%d" % (t0, L))
    a("v_and_b32 v%d, 1, v%d" % (t1, t0))
    a("v_lshrrev_b32 v%d, 1, v%d" % (t0, t0))
    a("v_bfe_u32 v%d, v%d, 2, 2" % (t2, L))
    a("v_and_b32 v%d, 1, v%d" % (t3, L))
    a("v_bfe_u32 v%d, v%d, 1, 1" % (t4, L))
    a("v_lshl_add_u32 v%d, v%d, 1, v%d" % (t3, t3, t4))
    a("v_lshlrev_b32 v%d, 3, v%d" % (t3, t3))
    a("v_lshl_add_u32 v%d, v%d, 5, v%d" % (t3, t1, t3))
    a("v_lshl_add_u32 v%d, v%d, 3, v%d" % (t4, t0, t2))
    a("s_lshl_b32 s%d, s%d, 5" % (sT0, sG))
    a("v_add_u32 v%d, s%d, v%d" % (t4, sT0, t4))
    a("v_lshl_add_u32 v%d, v%d, 8, v%d" % (t4, t4, t3))
    a("v_add_u32 v%d, 16384, v%d" % (t4, t4))
    a("s_lshl_b32 s%d, s%d, 1" % (sT1, sWN))
    for nt in range(2):
        a("s_add_u32 s%d, s%d, %d" % (sT2, sT1, nt))
        a("v_xor_b32 v%d, s%d, v%d" % (t1, sT2, t2))
        a("v_lshl_add_u32 v%d, v%d, 6, v%d" % (wBR + nt, t1, t4))
    for k in (1, 2):
        for i in range(4):
            a("v_add_u32 v%d, 0x%x, v%d" % (wAR + 4 * k + i, k * 65536, wAR + i))
        for i in range(2):
            a("v_add_u32 v%d, 0x%x, v%d" % (wBR + 2 * k + i, k * 65536, wBR + i))
    for i in range(64):
        a("v_mov_b32 v%d, 0" % (vACC + i))

    def reads2(stage, cc, st):
        buf = stage % K2_NB
        k, bo = buf >> 1, (buf & 1) * K2_BUF
        for mt in range(2):
            a("ds_read_b128 %s, v%d %s" % (vr(wA[st] + 4 * mt, 4), wAR + 4 * k + 2 * cc + mt, ds_off(bo)))
        for nt in range(2):
            for p in range(2):
                a("ds_read_b64_tr_b16 %s, v%d %s" % (vr(wB[st] + 4 * nt + 2 * p, 2), wBR + 2 * k + nt, ds_off(bo + (16 * cc + 4 * p) * 256)))

    def mf(st, mt, nt, w):
        if w is not None:
            a("s_waitcnt lgkmcnt(%d)" % w)
        acc = vACC + 32 * mt + 16 * nt
        a("v_mfma_f32_32x32x16_bf16 %s, %s, %s, %s" % (vr(acc, 16), vr(wB[st] + 4 * nt, 4), vr(wA[st] + 4 * mt, 4), vr(acc, 16)))

    WAITS = int(os.environ.get("WAITS", "2"))
    nx2 = NINIT2
    for s in range(NST):
        if s == WAITS:
            peer_wait()
        idx = max(i for i, t in enumerate(log2) if t in (("a", s), ("b", s)))
        a("s_waitcnt vmcnt(%d)" % (len(log2) - 1 - idx))
        a("s_barrier")
        if s == 0:
            stamp(a, 9)
        reads2(s, 0, 0)
        todo = []
        while (s >= WAITS or nx2 < 4) and nx2 < NST and nx2 <= s + D2 and len(todo) < 2:
            todo.append(nx2)
            nx2 += 1
        ops = []
        for t in todo:
            ops += [[(dma2_setup, (t,)), (dma2_a, (t, 0))], [(dma2_a, (t, 1))], [(dma2_b, (t, 0))], [(dma2_b, (t, 1))]]
            log2 += [("a", t)] * 2 + [("b", t)] * 2
        order = ((0, 0), (1, 0), (0, 1), (1, 1))
        for q in range(4):
            if s > 0:
                mf(1, order[q][0], order[q][1], None)
            k = (len(ops) + 3 - q) // (4 - q) if q < 3 else len(ops)
            for grp in ops[:k]:
                for fn, args in grp:
                    fn(*args)
            ops = ops[k:]
        if "wbmid" in EXP and s == 11:
            a("s_cmp_lg_u32 s%d, 7" % sWAVE)
            a("s_cbranch_scc1 F_WB_SKIP")
            if "wb1" in EXP:
                a("s_lshr_b32 s%d, s2, 3" % sT0)
                a("s_cmp_lg_u32 s%d, 0" % sT0)
                a("s_cbranch_scc1 F_WB_SKIP")
            a("buffer_wbl2 sc1")
            a.label("F_WB_SKIP")
        reads2(s, 1, 1)
        mf(0, 0, 0, 8)
        mf(0, 1, 0, None)
        mf(0, 0, 1, 6)
        mf(0, 1, 1, None)
        a("s_waitcnt lgkmcnt(0)")
    for mt, nt in ((0, 0), (1, 0), (0, 1), (1, 1)):
        mf(1, mt, nt, None)
    stamp(a, 10)
    a("s_barrier")
    RS = 528
    GS = 128 * RS
    a("v_and_b32 v%d, 31, v%d" % (t0, L))
    a("v_lshrrev_b32 v%d, 5, v%d" % (t1, L))
    a("s_lshl_b32 s%d, s%d, 6" % (sT0, sWM))
    a("v_add_u32 v%d, s%d, v%d" % (t0, sT0, t0))
    a("s_movk_i32 s%d, %d" % (sT1, RS))
    a("v_mul_lo_u32 v%d, v%d, s%d" % (t0, t0, sT1))
    a("v_lshl_add_u32 v%d, v%d, 5, v%d" % (t0, t1, t0))
    a("s_mul_i32 s%d, s%d, %d" % (sT0, sG, GS))
    a("s_lshl_b32 s%d, s%d, 8" % (sT1, sWN))
    a("s_add_u32 s%d, s%d, s%d" % (sT0, sT0, sT1))
    a("v_add_u32 v%d, s%d, v%d" % (t0, sT0, t0))
    a("s_nop 3")
    for mt in range(2):
        for nt in range(2):
            for jj in range(2):
                for qq in range(2):
                    a("ds_write_b128 v%d, %s %s" % (t0, vr(vACC + 32 * mt + 16 * nt + 8 * jj + 4 * qq, 4), ds_off(mt * 32 * RS + (nt * 32 + 16 * jj + 4 * qq) * 4)))
        a("s_waitcnt lgkmcnt(4)")
    a("s_waitcnt lgkmcnt(0)")
    a("s_barrier")
    a("v_lshrrev_b32 v%d, 5, v%d" % (t1, L))
    a("v_and_b32 v%d, 31, v%d" % (t2, L))
    a("s_lshl_b32 s%d, s%d, 4" % (sT0, sWAVE))
    a("v_add_u32 v%d, s%d, v%d" % (t3, sT0, t1))
    a("s_movk_i32 s%d, %d" % (sT1, RS))
    a("v_mul_lo_u32 v%d, v%d, s%d" % (t3, t3, sT1))
    a("v_lshl_add_u32 v%d, v%d, 4, v%d" % (t3, t2, t3))
    a("v_add_u32 v%d, 0x%x, v%d" % (t4, GS, t3))

    def rd(i):
        a("ds_read_b128 %s, v%d %s" % (vr(vACC + 4 * i, 4), t3, ds_off(2 * RS * i)))
        a("ds_read_b128 %s, v%d %s" % (vr(vACC + 32 + 4 * i, 4), t4, ds_off(2 * RS * i)))
    PB16 = "pf32" not in EXP
    RSH = 10 if PB16 else 11
    PSH = 20 if PB16 else 21
    a("v_lshlrev_b32 v%d, %d, v%d" % (t1, RSH, t1))
    a("v_lshl_add_u32 v%d, v%d, %d, v%d" % (t1, t2, 3 if PB16 else 4, t1))
    a("s_lshl_b32 s%d, s%d, 7" % (sPB, sBG))
    a("s_lshl_b32 s%d, s%d, %d" % (sPB, sPB, RSH))
    a("s_lshl_b32 s%d, s%d, %d" % (sT1, sHP, 8 if PB16 else 9))
    a("s_add_u32 s%d, s%d, s%d" % (sPB, sPB, sT1))
    a("s_lshr_b32 s%d, s%d, 1" % (sT1, sWAVE))
    a("s_cmp_eq_u32 s%d, s%d" % (sT1, sHG))
    a("s_cbranch_scc1 F_P_SKIP")
    for i in range(6):
        rd(i)
    a("s_lshl_b32 s%d, s%d, %d" % (sT0, sT0, RSH))
    a("s_add_u32 s%d, s%d, s%d" % (sT0, sT0, sPB))
    a("s_lshl_b32 s%d, s%d, %d" % (sT1, sHG, PSH))
    a("s_add_u32 s%d, s%d, s%d" % (sT0, sT0, sT1))
    for i in range(8):
        a("s_waitcnt lgkmcnt(%d)" % (10 if i < 2 else 2 * (7 - i)))
        if i < 2:
            rd(6 + i)
        for q in range(4):
            a("v_add_f32 v%d, v%d, v%d" % (vACC + 4 * i + q, vACC + 4 * i + q, vACC + 32 + 4 * i + q))
        a("s_add_u32 s%d, s%d, %d" % (sT1, sT0, i * (2 << RSH)))
        if PB16:
            a("v_cvt_pk_bf16_f32 v%d, v%d, v%d" % (vACC + 4 * i, vACC + 4 * i, vACC + 4 * i + 1))
            a("v_cvt_pk_bf16_f32 v%d, v%d, v%d" % (vACC + 4 * i + 1, vACC + 4 * i + 2, vACC + 4 * i + 3))
            a("buffer_store_dwordx2 %s, v%d, %s, s%d offen sc1" % (vr(vACC + 4 * i, 2), t1, sr(S_P, 4), sT1))
        else:
            a("buffer_store_dwordx4 %s, v%d, %s, s%d offen sc1" % (vr(vACC + 4 * i, 4), t1, sr(S_P, 4), sT1))
    a.label("F_P_SKIP")
    stamp(a, 11)
    a("s_waitcnt vmcnt(0)")
    a("s_barrier")
    stamp(a, 12)
    a("s_cmp_lg_u32 s%d, 0" % sWAVE)
    a("s_cbranch_scc1 F_S2_DONE")
    a("s_lshl_b32 s%d, s%d, 5" % (sG1, sBLK))
    a("s_lshl_b32 s%d, s%d, 2" % (sT0, sBG))
    a("s_add_u32 s%d, s%d, s%d" % (sG1, sG1, sT0))
    a("s_add_u32 s%d, s%d, s%d" % (sG1, sG1, sHP))
    a("s_add_u32 s%d, s%d, 64" % (sG1, sG1))
    a("s_lshl_b32 s%d, s%d, 7" % (sG1, sG1))
    a("s_lshl_b32 s%d, s%d, 3" % (sT0, sHG))
    a("s_add_u32 s%d, s%d, s%d" % (sT0, sT0, sG1))
    a("v_mov_b32 v%d, s%d" % (t0, sT0))
    a("v_mov_b32 v%d, s%d" % (t2, sNON))
    a("v_mov_b32 v%d, s%d" % (t3, sXCC))
    a("v_cmp_eq_u32 vcc, 0, v%d" % L)
    a("s_and_saveexec_b64 s[10:11], vcc")
    a("buffer_store_dwordx2 v[%d:%d], v%d, %s, 0 offen sc0 sc1" % (t2, t3, t0, sr(S_D, 4)))
    a("s_mov_b64 exec, s[10:11]")
    waitall("F_S2A", 0)
    a.label("F_S2_DONE")
    a("s_barrier")
    stamp(a, 13)
    S_OUT = 40
    make_srd(a, S_OUT, 26, 2 << 20)
    a("s_lshl_b32 s%d, s%d, 5" % (sT0, sHG))
    a("s_lshl_b32 s%d, s%d, 2" % (sT1, sWAVE))
    a("s_add_u32 s%d, s%d, s%d" % (sT0, sT0, sT1))
    a("v_lshrrev_b32 v%d, 5, v%d" % (t2, L))
    a("v_and_b32 v%d, 31, v%d" % (t3, L))
    a("v_add_u32 v%d, s%d, v%d" % (t4, sT0, t2))
    a("s_movk_i32 s%d, %d" % (sT1, RS))
    a("v_mul_lo_u32 v%d, v%d, s%d" % (t4, t4, sT1))
    a("v_lshl_add_u32 v%d, v%d, 4, v%d" % (t4, t3, t4))
    a("v_add_u32 v%d, 0x%x, v%d" % (t0, GS, t4))
    a("s_lshl_b32 s%d, s%d, %d" % (sT1, sT0, RSH))
    a("s_add_u32 s%d, s%d, s%d" % (sT1, sT1, sPB))
    for d in range(1, 4):
        a("s_add_u32 s%d, s%d, %d" % (sT2, sHG, d))
        a("s_and_b32 s%d, s%d, 3" % (sT2, sT2))
        a("s_lshl_b32 s%d, s%d, %d" % (sT2, sT2, PSH))
        a("s_add_u32 s%d, s%d, s%d" % (sT2, sT2, sT1))
        a("s_add_u32 s%d, s%d, %d" % (sT3, sT2, 2 << RSH))
        if PB16:
            a("buffer_load_dwordx2 %s, v%d, %s, s%d offen sc1" % (vr(44 + 4 * (d - 1), 2), t1, sr(S_P, 4), sT2))
            a("buffer_load_dwordx2 %s, v%d, %s, s%d offen sc1" % (vr(44 + 4 * (d - 1) + 2, 2), t1, sr(S_P, 4), sT3))
        else:
            a("buffer_load_dwordx4 %s, v%d, %s, s%d offen sc1" % (vr(16 + 8 * (d - 1), 4), t1, sr(S_P, 4), sT2))
            a("buffer_load_dwordx4 %s, v%d, %s, s%d offen sc1" % (vr(16 + 8 * (d - 1) + 4, 4), t1, sr(S_P, 4), sT3))
    for i in range(2):
        a("ds_read_b128 %s, v%d %s" % (vr(4 * i, 4), t4, ds_off(2 * RS * i)))
        a("ds_read_b128 %s, v%d %s" % (vr(8 + 4 * i, 4), t0, ds_off(2 * RS * i)))
    a("v_lshlrev_b32 v%d, 11, v%d" % (t2, t2))
    a("v_lshl_add_u32 v%d, v%d, 3, v%d" % (t2, t3, t2))
    a("s_lshl_b32 s%d, s%d, 7" % (sT1, sBG))
    a("s_add_u32 s%d, s%d, s%d" % (sT1, sT1, sT0))
    a("s_lshl_b32 s%d, s%d, 11" % (sT1, sT1))
    a("s_lshl_b32 s%d, s%d, 10" % (sT2, sBLK))
    a("s_add_u32 s%d, s%d, s%d" % (sT1, sT1, sT2))
    a("s_lshl_b32 s%d, s%d, 8" % (sT2, sHP))
    a("s_add_u32 s%d, s%d, s%d" % (sT1, sT1, sT2))
    a("s_add_u32 s%d, s%d, 4096" % (sT2, sT1))
    a("s_waitcnt lgkmcnt(0)")
    for q in range(8):
        a("v_add_f32 v%d, v%d, v%d" % (q, q, 8 + q))
    a("s_waitcnt vmcnt(0)")
    if PB16:
        for d in range(3):
            for q in range(4):
                a("v_lshlrev_b32 v%d, 16, v%d" % (16 + 8 * d + 2 * q, 44 + 4 * d + q))
                a("v_and_b32 v%d, 0xffff0000, v%d" % (16 + 8 * d + 2 * q + 1, 44 + 4 * d + q))
    for q in range(8):
        a("v_add_f32 v%d, v%d, v%d" % (16 + q, 16 + q, 24 + q))
        a("v_add_f32 v%d, v%d, v%d" % (q, q, 32 + q))
    for q in range(8):
        a("v_add_f32 v%d, v%d, v%d" % (q, q, 16 + q))
    for q in range(4):
        a("v_cvt_pk_bf16_f32 v%d, v%d, v%d" % (40 + q, 2 * q, 2 * q + 1))
    a("buffer_store_dwordx2 v[40:41], v%d, %s, s%d offen" % (t2, sr(S_OUT, 4), sT1))
    a("buffer_store_dwordx2 v[42:43], v%d, %s, s%d offen" % (t2, sr(S_OUT, 4), sT2))
    if STAMP:
        a("s_waitcnt vmcnt(0)")
        stamp(a, 2)
        a("s_memrealtime s[98:99]")
        a("s_waitcnt lgkmcnt(0)")
        a("s_mov_b32 s97, s98")
        stamp_dump(a, 0, 40, vTID)
    if "diag" in EXP:
        a("s_waitcnt vmcnt(0)")
        a("s_memrealtime s[98:99]")
        a("s_waitcnt lgkmcnt(0)")
        a("s_add_u32 s36, s30, 0x%x" % (60 << 20))
        a("s_addc_u32 s37, s31, 0")
        make_srd(a, 40, 36, 65536)
        a("s_lshl_b32 s3, s2, 3")
        a("v_mov_b32 v0, s3")
        a("v_mov_b32 v2, s96")
        a("v_mov_b32 v3, s98")
        a("s_cmp_lg_u32 s%d, 0" % sWAVE)
        a("s_cbranch_scc1 F_DONE")
        a("buffer_store_dwordx2 v[2:3], v0, s[40:43], 0 offen")
    if "diag2" in EXP:
        a("s_waitcnt vmcnt(0)")
        rt(a, 6)
        a("s_cmp_lg_u32 s%d, 0" % sWAVE)
        a("s_cbranch_scc1 F_DONE")
        a("s_cmp_lg_u32 s2, 0")
        a("s_cbranch_scc1 F_DONE")
        make_srd(a, 40, 28, 256)
        a("v_mov_b32 v0, 32")
        for i in range(7):
            a("v_mov_b32 v%d, s%d" % (2 + i, 88 + i))
        a("v_cmp_eq_u32 vcc, 0, v%d" % L)
        a("s_and_saveexec_b64 s[10:11], vcc")
        a("buffer_store_dwordx4 v[2:5], v0, s[40:43], 0 offen")
        a("buffer_store_dwordx4 v[6:9], v0, s[40:43], 0 offen offset:16")
    a.label("F_DONE")
    a("s_endpgm")
    return kernel_desc(name, NV, 100)


def gen_k3(a):
    name = "k3_kernel"
    kernel_begin(a, name)
    a("s_cmp_ge_u32 s2, %d" % (0 if "k3empty" in EXP else 256))
    a("s_cbranch_scc1 K3_DONE")
    if "diag" in EXP:
        a("s_memrealtime s[36:37]")
    a("s_load_dwordx2 s[4:5], s[0:1], 80")
    a("s_load_dwordx2 s[6:7], s[0:1], 96")
    a("s_lshl_b32 s3, s2, 8")
    a("v_add_u32 v1, s3, v0")
    a("s_waitcnt lgkmcnt(0)")
    a("s_add_u32 s6, s6, 0x%x" % P_WS_OFF)
    a("s_addc_u32 s7, s7, 0")
    make_srd(a, 8, 6, 16 << 20)
    make_srd(a, 12, 4, 2 << 20)
    a("v_lshlrev_b32 v2, 4, v1")
    for i in range(4):
        blk = i >> 1
        for ks in range(4):
            a("s_mov_b32 s%d, 0x%x" % (16 + 4 * i + ks, blk * (8 << 20) + ks * (2 << 20) + (i & 1) * (1 << 20)))
    for i in range(4):
        for ks in range(4):
            a("buffer_load_dwordx4 %s, v2, s[8:11], s%d offen" % (vr(8 + 16 * i + 4 * ks, 4), 16 + 4 * i + ks))
    a("v_lshrrev_b32 v3, 7, v1")
    a("v_lshlrev_b32 v3, 11, v3")
    a("v_and_b32 v4, 127, v1")
    a("v_lshl_add_u32 v3, v4, 3, v3")
    for i in range(4):
        a("s_waitcnt vmcnt(%d)" % (12 - 4 * i))
        b = 8 + 16 * i
        for q in range(4):
            a("v_add_f32 v%d, v%d, v%d" % (b + q, b + q, b + 4 + q))
            a("v_add_f32 v%d, v%d, v%d" % (b + 8 + q, b + 8 + q, b + 12 + q))
        for q in range(4):
            a("v_add_f32 v%d, v%d, v%d" % (b + q, b + q, b + 8 + q))
        a("v_cvt_pk_bf16_f32 v%d, v%d, v%d" % (b, b, b + 1))
        a("v_cvt_pk_bf16_f32 v%d, v%d, v%d" % (b + 1, b + 2, b + 3))
        a("s_mov_b32 s16, 0x%x" % ((i >> 1) * 1024 + (i & 1) * 512 * 2048))
        a("buffer_store_dwordx2 %s, v3, s[12:15], s16 offen" % vr(b, 2))
    if "diag" in EXP:
        a("s_cmp_lg_u32 s2, 0")
        a("s_cbranch_scc1 K3_DONE")
        a("s_waitcnt vmcnt(0)")
        a("s_memrealtime s[38:39]")
        a("s_load_dwordx2 s[4:5], s[0:1], 88")
        a("s_load_dwordx2 s[6:7], s[0:1], 96")
        a("s_waitcnt lgkmcnt(0)")
        a("s_add_u32 s6, s6, 0x%x" % (60 << 20))
        a("s_addc_u32 s7, s7, 0")
        make_srd(a, 8, 6, 65536)
        make_srd(a, 12, 4, 256)
        a("v_lshlrev_b32 v1, 3, v0")
        a("buffer_load_dwordx2 v[4:5], v1, s[8:11], 0 offen")
        a("s_waitcnt vmcnt(0)")
        a("v_cmp_gt_u32 vcc, 6, v0")
        a("s_and_saveexec_b64 s[20:21], vcc")
        a("buffer_store_dwordx2 v[4:5], v1, s[12:15], 0 offen")
        a("s_mov_b64 exec, s[20:21]")
        a("v_mov_b32 v6, s36")
        a("v_mov_b32 v7, s38")
        a("v_mov_b32 v1, 48")
        a("v_cmp_eq_u32 vcc, 0, v0")
        a("s_and_saveexec_b64 s[20:21], vcc")
        a("buffer_store_dwordx2 v[6:7], v1, s[12:15], 0 offen")
    a.label("K3_DONE")
    a("s_endpgm")
    return kernel_desc(name, 80, 40)


def main():
    a = Asm()
    hdr = HEADER + "; @launch grid=(256,1,1) block=(512,1,1) lds=%d\n" % F_LDS
    a.raw('.amdgcn_target "amdgcn-amd-amdhsa--gfx950"')
    a.raw(".text")
    descs = [gen_fused(a)]
    a.raw('.section .rodata,"a"')
    for d in descs:
        a.raw(".p2align 6")
        a.raw(d)
    open(OUT, "w").write(hdr + a.text())


if __name__ == "__main__":
    main()
```

```python
import sys, os
EXP = os.environ.get("EXP", "")

NAME = "concat_heads__gqa_block_cached__mha_block_cached__near_ridge"
OUT = os.environ.get("OUT", "cdna_kernels/%s.s" % NAME)

HEADER = """; Kernarg layout for this problem (104 bytes, ptrs only, base s[0:1]):
"""


class Asm:
    def __init__(self):
        self.lines = []

    def __call__(self, s):
        self.lines.append("    " + s)

    def label(self, s):
        self.lines.append(s + ":")

    def raw(self, s):
        self.lines.append(s)

    def text(self):
        return "\n".join(self.lines) + "\n"


def vr(base, n):
    return "v[%d:%d]" % (base, base + n - 1)


def sr(base, n):
    return "s[%d:%d]" % (base, base + n - 1)


def buf_off(o):
    assert 0 <= o < 4096, o
    return "offset:%d" % o


def ds_off(o):
    assert 0 <= o < 65536, o
    return "offset:%d" % o


def kernel_begin(a, name):
    a.raw(".globl %s" % name)
    a.raw(".p2align 8")
    a.raw(".type %s,@function" % name)
    a.label(name)


def kernel_desc(name, vgpr, sgpr, accum=None):
    if accum is None:
        accum = (vgpr + 3) // 4 * 4
    return """.amdhsa_kernel %s
  .amdhsa_next_free_vgpr %d
  .amdhsa_next_free_sgpr %d
  .amdhsa_accum_offset %d
  .amdhsa_group_segment_fixed_size 0
  .amdhsa_kernarg_size 104
  .amdhsa_user_sgpr_count 2
  .amdhsa_user_sgpr_kernarg_segment_ptr 1
  .amdhsa_system_sgpr_workgroup_id_x 1
.end_amdhsa_kernel
""" % (name, vgpr, sgpr, accum)


def make_srd(a, d, base_lo, size):
    a("s_mov_b32 s%d, s%d" % (d, base_lo))
    a("s_and_b32 s%d, s%d, 0xffff" % (d + 1, base_lo + 1))
    a("s_mov_b32 s%d, 0x%x" % (d + 2, size))
    a("s_mov_b32 s%d, 0x00020000" % (d + 3))


STAMP = "stamp" in EXP
KVMOD = "" if "kvplain" in EXP else " sc0 sc1 nt"
WMOD = " nt" if "wnt" in EXP else ""
DMOD = " nt" if "dnt" in EXP else ""
NSTAMP = 16


def rt(a, idx):
    if "diag2" in EXP:
        a("s_memrealtime s[98:99]")
        a("s_waitcnt lgkmcnt(0)")
        a("s_mov_b32 s%d, s98" % (88 + idx))


def stamp(a, idx):
    m = {0: 0, 2: 1, 4: 2, 7: 3, 10: 4, 13: 5}
    if "diag2" in EXP and idx in m:
        rt(a, m[idx])
    if STAMP:
        assert idx < NSTAMP
        a("s_memtime s[98:99]")
        a("s_waitcnt lgkmcnt(0)")
        a("s_mov_b32 s%d, s98" % (82 + idx))


def stamp_init(a, vtid):
    if STAMP:
        a("v_mov_b32 v%d, v0" % vtid)
        for i in range(NSTAMP):
            a("s_mov_b32 s%d, 0" % (82 + i))


def stamp_dump(a, kidx, vtmp, vtid):
    if not STAMP:
        return
    a("s_load_dwordx2 s[4:5], s[0:1], 96")
    a("s_waitcnt lgkmcnt(0)")
    a("s_add_u32 s4, s4, 0x%x" % ((64 << 20) + kidx * 262144))
    a("s_addc_u32 s5, s5, 0")
    a("s_and_b32 s5, s5, 0xffff")
    a("s_mov_b32 s6, 262144")
    a("s_mov_b32 s7, 0x00020000")
    a("s_lshl_b32 s3, s2, 10")
    a("v_lshrrev_b32 v%d, 6, v%d" % (vtmp, vtid))
    a("v_lshlrev_b32 v%d, 6, v%d" % (vtmp, vtmp))
    a("v_add_u32 v%d, s3, v%d" % (vtmp, vtmp))
    a("v_and_b32 v%d, 63, v%d" % (vtid, vtid))
    a("v_cmp_eq_u32 vcc, 0, v%d" % vtid)
    a("s_and_saveexec_b64 s[8:9], vcc")
    for i in range(NSTAMP):
        a("v_mov_b32 v%d, s%d" % (vtmp + 1, 82 + i))
        a("buffer_store_dword v%d, v%d, s[4:7], 0 offen offset:%d" % (vtmp + 1, vtmp, 4 * i))
        a("s_nop 1")
    a("s_mov_b64 exec, s[8:9]")


O_WS_OFF = 0
P_WS_OFF = 16 << 20

K1_BUF = 24576
K1_NB = 6
K2_BUF = 32768
K2_NB = 5
F_LDS = 163840
SPIN_MAX = 200000
F_WS_OFF = 48 << 20
WOPF = [5, 7, 9, 11]


def gen_fused(a):
    name = NAME + "_kernel"
    kernel_begin(a, name)
    S_X, S_W, S_K, S_V, S_O = 40, 44, 48, 52, 56
    sWAVE, sBL, sHL, sBG, sH0, sB, sH = 60, 61, 62, 63, 64, 65, 66
    sKB, sKB2, sOB = 67, 68, 69
    sT0, sT1, sT2, sT3 = 70, 71, 72, 73
    sM0X, sM0W = 74, 75
    sXS, sWS = 76, 77
    sSCALE, sLOG2E = 78, 79
    sBLK, sHG, sHP = 80, 81, 39
    vACC = 0
    vKR = 64
    vVR = 96
    vA = [128, 144]
    vB = [160, 164]
    vXR = 168
    vWR = 174
    vVOFF = 187
    vXOFF = 188
    vWOFF = 189
    vT = 190
    vLANE = 200
    vTID = 201
    vJ = 204
    NV = 216
    L = vLANE
    t0, t1, t2, t3, t4 = vT, vT + 1, vT + 2, vT + 3, vT + 4
    NST = 16

    a("s_cmp_ge_u32 s2, 256")
    a("s_cbranch_scc1 F_DONE")
    stamp_init(a, vTID)
    stamp(a, 0)
    if "diag" in EXP:
        a("s_memrealtime s[98:99]")
        a("s_waitcnt lgkmcnt(0)")
        a("s_mov_b32 s96, s98")
    if STAMP:
        a("s_memrealtime s[98:99]")
        a("s_waitcnt lgkmcnt(0)")
        a("s_mov_b32 s96, s98")
    a("s_load_dwordx16 s[16:31], s[0:1], 0")
    a("s_load_dwordx8 s[32:39], s[0:1], 64")
    a("s_load_dwordx2 s[14:15], s[0:1], 96")
    a("v_lshrrev_b32 v%d, 6, v0" % vT)
    a("v_and_b32 v%d, 63, v0" % vLANE)
    a("s_nop 0")
    a("v_readfirstlane_b32 s%d, v%d" % (sWAVE, vT))
    if "staticid" not in EXP:
        a("s_load_dwordx2 s[10:11], s[0:1], 88")
        a("s_getreg_b32 s12, hwreg(HW_REG_XCC_ID)")
        a("s_and_b32 s12, s12, 7")
        a("s_cmp_lg_u32 s%d, 0" % sWAVE)
        a("s_cbranch_scc1 F_TK_WAIT")
        a("s_waitcnt lgkmcnt(0)")
        make_srd(a, 4, 10, 256)
        a("s_lshl_b32 s13, s12, 2")
        a("v_mov_b32 v%d, s13" % (vT + 1))
        a("v_mov_b32 v%d, 1" % (vT + 2))
        a("v_mov_b32 v%d, 0" % (vT + 3))
        a("v_cmp_eq_u32 vcc, 0, v%d" % vLANE)
        a("s_and_saveexec_b64 s[8:9], vcc")
        a("buffer_atomic_add v%d, v%d, s[4:7], 0 offen sc0" % (vT + 2, vT + 1))
        a("s_waitcnt vmcnt(0)")
        a("ds_write_b32 v%d, v%d" % (vT + 3, vT + 2))
        a("s_mov_b64 exec, s[8:9]")
        a("s_waitcnt lgkmcnt(0)")
        a("s_branch F_TK_JOIN")
        a.label("F_TK_WAIT")
        if "nopf0" not in EXP:
            a("s_waitcnt lgkmcnt(0)")
            a("s_cmp_lt_u32 s12, 4")
            a("s_cselect_b32 s4, s16, s26")
            a("s_cselect_b32 s5, s17, s27")
            a("s_cselect_b32 s8, s22, s32")
            a("s_cselect_b32 s9, s23, s33")
            a("s_and_b32 s5, s5, 0xffff")
            a("s_mov_b32 s6, 0x%x" % (1 << 20))
            a("s_mov_b32 s7, 0x00020000")
            a("s_and_b32 s9, s9, 0xffff")
            a("s_mov_b32 s10, 0x%x" % (4 << 20))
            a("s_mov_b32 s11, 0x00020000")
            a("s_lshr_b32 s13, s2, 3")
            a("v_lshlrev_b32 v%d, 4, v%d" % (vT + 1, vLANE))
            a("s_lshl_b32 s%d, s13, 5" % sT0)
            a("s_lshl_b32 s%d, s%d, 2" % (sT1, sWAVE))
            a("s_add_u32 s%d, s%d, s%d" % (sT0, sT0, sT1))
            a("s_lshl_b32 s%d, s%d, 10" % (sT0, sT0))
            for i in range(4):
                a("buffer_load_dwordx4 %s, v%d, s[4:7], s%d offen %s" % (vr(vJ + 4 * (i & 1), 4), vT + 1, sT0, buf_off(i * 1024)))
            a("s_lshl_b32 s%d, s13, 4" % sT0)
            a("s_lshl_b32 s%d, s%d, 1" % (sT1, sWAVE))
            a("s_add_u32 s%d, s%d, s%d" % (sT0, sT0, sT1))
            a("s_lshl_b32 s%d, s%d, 13" % (sT0, sT0))
            a("s_and_b32 s%d, s12, 3" % sT1)
            a("s_lshl_b32 s%d, s%d, 11" % (sT1, sT1))
            a("s_add_u32 s%d, s%d, s%d" % (sT0, sT0, sT1))
            a("s_add_u32 s%d, s%d, 8192" % (sT1, sT0))
            for i in range(4):
                a("buffer_load_dwordx4 %s, v%d, s[8:11], s%d offen %s" % (vr(vJ + 4 * (i & 1), 4), vT + 1, sT0 if i < 2 else sT1, buf_off((i & 1) * 1024)))
        a.label("F_TK_JOIN")
        a("s_barrier")
        a("v_mov_b32 v%d, 0" % (vT + 3))
        a("ds_read_b32 v%d, v%d" % (vT + 2, vT + 3))
        a("s_waitcnt lgkmcnt(0)")
        a("v_readfirstlane_b32 s13, v%d" % (vT + 2))
        a("s_nop 3")
        a("s_barrier")
        a("s_lshr_b32 s3, s13, 5")
        a("s_and_b32 s13, s13, 31")
        a("s_lshl_b32 s13, s13, 3")
        a("s_add_u32 s2, s13, s12")
    a("s_and_b32 s%d, s2, 7" % sT0)
    a("s_lshr_b32 s%d, s2, 3" % sT1)
    a("s_lshr_b32 s%d, s%d, 2" % (sBG, sT1))
    a("s_and_b32 s%d, s%d, 3" % (sT1, sT1))
    a("s_and_b32 s%d, s%d, 3" % (sHG, sT0))
    a("s_lshl_b32 s%d, s%d, 3" % (sH0, sHG))
    a("s_lshl_b32 s%d, s%d, 1" % (sT2, sT1))
    a("s_add_u32 s%d, s%d, s%d" % (sH0, sH0, sT2))
    a("s_lshr_b32 s%d, s%d, 2" % (sBLK, sT0))
    a("s_mov_b32 s13, s%d" % sT1)
    a("v_lshrrev_b32 v%d, 2, v%d" % (t0, L))
    a("v_and_b32 v%d, 3, v%d" % (t1, L))
    a("v_lshrrev_b32 v%d, 4, v%d" % (t2, L))
    a("v_xor_b32 v%d, v%d, v%d" % (t1, t1, t2))
    a("s_lshl_b32 s%d, s%d, 7" % (sT0, sBG))
    a("s_lshl_b32 s%d, s%d, 4" % (sT1, sWAVE))
    a("s_add_u32 s%d, s%d, s%d" % (sT0, sT0, sT1))
    a("v_add_u32 v%d, s%d, v%d" % (t0, sT0, t0))
    a("v_lshlrev_b32 v%d, 10, v%d" % (t0, t0))
    a("v_lshl_add_u32 v%d, v%d, 4, v%d" % (vXOFF, t1, t0))
    a("s_lshl_b32 s%d, s%d, 10" % (sM0X, sWAVE))
    a("v_lshrrev_b32 v%d, 4, v%d" % (t0, L))
    a("v_and_b32 v%d, 15, v%d" % (t1, L))
    a("v_lshlrev_b32 v%d, 2, v%d" % (t2, t0))
    a("v_xor_b32 v%d, v%d, v%d" % (t1, t1, t2))
    a("s_lshr_b32 s%d, s%d, 1" % (sT0, sWAVE))
    a("s_lshl_b32 s%d, s%d, 3" % (sT0, sT0))
    a("v_add_u32 v%d, s%d, v%d" % (t0, sT0, t0))
    a("v_lshlrev_b32 v%d, 13, v%d" % (t0, t0))
    a("v_lshl_add_u32 v%d, v%d, 4, v%d" % (t0, t1, t0))
    a("s_and_b32 s%d, s%d, 1" % (sT1, sWAVE))
    a("s_add_u32 s%d, s%d, s%d" % (sT2, sH0, sT1))
    a("s_lshl_b32 s%d, s%d, 8" % (sT2, sT2))
    a("v_add_u32 v%d, s%d, v%d" % (vWOFF, sT2, t0))
    a("s_lshl_b32 s%d, s%d, 13" % (sM0W, sT1))
    a("s_lshl_b32 s%d, s%d, 8" % (sT0, sT0))
    a("s_add_u32 s%d, s%d, s%d" % (sM0W, sM0W, sT0))
    a("s_add_u32 s%d, s%d, 8192" % (sM0W, sM0W))
    a("s_waitcnt lgkmcnt(0)")
    a("s_cmp_eq_u32 s%d, 0" % sBLK)
    for i in range(5):
        a("s_cselect_b32 s%d, s%d, s%d" % (16 + 2 * i, 16 + 2 * i, 26 + 2 * i))
        a("s_cselect_b32 s%d, s%d, s%d" % (17 + 2 * i, 17 + 2 * i, 27 + 2 * i))
    a("s_mov_b32 s26, s36")
    a("s_mov_b32 s27, s37")
    a("s_mov_b32 s28, s38")
    a("s_mov_b32 s29, s39")
    a("s_mov_b32 s30, s14")
    a("s_mov_b32 s31, s15")
    a("s_mov_b32 s%d, s13" % sHP)
    make_srd(a, S_X, 16, 1 << 20)
    make_srd(a, S_W, 22, 4 << 20)
    vNON = 212
    sNT = 8

    def dma_x(stage):
        buf = stage % K1_NB
        a("s_mov_b32 s%d, %d" % (sXS, stage * 64))
        a("s_add_u32 m0, s%d, %d" % (sM0X, buf * K1_BUF))
        a("s_nop 0")
        a("buffer_load_dwordx4 v%d, %s, s%d offen%s lds" % (vXOFF, sr(S_X, 4), sXS, DMOD))

    def dma_w(stage, j):
        buf = stage % K1_NB
        a("s_mov_b32 s%d, %d" % (sWS, stage * 262144 + j * 32768))
        a("s_add_u32 m0, s%d, %d" % (sM0W, buf * K1_BUF + j * 1024))
        a("s_nop 0")
        a("buffer_load_dwordx4 v%d, %s, s%d offen%s lds" % (vWOFF, sr(S_W, 4), sWS, DMOD))

    NINIT = int(os.environ.get('NINIT', '4'))
    for s in range(NINIT):
        dma_x(s)
        dma_w(s, 0)
        dma_w(s, 1)
    make_srd(a, S_K, 18, 8 << 20)
    make_srd(a, S_V, 20, 8 << 20)
    a("s_lshl_b32 s%d, s%d, 23" % (sT0, sBLK))
    a("s_add_u32 s36, s30, s%d" % sT0)
    a("s_addc_u32 s37, s31, 0")
    make_srd(a, S_O, 36, 8 << 20)
    a("s_lshr_b32 s%d, s%d, 1" % (sBL, sWAVE))
    a("s_and_b32 s%d, s%d, 1" % (sHL, sWAVE))
    a("s_lshl_b32 s%d, s%d, 2" % (sB, sBG))
    a("s_add_u32 s%d, s%d, s%d" % (sB, sB, sBL))
    a("s_add_u32 s%d, s%d, s%d" % (sH, sH0, sHL))
    a("s_mov_b32 s%d, 0x3db504f3" % sSCALE)
    a("s_mov_b32 s%d, 0x3fb8aa3b" % sLOG2E)
    a("v_and_b32 v%d, 31, v%d" % (t0, L))
    a("v_lshrrev_b32 v%d, 5, v%d" % (t1, L))
    a("v_lshlrev_b32 v%d, 4, v%d" % (vVOFF, L))
    a("s_lshl_b32 s%d, s%d, 5" % (sKB, sB))
    a("s_add_u32 s%d, s%d, s%d" % (sKB, sKB, sH))
    a("s_lshl_b32 s%d, s%d, 13" % (sKB, sKB))
    a("s_add_u32 s%d, s%d, 4096" % (sKB2, sKB))

    def kv_load(idx):
        if idx < 8:
            a("buffer_load_dwordx4 %s, v%d, %s, s%d offen %s" % (vr(vKR + 4 * idx, 4), vVOFF, sr(S_K, 4), sKB if idx < 4 else sKB2, buf_off(1024 * (idx & 3))) + KVMOD)
        else:
            j = idx - 8
            a("buffer_load_dwordx4 %s, v%d, %s, s%d offen %s" % (vr(vVR + 4 * j, 4), vVOFF, sr(S_V, 4), sKB if j < 4 else sKB2, buf_off(1024 * (j & 3))) + KVMOD)

    a("v_bfe_u32 v%d, v%d, 2, 2" % (t2, t0))
    a("s_lshl_b32 s%d, s%d, 5" % (sT0, sBL))
    a("v_add_u32 v%d, s%d, v%d" % (t3, sT0, t0))
    a("v_lshlrev_b32 v%d, 6, v%d" % (t3, t3))
    for c in range(2):
        a("v_add_u32 v%d, %d, v%d" % (t4, 2 * c, t1))
        a("v_xor_b32 v%d, v%d, v%d" % (t4, t4, t2))
        a("v_lshl_add_u32 v%d, v%d, 4, v%d" % (vXR + c, t4, t3))
        for k in (1, 2):
            a("v_add_u32 v%d, %d, v%d" % (vXR + 2 * k + c, 2 * k * K1_BUF, vXR + c))
    a("v_lshrrev_b32 v%d, 4, v%d" % (t0, L))
    a("v_and_b32 v%d, 1, v%d" % (t1, t0))
    a("v_lshrrev_b32 v%d, 1, v%d" % (t0, t0))
    a("v_bfe_u32 v%d, v%d, 2, 2" % (t2, L))
    a("v_and_b32 v%d, 1, v%d" % (t3, L))
    a("v_bfe_u32 v%d, v%d, 1, 1" % (t4, L))
    a("v_lshl_add_u32 v%d, v%d, 1, v%d" % (t3, t3, t4))
    a("v_lshlrev_b32 v%d, 3, v%d" % (t3, t3))
    a("v_lshl_add_u32 v%d, v%d, 5, v%d" % (t3, t1, t3))
    a("v_lshl_add_u32 v%d, v%d, 3, v%d" % (t4, t0, t2))
    a("v_lshl_add_u32 v%d, v%d, 8, v%d" % (t4, t4, t3))
    a("s_lshl_b32 s%d, s%d, 13" % (sT0, sHL))
    a("s_add_u32 s%d, s%d, 8192" % (sT0, sT0))
    a("v_add_u32 v%d, s%d, v%d" % (t4, sT0, t4))
    for T in range(4):
        a("v_xor_b32 v%d, %d, v%d" % (t1, T, t2))
        a("v_lshl_add_u32 v%d, v%d, 6, v%d" % (vWR + T, t1, t4))
        for k in (1, 2):
            a("v_add_u32 v%d, %d, v%d" % (vWR + 4 * k + T, 2 * k * K1_BUF, vWR + T))
    for i in range(64):
        a("v_mov_b32 v%d, 0" % (vACC + i))

    def reads(stage, c, st):
        buf = stage % K1_NB
        third, bo = buf >> 1, (buf & 1) * K1_BUF
        a("ds_read_b128 %s, v%d %s" % (vr(vB[st], 4), vXR + 2 * third + c, ds_off(bo)))
        for T in range(4):
            for p in range(2):
                a("ds_read_b64_tr_b16 %s, v%d %s" % (vr(vA[st] + 4 * T + 2 * p, 2), vWR + 4 * third + T, ds_off(bo + (16 * c + 4 * p) * 256)))

    def mfma1(st, T, w):
        if w is not None:
            a("s_waitcnt lgkmcnt(%d)" % w)
        a("v_mfma_f32_32x32x16_bf16 %s, %s, %s, %s" % (vr(vACC + 16 * T, 16), vr(vA[st] + 4 * T, 4), vr(vB[st], 4), vr(vACC + 16 * T, 16)))

    make_srd(a, 4, 24, 4 << 20)
    a("s_lshr_b32 s%d, s2, 3" % sT0)
    a("s_lshl_b32 s%d, s%d, 5" % (sT0, sT0))
    a("s_lshl_b32 s%d, s%d, 2" % (sT1, sWAVE))
    a("s_add_u32 s%d, s%d, s%d" % (sT0, sT0, sT1))
    a("s_lshl_b32 s%d, s%d, 10" % (sT1, sHG))
    a("s_add_u32 s%d, s%d, s%d" % (sT0, sT0, sT1))
    a("s_lshl_b32 s9, s%d, 10" % sT0)
    stamp(a, 1)
    log = []
    for s in range(NINIT):
        log += [("d", s)] * 3
    D = K1_NB - 1
    nxt = NINIT
    for s in range(NST):
        idx = max([i for i, t in enumerate(log) if t == ("d", s)], default=-1)
        n = len(log) - 1 - idx
        a("s_waitcnt vmcnt(%d)" % min(n, 63))
        a("s_barrier")
        if s in (0, 8):
            stamp(a, {0: 2, 8: 3}[s])
        reads(s, 0, 0)
        todo = []
        while nxt < NST and nxt <= s + D and len(todo) < 2:
            todo.append(nxt)
            nxt += 1
        ops = []
        for t in todo:
            ops += [(dma_x, (t,)), (dma_w, (t, 0)), (dma_w, (t, 1))]
            log += [("d", t)] * 3
        if s > 0:
            for T in range(4):
                mfma1(1, T, None)
                k = (len(ops) + 3 - T) // (4 - T) if T < 3 else len(ops)
                for f, args in ops[:k]:
                    f(*args)
                ops = ops[k:]
        else:
            for f, args in ops:
                f(*args)
        a("s_waitcnt lgkmcnt(6)")
        reads(s, 1, 1)
        mfma1(0, 0, 15)
        if "kv2" in EXP:
            kvs = [2 * s, 2 * s + 1] if s < 8 else []
        elif "kv12" in EXP:
            kvs = ([2 * s, 2 * s + 1] if s < 4 else [s + 4]) if s < 12 else []
        else:
            kvs = [s]
        for q in kvs:
            kv_load(q)
            log.append(("kv", s))
        if s == 10:
            a("s_cmp_lg_u32 s%d, 0" % sWAVE)
            a("s_cbranch_scc1 F_NON_SKIP")
            make_srd(a, 12, 28, 256)
            a("s_memrealtime s[10:11]")
            a("s_waitcnt lgkmcnt(0)")
            a("s_or_b32 s%d, s10, 1" % sNT)
            a("v_mov_b32 v%d, s%d" % (vNON, sNT))
            a("v_mov_b32 v%d, 0" % (vNON + 1))
            a("v_mov_b32 v%d, 128" % (vNON + 2))
            a("v_cmp_eq_u32 vcc, 0, v%d" % L)
            a("s_and_saveexec_b64 s[10:11], vcc")
            a("buffer_atomic_cmpswap v[%d:%d], v%d, s[12:15], 0 offen sc0 sc1" % (vNON, vNON + 1, vNON + 2))
            a("s_mov_b64 exec, s[10:11]")
            a.label("F_NON_SKIP")


        mfma1(0, 1, 13)
        if "nowopf" not in EXP and "wolate" not in EXP and s in WOPF:
            i = WOPF.index(s)
            a("buffer_load_dwordx4 %s, v%d, s[4:7], s9 offen %s" % (vr(vJ + 4 * (i & 1), 4), vVOFF, buf_off(i * 1024)))
            log.append(("wo", s))
        mfma1(0, 2, 11)
        mfma1(0, 3, 9)
        a("s_waitcnt lgkmcnt(0)")
    for T in range(4):
        mfma1(1, T, None)
    stamp(a, 4)
    a("s_barrier")
    a("s_waitcnt vmcnt(0)")
    stamp(a, 5)
    if "wolate" in EXP:
        for i in range(4):
            a("buffer_load_dwordx4 %s, v%d, s[4:7], s9 offen %s" % (vr(vJ + 4 * (i & 1), 4), vVOFF, buf_off(i * 1024)))
    S_WO = 44
    make_srd(a, S_WO, 24, 4 << 20)
    u0, u1, u2, u3, u4 = vT + 5, vT + 6, vT + 7, vT + 8, vT + 9
    a("v_lshrrev_b32 v%d, 4, v%d" % (u0, L))
    a("v_and_b32 v%d, 15, v%d" % (u1, L))
    a("v_lshlrev_b32 v%d, 2, v%d" % (u2, u0))
    a("v_xor_b32 v%d, v%d, v%d" % (u1, u1, u2))
    a("v_lshlrev_b32 v%d, 8, v%d" % (u0, u0))
    a("v_lshl_add_u32 v%d, v%d, 4, v%d" % (u0, u1, u0))
    a("s_lshl_b32 s%d, s%d, 13" % (sT0, sWAVE))
    a("v_add_u32 v%d, s%d, v%d" % (u0, sT0, u0))
    a("v_lshrrev_b32 v%d, 4, v%d" % (u3, L))
    a("v_and_b32 v%d, 15, v%d" % (u4, L))
    a("v_xor_b32 v%d, v%d, v%d" % (u4, u4, u3))
    a("v_lshlrev_b32 v%d, 8, v%d" % (u3, u3))
    a("v_lshl_add_u32 v%d, v%d, 4, v%d" % (u3, u4, u3))
    a("v_add_u32 v%d, s%d, v%d" % (u3, sT0, u3))
    a("v_add_u32 v%d, 0x10000, v%d" % (u3, u3))
    for j in range(8):
        a("v_xor_b32 v%d, %d, v%d" % (u4, 64 * (j & 3), u3))
        a("ds_write_b128 v%d, %s %s" % (u4, vr(vKR + 4 * j, 4), ds_off(1024 * j)))
    for j in range(8):
        a("ds_write_b128 v%d, %s %s" % (u0, vr(vVR + 4 * j, 4), ds_off(1024 * j)))
    a("v_and_b32 v%d, 31, v%d" % (u1, L))
    a("v_lshrrev_b32 v%d, 5, v%d" % (u2, L))
    a("v_and_b32 v%d, 15, v%d" % (u4, u1))
    a("v_xor_b32 v%d, v%d, v%d" % (u4, u4, u2))
    a("v_lshlrev_b32 v%d, 8, v%d" % (u1, u1))
    a("v_lshl_add_u32 v%d, v%d, 4, v%d" % (u1, u4, u1))
    a("v_add_u32 v%d, s%d, v%d" % (u1, sT0, u1))
    a("v_add_u32 v%d, 0x10000, v%d" % (u1, u1))
    a("s_waitcnt lgkmcnt(7)")
    for jj in range(8):
        a("v_xor_b32 v%d, %d, v%d" % (u4, 32 * jj, u1))
        a("ds_read_b128 %s, v%d" % (vr(vKR + 4 * jj, 4), u4))
    a("v_lshl_add_u32 v%d, v%d, 2, v%d" % (t4, t0, t2))
    a("v_lshl_add_u32 v%d, v%d, 8, v%d" % (t4, t4, t3))
    a("v_add_u32 v%d, s%d, v%d" % (t4, sT0, t4))
    for T in range(4):
        a("v_xor_b32 v%d, %d, v%d" % (t1, T, t2))
        a("v_lshl_add_u32 v%d, v%d, 6, v%d" % (vWR + T, t1, t4))
    vQ = 128
    for i in range(32):
        a("v_cvt_pk_bf16_f32 v%d, v%d, v%d" % (vQ + i, vACC + 2 * i, vACC + 2 * i + 1))
    vS = 0
    for j in range(8):
        a("s_waitcnt lgkmcnt(%d)" % (7 - j))
        a("v_mfma_f32_32x32x16_bf16 %s, %s, %s, %s" % (vr(vS, 16), vr(vKR + 4 * j, 4), vr(vQ + 4 * j, 4), "0" if j == 0 else vr(vS, 16)))
    vVF = 32
    for T in range(4):
        for c2 in range(2):
            for p in range(2):
                a("ds_read_b64_tr_b16 %s, v%d %s" % (vr(vVF + 8 * T + 4 * c2 + 2 * p, 2), vWR + T, ds_off((16 * c2 + 8 * p) * 256)))
    vP = 16
    vE = 96
    for i in range(8):
        a("v_cvt_pk_bf16_f32 v%d, v%d, v%d" % (vP + i, vS + 2 * i, vS + 2 * i + 1))
    for i in range(8):
        a("v_lshlrev_b32 v%d, 16, v%d" % (vE + 2 * i, vP + i))
        a("v_and_b32 v%d, 0xffff0000, v%d" % (vE + 2 * i + 1, vP + i))
    for i in range(16):
        a("v_mul_f32 v%d, s%d, v%d" % (vE + i, sSCALE, vE + i))
    for i in range(8):
        a("v_cvt_pk_bf16_f32 v%d, v%d, v%d" % (vP + i, vE + 2 * i, vE + 2 * i + 1))
    for i in range(8):
        a("v_lshlrev_b32 v%d, 16, v%d" % (vE + 2 * i, vP + i))
        a("v_and_b32 v%d, 0xffff0000, v%d" % (vE + 2 * i + 1, vP + i))
    m0_, m1_ = t0, t1
    a("v_max3_f32 v%d, v%d, v%d, v%d" % (m0_, vE, vE + 1, vE + 2))
    for i in range(3, 15, 2):
        a("v_max3_f32 v%d, v%d, v%d, v%d" % (m0_, m0_, vE + i, vE + i + 1))
    a("v_max_f32 v%d, v%d, v%d" % (m0_, m0_, vE + 15))
    a("v_mov_b32 v%d, v%d" % (m1_, m0_))
    a("s_nop 1")
    a("v_permlane32_swap_b32 v%d, v%d" % (m0_, m1_))
    a("s_nop 1")
    a("v_max_f32 v%d, v%d, v%d" % (m0_, m0_, m1_))
    a("v_mul_f32 v%d, s%d, v%d" % (m0_, sLOG2E, m0_))
    for i in range(16):
        a("v_fma_f32 v%d, v%d, s%d, -v%d" % (vE + i, vE + i, sLOG2E, m0_))
    for i in range(16):
        a("v_exp_f32 v%d, v%d" % (vE + i, vE + i))
    a("s_nop 0")
    s0_, s1_ = t2, t3
    a("v_add_f32 v%d, v%d, v%d" % (s0_, vE, vE + 1))
    a("v_add_f32 v%d, v%d, v%d" % (s1_, vE + 2, vE + 3))
    for i in range(4, 16, 2):
        a("v_add_f32 v%d, v%d, v%d" % (s0_, s0_, vE + i))
        a("v_add_f32 v%d, v%d, v%d" % (s1_, s1_, vE + i + 1))
    a("v_add_f32 v%d, v%d, v%d" % (s0_, s0_, s1_))
    a("v_mov_b32 v%d, v%d" % (s1_, s0_))
    a("s_nop 1")
    a("v_permlane32_swap_b32 v%d, v%d" % (s0_, s1_))
    a("s_nop 1")
    a("v_add_f32 v%d, v%d, v%d" % (s0_, s0_, s1_))
    a("v_rcp_f32 v%d, v%d" % (s0_, s0_))
    a("s_nop 0")
    for i in range(16):
        a("v_mul_f32 v%d, v%d, v%d" % (vE + i, vE + i, s0_))
    for i in range(8):
        a("v_cvt_pk_bf16_f32 v%d, v%d, v%d" % (vP + i, vE + 2 * i, vE + 2 * i + 1))
    vO = 64
    a("s_waitcnt lgkmcnt(0)")
    a("s_nop 1")
    for T in range(4):
        for c2 in range(2):
            a("v_mfma_f32_32x32x16_bf16 %s, %s, %s, %s" % (vr(vO + 16 * T, 16), vr(vVF + 8 * T + 4 * c2, 4), vr(vP + 4 * c2, 4), "0" if c2 == 0 else vr(vO + 16 * T, 16)))
    a("v_lshrrev_b32 v%d, 4, v%d" % (t0, L))
    a("v_and_b32 v%d, 15, v%d" % (t1, L))
    a("v_lshlrev_b32 v%d, 13, v%d" % (t0, t0))
    a("v_lshl_add_u32 v%d, v%d, 4, v%d" % (t0, t1, t0))
    a("s_lshl_b32 s%d, s%d, 18" % (sOB, sB))
    a("s_lshl_b32 s%d, s%d, 8" % (sT0, sH))
    a("s_add_u32 s%d, s%d, s%d" % (sOB, sOB, sT0))
    a("s_nop 7")
    a("s_nop 3")
    vOP = 128
    for T in range(4):
        for jj in range(2):
            for i in range(4):
                a("v_cvt_pk_bf16_f32 v%d, v%d, v%d" % (vOP + 8 * T + 4 * jj + i, vO + 16 * T + 8 * jj + 2 * i, vO + 16 * T + 8 * jj + 2 * i + 1))
            a("v_xor_b32 v%d, %d, v%d" % (u4, 32 * (2 * T + jj), u1))
            a("ds_write_b128 v%d, %s" % (u4, vr(vOP + 8 * T + 4 * jj, 4)))
    a("s_waitcnt lgkmcnt(0)")
    for j in range(8):
        a("v_xor_b32 v%d, %d, v%d" % (u4, 64 * (j & 3), u3))
        a("ds_read_b128 %s, v%d %s" % (vr(vO + 4 * j, 4), u4, ds_off(1024 * j)))
    for j in range(8):
        a("s_add_u32 s%d, s%d, %d" % (sT0, sOB, j * 32768))
        a("s_waitcnt lgkmcnt(%d)" % (7 - j))
        a("buffer_store_dwordx4 %s, v%d, %s, s%d offen" % (vr(vO + 4 * j, 4), t0, sr(S_O, 4), sT0))
    stamp(a, 6)
    a("s_waitcnt vmcnt(0)")
    a("s_barrier")
    stamp(a, 7)

    S_A, S_B, S_P = S_O, S_WO, 52
    sG, sWM, sWN = 61, 62, 65
    sM0A, sM0B = 74, 75
    sAS, sBS = 76, 77
    sABASE, sBBASE = 78, 79
    sPB, sROT = 66, 64
    wA = [64, 72]
    wB = [80, 88]
    wAR = 96
    wBR = 108
    wAOFF = 114
    wBOFF = 116
    a("s_lshl_b32 s%d, s%d, 23" % (sT0, sBLK))
    a("s_add_u32 s%d, s%d, 0x%x" % (sT0, sT0, P_WS_OFF))
    a("s_add_u32 s36, s30, s%d" % sT0)
    a("s_addc_u32 s37, s31, 0")
    make_srd(a, S_P, 36, 8 << 20)
    a("s_lshr_b32 s%d, s%d, 2" % (sG, sWAVE))
    a("s_bfe_u32 s%d, s%d, 0x10001" % (sWM, sWAVE))
    a("s_and_b32 s%d, s%d, 1" % (sWN, sWAVE))
    a("s_lshl_b32 s%d, s%d, 2" % (sROT, sHP))
    a("s_lshl_b32 s%d, s%d, 11" % (sABASE, sHG))
    a("s_lshl_b32 s%d, s%d, 20" % (sBBASE, sHG))
    a("v_lshrrev_b32 v%d, 3, v%d" % (t0, L))
    a("v_and_b32 v%d, 7, v%d" % (t1, L))
    a("v_lshrrev_b32 v%d, 1, v%d" % (t2, t0))
    a("s_lshl_b32 s%d, s%d, 7" % (sT0, sBG))
    a("s_lshl_b32 s%d, s%d, 4" % (sT1, sWAVE))
    a("s_add_u32 s%d, s%d, s%d" % (sT0, sT0, sT1))
    for i in range(2):
        a("v_add_u32 v%d, %d, v%d" % (t3, 4 * i, t2))
        a("v_xor_b32 v%d, v%d, v%d" % (t3, t3, t1))
        a("v_add_u32 v%d, s%d, v%d" % (t4, sT0, t0))
        a("v_add_u32 v%d, %d, v%d" % (t4, 8 * i, t4))
        a("v_lshlrev_b32 v%d, 13, v%d" % (t4, t4))
        a("v_lshl_add_u32 v%d, v%d, 4, v%d" % (wAOFF + i, t3, t4))
    a("v_lshrrev_b32 v%d, 4, v%d" % (t0, L))
    a("v_and_b32 v%d, 15, v%d" % (t1, L))
    a("v_lshlrev_b32 v%d, 2, v%d" % (t2, t0))
    a("v_xor_b32 v%d, v%d, v%d" % (t1, t1, t2))
    a("s_lshl_b32 s%d, s%d, 3" % (sT0, sWAVE))
    a("v_add_u32 v%d, s%d, v%d" % (t0, sT0, t0))
    a("v_lshlrev_b32 v%d, 10, v%d" % (t0, t0))
    a("v_lshl_add_u32 v%d, v%d, 4, v%d" % (t0, t1, t0))
    a("s_lshl_b32 s%d, s%d, 8" % (sT1, sHP))
    a("v_add_u32 v%d, s%d, v%d" % (wBOFF, sT1, t0))
    a("s_lshl_b32 s%d, s%d, 11" % (sM0A, sWAVE))
    a("s_add_u32 s%d, s%d, 16384" % (sM0B, sM0A))

    def dma2_setup(stage):
        a("s_add_u32 s%d, s%d, %d" % (sT3, sROT, stage))
        a("s_and_b32 s%d, s%d, 15" % (sT3, sT3))
        a("s_lshl_b32 s%d, s%d, 7" % (sAS, sT3))
        a("s_add_u32 s%d, s%d, s%d" % (sAS, sAS, sABASE))
        a("s_lshl_b32 s%d, s%d, 16" % (sT3, sT3))
        a("s_add_u32 s%d, s%d, s%d" % (sT3, sT3, sBBASE))

    def dma2_a(stage, i):
        buf = stage % K2_NB
        a("s_add_u32 m0, s%d, %d" % (sM0A, buf * K2_BUF + i * 1024))
        a("s_nop 0")
        a("buffer_load_dwordx4 v%d, %s, s%d offen lds" % (wAOFF + i, sr(S_A, 4), sAS))

    def dma2_b(stage, j):
        buf = stage % K2_NB
        a("s_add_u32 s%d, s%d, %d" % (sBS, sT3, j * 4096))
        a("s_add_u32 m0, s%d, %d" % (sM0B, buf * K2_BUF + j * 1024))
        a("s_nop 0")
        a("buffer_load_dwordx4 v%d, %s, s%d offen lds" % (wBOFF, sr(S_B, 4), sBS))

    def dma2(stage):
        dma2_setup(stage)
        dma2_a(stage, 0)
        dma2_a(stage, 1)
        dma2_b(stage, 0)
        dma2_b(stage, 1)

    D2 = K2_NB - 1
    log2 = []
    S_D = 48
    a("s_add_u32 s36, s30, 0x%x" % F_WS_OFF)
    a("s_addc_u32 s37, s31, 0")
    make_srd(a, S_D, 36, 16384)
    sG1, sCNT, sNON = 67, 69, 68
    sXCC = 12
    a("s_cmp_lg_u32 s%d, 0" % sWAVE)
    a("s_cbranch_scc1 F_S1_SKIP")
    a("v_readfirstlane_b32 s%d, v%d" % (sNON, vNON))
    a("s_and_b32 s%d, s2, 7" % sT0)
    a("s_lshl_b32 s%d, s%d, 3" % (sG1, sT0))
    a("s_add_u32 s%d, s%d, s%d" % (sG1, sG1, sBG))
    a("s_lshl_b32 s%d, s%d, 7" % (sG1, sG1))
    a("s_cmp_eq_u32 s%d, 0" % sNON)
    a("s_cselect_b32 s%d, s%d, s%d" % (sNON, sNT, sNON))
    if "staticid" not in EXP:
        a("s_lshl_b32 s3, s3, 1")
        a("s_add_u32 s%d, s%d, s3" % (sNON, sNON))
    a("s_getreg_b32 s%d, hwreg(HW_REG_XCC_ID)" % sXCC)
    a("s_and_b32 s%d, s%d, 7" % (sXCC, sXCC))

    def publish(base):
        a("s_lshl_b32 s%d, s%d, 3" % (sT0, sHP))
        a("s_add_u32 s%d, s%d, s%d" % (sT0, sT0, sG1))
        a("v_mov_b32 v%d, s%d" % (t0, sT0))
        a("v_mov_b32 v%d, s%d" % (t2, sNON))
        a("v_mov_b32 v%d, s%d" % (t3, sXCC))
        a("v_cmp_eq_u32 vcc, 0, v%d" % L)
        a("s_and_saveexec_b64 s[10:11], vcc")
        a("buffer_store_dwordx2 v[%d:%d], v%d, %s, 0 offen offset:%d sc0 sc1" % (t2, t3, t0, sr(S_D, 4), base))
        a("s_mov_b64 exec, s[10:11]")

    def waitall(tag, base):
        a("v_and_b32 v%d, 3, v%d" % (t0, L))
        a("v_lshlrev_b32 v%d, 3, v%d" % (t0, t0))
        a("v_add_u32 v%d, s%d, v%d" % (t0, sG1, t0))
        a("s_mov_b32 s%d, 0" % sCNT)
        a.label("%s_POLL" % tag)
        a("buffer_load_dwordx2 v[%d:%d], v%d, %s, 0 offen offset:%d sc0 sc1" % (t2, t3, t0, sr(S_D, 4), base))
        a("s_waitcnt vmcnt(0)")
        a("v_cmp_ne_u32 vcc, s%d, v%d" % (sNON, t2))
        a("s_nop 3")
        a("s_cmp_eq_u64 vcc, 0")
        a("s_cbranch_scc1 %s_OK" % tag)
        a("s_sleep 2")
        a("s_add_u32 s%d, s%d, 1" % (sCNT, sCNT))
        a("s_cmp_lt_u32 s%d, %d" % (sCNT, SPIN_MAX))
        a("s_cbranch_scc1 %s_POLL" % tag)
        a.label("%s_OK" % tag)

    publish(0)
    a.label("F_S1_SKIP")

    def peer_wait():
        a("s_cmp_lg_u32 s%d, 0" % sWAVE)
        a("s_cbranch_scc1 F_S1_DONE")
        waitall("F_S1A", 0)
        a("v_cmp_ne_u32 vcc, s%d, v%d" % (sXCC, t3))
        a("s_nop 3")
        if "forceslow" not in EXP:
            a("s_cmp_eq_u64 vcc, 0")
            a("s_cbranch_scc1 F_S1_DONE")
        a("buffer_wbl2 sc1")
        a("s_waitcnt vmcnt(0)")
        publish(64)
        waitall("F_S1B", 64)
        a("buffer_inv sc1")
        a("s_waitcnt vmcnt(0)")
        a.label("F_S1_DONE")

    stamp(a, 8)
    NINIT2 = 2
    for s in range(NINIT2):
        dma2(s)
        log2 += [("a", s)] * 2 + [("b", s)] * 2
    if STAMP and "p2diag" in EXP:
        stamp(a, 13)
        a("s_waitcnt vmcnt(14)")
        stamp(a, 2)
        a("s_waitcnt vmcnt(12)")
        stamp(a, 3)
    a("v_and_b32 v%d, 31, v%d" % (t0, L))
    a("v_lshrrev_b32 v%d, 5, v%d" % (t1, L))
    a("v_bfe_u32 v%d, v%d, 1, 3" % (t2, t0))
    a("s_lshl_b32 s%d, s%d, 6" % (sT0, sWM))
    a("v_add_u32 v%d, s%d, v%d" % (t3, sT0, t0))
    a("v_lshlrev_b32 v%d, 7, v%d" % (t3, t3))
    a("s_lshl_b32 s%d, s%d, 2" % (sT1, sG))
    for cc in range(2):
        a("v_add_u32 v%d, s%d, v%d" % (t4, sT1, t1))
        a("v_add_u32 v%d, %d, v%d" % (t4, 2 * cc, t4))
        a("v_xor_b32 v%d, v%d, v%d" % (t4, t4, t2))
        a("v_lshl_add_u32 v%d, v%d, 4, v%d" % (wAR + 2 * cc, t4, t3))
        a("v_add_u32 v%d, 4096, v%d" % (wAR + 2 * cc + 1, wAR + 2 * cc))
    a("v_lshrrev_b32 v%d, 4, v%d" % (t0, L))
    a("v_and_b32 v%d, 1, v%d" % (t1, t0))
    a("v_lshrrev_b32 v%d, 1, v%d" % (t0, t0))
    a("v_bfe_u32 v%d, v%d, 2, 2" % (t2, L))
    a("v_and_b32 v%d, 1, v%d" % (t3, L))
    a("v_bfe_u32 v%d, v%d, 1, 1" % (t4, L))
    a("v_lshl_add_u32 v%d, v%d, 1, v%d" % (t3, t3, t4))
    a("v_lshlrev_b32 v%d, 3, v%d" % (t3, t3))
    a("v_lshl_add_u32 v%d, v%d, 5, v%d" % (t3, t1, t3))
    a("v_lshl_add_u32 v%d, v%d, 3, v%d" % (t4, t0, t2))
    a("s_lshl_b32 s%d, s%d, 5" % (sT0, sG))
    a("v_add_u32 v%d, s%d, v%d" % (t4, sT0, t4))
    a("v_lshl_add_u32 v%d, v%d, 8, v%d" % (t4, t4, t3))
    a("v_add_u32 v%d, 16384, v%d" % (t4, t4))
    a("s_lshl_b32 s%d, s%d, 1" % (sT1, sWN))
    for nt in range(2):
        a("s_add_u32 s%d, s%d, %d" % (sT2, sT1, nt))
        a("v_xor_b32 v%d, s%d, v%d" % (t1, sT2, t2))
        a("v_lshl_add_u32 v%d, v%d, 6, v%d" % (wBR + nt, t1, t4))
    for k in (1, 2):
        for i in range(4):
            a("v_add_u32 v%d, 0x%x, v%d" % (wAR + 4 * k + i, k * 65536, wAR + i))
        for i in range(2):
            a("v_add_u32 v%d, 0x%x, v%d" % (wBR + 2 * k + i, k * 65536, wBR + i))
    for i in range(64):
        a("v_mov_b32 v%d, 0" % (vACC + i))

    def reads2(stage, cc, st):
        buf = stage % K2_NB
        k, bo = buf >> 1, (buf & 1) * K2_BUF
        for mt in range(2):
            a("ds_read_b128 %s, v%d %s" % (vr(wA[st] + 4 * mt, 4), wAR + 4 * k + 2 * cc + mt, ds_off(bo)))
        for nt in range(2):
            for p in range(2):
                a("ds_read_b64_tr_b16 %s, v%d %s" % (vr(wB[st] + 4 * nt + 2 * p, 2), wBR + 2 * k + nt, ds_off(bo + (16 * cc + 4 * p) * 256)))

    def mf(st, mt, nt, w):
        if w is not None:
            a("s_waitcnt lgkmcnt(%d)" % w)
        acc = vACC + 32 * mt + 16 * nt
        a("v_mfma_f32_32x32x16_bf16 %s, %s, %s, %s" % (vr(acc, 16), vr(wB[st] + 4 * nt, 4), vr(wA[st] + 4 * mt, 4), vr(acc, 16)))

    WAITS = int(os.environ.get("WAITS", "2"))
    nx2 = NINIT2
    for s in range(NST):
        if s == WAITS:
            peer_wait()
        idx = max(i for i, t in enumerate(log2) if t in (("a", s), ("b", s)))
        a("s_waitcnt vmcnt(%d)" % (len(log2) - 1 - idx))
        a("s_barrier")
        if s == 0:
            stamp(a, 9)
        reads2(s, 0, 0)
        todo = []
        while (s >= WAITS or nx2 < 4) and nx2 < NST and nx2 <= s + D2 and len(todo) < 2:
            todo.append(nx2)
            nx2 += 1
        ops = []
        for t in todo:
            ops += [[(dma2_setup, (t,)), (dma2_a, (t, 0))], [(dma2_a, (t, 1))], [(dma2_b, (t, 0))], [(dma2_b, (t, 1))]]
            log2 += [("a", t)] * 2 + [("b", t)] * 2
        order = ((0, 0), (1, 0), (0, 1), (1, 1))
        for q in range(4):
            if s > 0:
                mf(1, order[q][0], order[q][1], None)
            k = (len(ops) + 3 - q) // (4 - q) if q < 3 else len(ops)
            for grp in ops[:k]:
                for fn, args in grp:
                    fn(*args)
            ops = ops[k:]
        if "wbmid" in EXP and s == 11:
            a("s_cmp_lg_u32 s%d, 7" % sWAVE)
            a("s_cbranch_scc1 F_WB_SKIP")
            if "wb1" in EXP:
                a("s_lshr_b32 s%d, s2, 3" % sT0)
                a("s_cmp_lg_u32 s%d, 0" % sT0)
                a("s_cbranch_scc1 F_WB_SKIP")
            a("buffer_wbl2 sc1")
            a.label("F_WB_SKIP")
        reads2(s, 1, 1)
        mf(0, 0, 0, 8)
        mf(0, 1, 0, None)
        mf(0, 0, 1, 6)
        mf(0, 1, 1, None)
        a("s_waitcnt lgkmcnt(0)")
    for mt, nt in ((0, 0), (1, 0), (0, 1), (1, 1)):
        mf(1, mt, nt, None)
    stamp(a, 10)
    a("s_barrier")
    RS = 528
    GS = 128 * RS
    a("v_and_b32 v%d, 31, v%d" % (t0, L))
    a("v_lshrrev_b32 v%d, 5, v%d" % (t1, L))
    a("s_lshl_b32 s%d, s%d, 6" % (sT0, sWM))
    a("v_add_u32 v%d, s%d, v%d" % (t0, sT0, t0))
    a("s_movk_i32 s%d, %d" % (sT1, RS))
    a("v_mul_lo_u32 v%d, v%d, s%d" % (t0, t0, sT1))
    a("v_lshl_add_u32 v%d, v%d, 5, v%d" % (t0, t1, t0))
    a("s_mul_i32 s%d, s%d, %d" % (sT0, sG, GS))
    a("s_lshl_b32 s%d, s%d, 8" % (sT1, sWN))
    a("s_add_u32 s%d, s%d, s%d" % (sT0, sT0, sT1))
    a("v_add_u32 v%d, s%d, v%d" % (t0, sT0, t0))
    a("s_nop 3")
    for mt in range(2):
        for nt in range(2):
            for jj in range(2):
                for qq in range(2):
                    a("ds_write_b128 v%d, %s %s" % (t0, vr(vACC + 32 * mt + 16 * nt + 8 * jj + 4 * qq, 4), ds_off(mt * 32 * RS + (nt * 32 + 16 * jj + 4 * qq) * 4)))
        a("s_waitcnt lgkmcnt(4)")
    a("s_waitcnt lgkmcnt(0)")
    a("s_barrier")
    a("v_lshrrev_b32 v%d, 5, v%d" % (t1, L))
    a("v_and_b32 v%d, 31, v%d" % (t2, L))
    a("s_lshl_b32 s%d, s%d, 4" % (sT0, sWAVE))
    a("v_add_u32 v%d, s%d, v%d" % (t3, sT0, t1))
    a("s_movk_i32 s%d, %d" % (sT1, RS))
    a("v_mul_lo_u32 v%d, v%d, s%d" % (t3, t3, sT1))
    a("v_lshl_add_u32 v%d, v%d, 4, v%d" % (t3, t2, t3))
    a("v_add_u32 v%d, 0x%x, v%d" % (t4, GS, t3))

    def rd(i):
        a("ds_read_b128 %s, v%d %s" % (vr(vACC + 4 * i, 4), t3, ds_off(2 * RS * i)))
        a("ds_read_b128 %s, v%d %s" % (vr(vACC + 32 + 4 * i, 4), t4, ds_off(2 * RS * i)))
    PB16 = "pf32" not in EXP
    RSH = 10 if PB16 else 11
    PSH = 20 if PB16 else 21
    a("v_lshlrev_b32 v%d, %d, v%d" % (t1, RSH, t1))
    a("v_lshl_add_u32 v%d, v%d, %d, v%d" % (t1, t2, 3 if PB16 else 4, t1))
    a("s_lshl_b32 s%d, s%d, 7" % (sPB, sBG))
    a("s_lshl_b32 s%d, s%d, %d" % (sPB, sPB, RSH))
    a("s_lshl_b32 s%d, s%d, %d" % (sT1, sHP, 8 if PB16 else 9))
    a("s_add_u32 s%d, s%d, s%d" % (sPB, sPB, sT1))
    a("s_lshr_b32 s%d, s%d, 1" % (sT1, sWAVE))
    a("s_cmp_eq_u32 s%d, s%d" % (sT1, sHG))
    a("s_cbranch_scc1 F_P_SKIP")
    for i in range(6):
        rd(i)
    a("s_lshl_b32 s%d, s%d, %d" % (sT0, sT0, RSH))
    a("s_add_u32 s%d, s%d, s%d" % (sT0, sT0, sPB))
    a("s_lshl_b32 s%d, s%d, %d" % (sT1, sHG, PSH))
    a("s_add_u32 s%d, s%d, s%d" % (sT0, sT0, sT1))
    for i in range(8):
        a("s_waitcnt lgkmcnt(%d)" % (10 if i < 2 else 2 * (7 - i)))
        if i < 2:
            rd(6 + i)
        for q in range(4):
            a("v_add_f32 v%d, v%d, v%d" % (vACC + 4 * i + q, vACC + 4 * i + q, vACC + 32 + 4 * i + q))
        a("s_add_u32 s%d, s%d, %d" % (sT1, sT0, i * (2 << RSH)))
        if PB16:
            a("v_cvt_pk_bf16_f32 v%d, v%d, v%d" % (vACC + 4 * i, vACC + 4 * i, vACC + 4 * i + 1))
            a("v_cvt_pk_bf16_f32 v%d, v%d, v%d" % (vACC + 4 * i + 1, vACC + 4 * i + 2, vACC + 4 * i + 3))
            a("buffer_store_dwordx2 %s, v%d, %s, s%d offen sc1" % (vr(vACC + 4 * i, 2), t1, sr(S_P, 4), sT1))
        else:
            a("buffer_store_dwordx4 %s, v%d, %s, s%d offen sc1" % (vr(vACC + 4 * i, 4), t1, sr(S_P, 4), sT1))
    a.label("F_P_SKIP")
    stamp(a, 11)
    a("s_waitcnt vmcnt(0)")
    a("s_barrier")
    stamp(a, 12)
    a("s_cmp_lg_u32 s%d, 0" % sWAVE)
    a("s_cbranch_scc1 F_S2_DONE")
    a("s_lshl_b32 s%d, s%d, 5" % (sG1, sBLK))
    a("s_lshl_b32 s%d, s%d, 2" % (sT0, sBG))
    a("s_add_u32 s%d, s%d, s%d" % (sG1, sG1, sT0))
    a("s_add_u32 s%d, s%d, s%d" % (sG1, sG1, sHP))
    a("s_add_u32 s%d, s%d, 64" % (sG1, sG1))
    a("s_lshl_b32 s%d, s%d, 7" % (sG1, sG1))
    a("s_lshl_b32 s%d, s%d, 3" % (sT0, sHG))
    a("s_add_u32 s%d, s%d, s%d" % (sT0, sT0, sG1))
    a("v_mov_b32 v%d, s%d" % (t0, sT0))
    a("v_mov_b32 v%d, s%d" % (t2, sNON))
    a("v_mov_b32 v%d, s%d" % (t3, sXCC))
    a("v_cmp_eq_u32 vcc, 0, v%d" % L)
    a("s_and_saveexec_b64 s[10:11], vcc")
    a("buffer_store_dwordx2 v[%d:%d], v%d, %s, 0 offen sc0 sc1" % (t2, t3, t0, sr(S_D, 4)))
    a("s_mov_b64 exec, s[10:11]")
    waitall("F_S2A", 0)
    a.label("F_S2_DONE")
    a("s_barrier")
    stamp(a, 13)
    S_OUT = 40
    make_srd(a, S_OUT, 26, 2 << 20)
    a("s_lshl_b32 s%d, s%d, 5" % (sT0, sHG))
    a("s_lshl_b32 s%d, s%d, 2" % (sT1, sWAVE))
    a("s_add_u32 s%d, s%d, s%d" % (sT0, sT0, sT1))
    a("v_lshrrev_b32 v%d, 5, v%d" % (t2, L))
    a("v_and_b32 v%d, 31, v%d" % (t3, L))
    a("v_add_u32 v%d, s%d, v%d" % (t4, sT0, t2))
    a("s_movk_i32 s%d, %d" % (sT1, RS))
    a("v_mul_lo_u32 v%d, v%d, s%d" % (t4, t4, sT1))
    a("v_lshl_add_u32 v%d, v%d, 4, v%d" % (t4, t3, t4))
    a("v_add_u32 v%d, 0x%x, v%d" % (t0, GS, t4))
    a("s_lshl_b32 s%d, s%d, %d" % (sT1, sT0, RSH))
    a("s_add_u32 s%d, s%d, s%d" % (sT1, sT1, sPB))
    for d in range(1, 4):
        a("s_add_u32 s%d, s%d, %d" % (sT2, sHG, d))
        a("s_and_b32 s%d, s%d, 3" % (sT2, sT2))
        a("s_lshl_b32 s%d, s%d, %d" % (sT2, sT2, PSH))
        a("s_add_u32 s%d, s%d, s%d" % (sT2, sT2, sT1))
        a("s_add_u32 s%d, s%d, %d" % (sT3, sT2, 2 << RSH))
        if PB16:
            a("buffer_load_dwordx2 %s, v%d, %s, s%d offen sc1" % (vr(44 + 4 * (d - 1), 2), t1, sr(S_P, 4), sT2))
            a("buffer_load_dwordx2 %s, v%d, %s, s%d offen sc1" % (vr(44 + 4 * (d - 1) + 2, 2), t1, sr(S_P, 4), sT3))
        else:
            a("buffer_load_dwordx4 %s, v%d, %s, s%d offen sc1" % (vr(16 + 8 * (d - 1), 4), t1, sr(S_P, 4), sT2))
            a("buffer_load_dwordx4 %s, v%d, %s, s%d offen sc1" % (vr(16 + 8 * (d - 1) + 4, 4), t1, sr(S_P, 4), sT3))
    for i in range(2):
        a("ds_read_b128 %s, v%d %s" % (vr(4 * i, 4), t4, ds_off(2 * RS * i)))
        a("ds_read_b128 %s, v%d %s" % (vr(8 + 4 * i, 4), t0, ds_off(2 * RS * i)))
    a("v_lshlrev_b32 v%d, 11, v%d" % (t2, t2))
    a("v_lshl_add_u32 v%d, v%d, 3, v%d" % (t2, t3, t2))
    a("s_lshl_b32 s%d, s%d, 7" % (sT1, sBG))
    a("s_add_u32 s%d, s%d, s%d" % (sT1, sT1, sT0))
    a("s_lshl_b32 s%d, s%d, 11" % (sT1, sT1))
    a("s_lshl_b32 s%d, s%d, 10" % (sT2, sBLK))
    a("s_add_u32 s%d, s%d, s%d" % (sT1, sT1, sT2))
    a("s_lshl_b32 s%d, s%d, 8" % (sT2, sHP))
    a("s_add_u32 s%d, s%d, s%d" % (sT1, sT1, sT2))
    a("s_add_u32 s%d, s%d, 4096" % (sT2, sT1))
    a("s_waitcnt lgkmcnt(0)")
    for q in range(8):
        a("v_add_f32 v%d, v%d, v%d" % (q, q, 8 + q))
    a("s_waitcnt vmcnt(0)")
    if PB16:
        for d in range(3):
            for q in range(4):
                a("v_lshlrev_b32 v%d, 16, v%d" % (16 + 8 * d + 2 * q, 44 + 4 * d + q))
                a("v_and_b32 v%d, 0xffff0000, v%d" % (16 + 8 * d + 2 * q + 1, 44 + 4 * d + q))
    for q in range(8):
        a("v_add_f32 v%d, v%d, v%d" % (16 + q, 16 + q, 24 + q))
        a("v_add_f32 v%d, v%d, v%d" % (q, q, 32 + q))
    for q in range(8):
        a("v_add_f32 v%d, v%d, v%d" % (q, q, 16 + q))
    for q in range(4):
        a("v_cvt_pk_bf16_f32 v%d, v%d, v%d" % (40 + q, 2 * q, 2 * q + 1))
    a("buffer_store_dwordx2 v[40:41], v%d, %s, s%d offen" % (t2, sr(S_OUT, 4), sT1))
    a("buffer_store_dwordx2 v[42:43], v%d, %s, s%d offen" % (t2, sr(S_OUT, 4), sT2))
    if STAMP:
        a("s_waitcnt vmcnt(0)")
        stamp(a, 2)
        a("s_memrealtime s[98:99]")
        a("s_waitcnt lgkmcnt(0)")
        a("s_mov_b32 s97, s98")
        stamp_dump(a, 0, 40, vTID)
    if "diag" in EXP:
        a("s_waitcnt vmcnt(0)")
        a("s_memrealtime s[98:99]")
        a("s_waitcnt lgkmcnt(0)")
        a("s_add_u32 s36, s30, 0x%x" % (60 << 20))
        a("s_addc_u32 s37, s31, 0")
        make_srd(a, 40, 36, 65536)
        a("s_lshl_b32 s3, s2, 3")
        a("v_mov_b32 v0, s3")
        a("v_mov_b32 v2, s96")
        a("v_mov_b32 v3, s98")
        a("s_cmp_lg_u32 s%d, 0" % sWAVE)
        a("s_cbranch_scc1 F_DONE")
        a("buffer_store_dwordx2 v[2:3], v0, s[40:43], 0 offen")
    if "diag2" in EXP:
        a("s_waitcnt vmcnt(0)")
        rt(a, 6)
        a("s_cmp_lg_u32 s%d, 0" % sWAVE)
        a("s_cbranch_scc1 F_DONE")
        a("s_cmp_lg_u32 s2, 0")
        a("s_cbranch_scc1 F_DONE")
        make_srd(a, 40, 28, 256)
        a("v_mov_b32 v0, 32")
        for i in range(7):
            a("v_mov_b32 v%d, s%d" % (2 + i, 88 + i))
        a("v_cmp_eq_u32 vcc, 0, v%d" % L)
        a("s_and_saveexec_b64 s[10:11], vcc")
        a("buffer_store_dwordx4 v[2:5], v0, s[40:43], 0 offen")
        a("buffer_store_dwordx4 v[6:9], v0, s[40:43], 0 offen offset:16")
    a.label("F_DONE")
    a("s_endpgm")
    return kernel_desc(name, NV, 100)


def gen_k3(a):
    name = "k3_kernel"
    kernel_begin(a, name)
    a("s_cmp_ge_u32 s2, %d" % (0 if "k3empty" in EXP else 256))
    a("s_cbranch_scc1 K3_DONE")
    if "diag" in EXP:
        a("s_memrealtime s[36:37]")
    a("s_load_dwordx2 s[4:5], s[0:1], 80")
    a("s_load_dwordx2 s[6:7], s[0:1], 96")
    a("s_lshl_b32 s3, s2, 8")
    a("v_add_u32 v1, s3, v0")
    a("s_waitcnt lgkmcnt(0)")
    a("s_add_u32 s6, s6, 0x%x" % P_WS_OFF)
    a("s_addc_u32 s7, s7, 0")
    make_srd(a, 8, 6, 16 << 20)
    make_srd(a, 12, 4, 2 << 20)
    a("v_lshlrev_b32 v2, 4, v1")
    for i in range(4):
        blk = i >> 1
        for ks in range(4):
            a("s_mov_b32 s%d, 0x%x" % (16 + 4 * i + ks, blk * (8 << 20) + ks * (2 << 20) + (i & 1) * (1 << 20)))
    for i in range(4):
        for ks in range(4):
            a("buffer_load_dwordx4 %s, v2, s[8:11], s%d offen" % (vr(8 + 16 * i + 4 * ks, 4), 16 + 4 * i + ks))
    a("v_lshrrev_b32 v3, 7, v1")
    a("v_lshlrev_b32 v3, 11, v3")
    a("v_and_b32 v4, 127, v1")
    a("v_lshl_add_u32 v3, v4, 3, v3")
    for i in range(4):
        a("s_waitcnt vmcnt(%d)" % (12 - 4 * i))
        b = 8 + 16 * i
        for q in range(4):
            a("v_add_f32 v%d, v%d, v%d" % (b + q, b + q, b + 4 + q))
            a("v_add_f32 v%d, v%d, v%d" % (b + 8 + q, b + 8 + q, b + 12 + q))
        for q in range(4):
            a("v_add_f32 v%d, v%d, v%d" % (b + q, b + q, b + 8 + q))
        a("v_cvt_pk_bf16_f32 v%d, v%d, v%d" % (b, b, b + 1))
        a("v_cvt_pk_bf16_f32 v%d, v%d, v%d" % (b + 1, b + 2, b + 3))
        a("s_mov_b32 s16, 0x%x" % ((i >> 1) * 1024 + (i & 1) * 512 * 2048))
        a("buffer_store_dwordx2 %s, v3, s[12:15], s16 offen" % vr(b, 2))
    if "diag" in EXP:
        a("s_cmp_lg_u32 s2, 0")
        a("s_cbranch_scc1 K3_DONE")
        a("s_waitcnt vmcnt(0)")
        a("s_memrealtime s[38:39]")
        a("s_load_dwordx2 s[4:5], s[0:1], 88")
        a("s_load_dwordx2 s[6:7], s[0:1], 96")
        a("s_waitcnt lgkmcnt(0)")
        a("s_add_u32 s6, s6, 0x%x" % (60 << 20))
        a("s_addc_u32 s7, s7, 0")
        make_srd(a, 8, 6, 65536)
        make_srd(a, 12, 4, 256)
        a("v_lshlrev_b32 v1, 3, v0")
        a("buffer_load_dwordx2 v[4:5], v1, s[8:11], 0 offen")
        a("s_waitcnt vmcnt(0)")
        a("v_cmp_gt_u32 vcc, 6, v0")
        a("s_and_saveexec_b64 s[20:21], vcc")
        a("buffer_store_dwordx2 v[4:5], v1, s[12:15], 0 offen")
        a("s_mov_b64 exec, s[20:21]")
        a("v_mov_b32 v6, s36")
        a("v_mov_b32 v7, s38")
        a("v_mov_b32 v1, 48")
        a("v_cmp_eq_u32 vcc, 0, v0")
        a("s_and_saveexec_b64 s[20:21], vcc")
        a("buffer_store_dwordx2 v[6:7], v1, s[12:15], 0 offen")
    a.label("K3_DONE")
    a("s_endpgm")
    return kernel_desc(name, 80, 40)


def main():
    a = Asm()
    hdr = HEADER + "; @launch grid=(256,1,1) block=(512,1,1) lds=%d\n" % F_LDS
    a.raw('.amdgcn_target "amdgcn-amd-amdhsa--gfx950"')
    a.raw(".text")
    descs = [gen_fused(a)]
    a.raw('.section .rodata,"a"')
    for d in descs:
        a.raw(".p2align 6")
        a.raw(d)
    open(OUT, "w").write(hdr + a.text())


if __name__ == "__main__":
    main()
```
